```python
import torch

def _softmax(x, axis=-1):
    return torch.softmax(x, dim=axis)

def _gelu(x):
    return torch.nn.functional.gelu(x, approximate='tanh')

def _silu(x):
    return torch.nn.functional.silu(x)

def _sigmoid(x):
    return torch.sigmoid(x)

def _layernorm(x, axis=-1, eps=1e-05):
    m = x.mean(dim=axis, keepdim=True)
    v = x.var(dim=axis, keepdim=True, unbiased=False)
    return (x - m) / torch.sqrt(v + eps)

def _scatter_add(tgt, idx, src, axis=0):
    return tgt.clone().index_add_(axis, idx, src)

def _segment_sum(src, seg, n):
    out = torch.zeros((n,) + src.shape[1:], dtype=src.dtype)
    return out.index_add_(0, seg, src)

def _pad(x, pw):
    flat = tuple((v for pair in reversed(pw) for v in pair))
    return torch.nn.functional.pad(x, flat)
kernel_name = 'parallel_sum__memory_aug_recurrent_mem_tr__mixer_gmlp__prompt'

def setup_inputs():

    _w = lambda a: (lambda t: t.to(torch.bfloat16) if t.is_floating_point() else t)(torch.as_tensor(a))

    def _A_setup():
        B, S, Dm = (1, 2048, 512)
        H, Dh = (32, 128)
        M, seg = (8, 32)
        seg = min(seg, S)
        S = S // seg * seg
        return {'x': _w((lambda *s: torch.randn(*s, dtype=torch.bfloat16) * 0.05)(B, S, Dm)), 'mem0': _w((lambda *s: torch.randn(*s, dtype=torch.bfloat16) * 1.6)(B, M, Dm)), 'Wq': _w((lambda *s: torch.randn(*s, dtype=torch.bfloat16) * 0.8)(Dm, H, Dh) * Dm ** (-0.5)), 'Wk': _w((lambda *s: torch.randn(*s, dtype=torch.bfloat16) * 0.8)(Dm, H, Dh) * Dm ** (-0.5)), 'Wv': _w((lambda *s: torch.randn(*s, dtype=torch.bfloat16) * 1.6)(Dm, H, Dh) * Dm ** (-0.5)), 'Wo': _w((lambda *s: torch.randn(*s, dtype=torch.bfloat16) * 1.6)(H, Dh, Dm) * (H * Dh) ** (-0.5)), 'seg_len': seg}
    _A_in = _A_setup()

    def _B_setup():
        B, S, D, F = (1, 2048, 512, 1792)
        Fh = F // 2
        return {'x': _w((lambda *s: torch.randn(*s, dtype=torch.bfloat16) * 0.05)(B, S, D)), 'w_in': _w((lambda *s: torch.randn(*s, dtype=torch.bfloat16) * 0.2)(D, 2 * Fh)), 'w_sp': _w(0.01 * (lambda *s: torch.randn(*s, dtype=torch.bfloat16) * 0.2)(S, S)), 'b_sp': _w(1.0 + 0.01 * (lambda *s: torch.randn(*s, dtype=torch.bfloat16) * 0.05)(S)), 'w_out': _w((lambda *s: torch.randn(*s, dtype=torch.bfloat16) * 0.05)(Fh, D))}
    _B_in = _B_setup()
    return {'A_x': _A_in['x'], 'A_mem0': _A_in['mem0'], 'A_Wq': _A_in['Wq'], 'A_Wk': _A_in['Wk'], 'A_Wv': _A_in['Wv'], 'A_Wo': _A_in['Wo'], 'A_seg_len': _A_in['seg_len'], 'B_x': _B_in['x'], 'B_w_in': _B_in['w_in'], 'B_w_sp': _B_in['w_sp'], 'B_b_sp': _B_in['b_sp'], 'B_w_out': _B_in['w_out']}

def reference(A_x, A_mem0, A_Wq, A_Wk, A_Wv, A_Wo, A_seg_len, B_x, B_w_in, B_w_sp, B_b_sp, B_w_out):

    def _A_ref(x, mem0, Wq, Wk, Wv, Wo, seg_len):
        B, S, Dm = x.shape
        H, Dh = (Wq.shape[1], Wq.shape[2])
        M = mem0.shape[1]
        scale = Dh ** (-0.5)
        n_seg = S // seg_len
        L = M + seg_len
        idx = torch.arange(L)
        mask = (idx[:, None] < M) | (idx[:, None] >= idx[None, :])
        mem = mem0
        outs = []
        for s in range(n_seg):
            xs = x[:, s * seg_len:(s + 1) * seg_len, :].clone()
            h = torch.concatenate([mem, xs], axis=1)
            q = torch.einsum('btd,dhe->bhte', h, Wq)
            k = torch.einsum('btd,dhe->bhte', h, Wk)
            v = torch.einsum('btd,dhe->bhte', h, Wv)
            scores = torch.einsum('bhqe,bhke->bhqk', q, k) * scale
            scores = torch.where(mask[None, None], scores, -1000000000.0)
            p = _softmax(scores, axis=-1)
            o = torch.einsum('bhqk,bhke->bhqe', p, v)
            o = torch.einsum('bhte,hed->btd', o, Wo)
            mem = o[:, :M, :].clone()
            outs.append(o[:, M:, :])
        return torch.concatenate(outs, axis=1)

    def _B_ref(x, w_in, w_sp, b_sp, w_out):
        B, S, D = x.shape
        F = w_in.shape[-1]
        Fh = F // 2
        z = _gelu(torch.einsum('bsd,df->bsf', x, w_in))
        z1 = z[..., :Fh].clone()
        z2 = _layernorm(z[..., Fh:], axis=-1)
        g = torch.einsum('ts,bsf->btf', w_sp, z2) + b_sp[None, :, None]
        return torch.einsum('bsf,fd->bsd', z1 * g, w_out)
    x = A_x
    xn = _layernorm(x, axis=-1)
    return x + _A_ref(xn, A_mem0, A_Wq, A_Wk, A_Wv, A_Wo, A_seg_len) + _B_ref(xn, B_w_in, B_w_sp, B_b_sp, B_w_out)
```

```python
from common import *

S_WS   = 4
S_DBG  = 8
S_A    = 12
S_B    = 16
S_C    = 20
S_D    = 24
S_XCC  = 28
S_WAVE = 29
S_HEAD = 30
S_T0   = 31
S_STEP = 40
S_MEMO = 41
S_MEMN = 42
S_INO  = 43
S_KXO  = 44
S_VXO  = 45
S_KVL  = 46
S_INL  = 47
S_VMO  = 51
S_KMO  = 48
S_TO   = 49
S_C1   = 50
S_MT0  = 52
S_MT1  = 54
S_MST  = 56
S_PH   = 58
S_STAMP= 60

WREG = 36864
SH = 4*WREG
L_KV = 32768
PS = SH + 8192

vLANE=1; vL=2; vM=[3,4,5,6]; vN=[7,8,9,10]; vQTw=11; vQr=12; vKr=13; vOw=14; vOr=15
AF = lambda s: 16+4*s
ACC = [48,52,56,60]
SB = lambda i: 64+8*i
vIdx=96; vPst=97; vMld=98; vMst=99; vSel=100
VMQ=104; vKVr=108; vT=109; vKMst=111
PMZ=0
RESV=128
V0=112; V1=116; XA=[120,124]
vTch = vKVr
RING = 4

def wfrag(mat, s, t):
    if mat == 'v': return ar(8*(2*s+t), 8)
    if mat == 'o':
        tp = t >> 1
        if tp == 3: return None
        return ar(128 + 8*(2*(2*tp+s) + (t&1)), 8)
    if mat == 'k':
        if s in (2,3): return ar(224 + 8*(2*(s-2)+t), 8)
        if s in (4,5): return vr(RESV + 8*(2*(s-4)+t), 8)
        return None
    if mat == 'q':
        if s < 2: return None
        return vr(RESV + 32 + 8*(2*(s-2)+t), 8)
STREAMED = [('q',0),('k',0),('q',1),('k',1),('k',6),('k',7),('o',(0,3)),('o',(1,3))]
def home(mat, key, t):
    return STREAMED.index((mat,key))*4096 + t*2048

def padd(d, x, y):
    return f'v_add_f32 v{d}, v{x}, v{y}\n v_add_f32 v{d+1}, v{x+1}, v{y+1}'
def smf(a, acc, A, B):
    a(f'v_smfmac_f32_16x16x64_bf16 {vr(acc,4)}, {vr(A,4)}, {B}, {vr(vIdx)}')

def chain_setup(a, opt):
    a(f'''
    s_load_dwordx4 s[{S_T0+1}:{S_T0+4}], s[0:1], 16
    s_load_dwordx4 s[{S_T0+5}:{S_T0+8}], s[0:1], 32
    v_and_b32 v{vLANE}, 63, v0
    s_waitcnt lgkmcnt(0)
    s_mov_b32 s{S_A}, s{S_T0+1}
    s_mov_b32 s{S_A+1}, s{S_T0+2}
    s_mov_b32 s{S_A+2}, 0x400000
    s_mov_b32 s{S_A+3}, 0x20000
    s_mov_b32 s{S_B}, s{S_T0+3}
    s_mov_b32 s{S_B+1}, s{S_T0+4}
    s_mov_b32 s{S_B+2}, 0x400000
    s_mov_b32 s{S_B+3}, 0x20000
    s_mov_b32 s{S_C}, s{S_T0+5}
    s_mov_b32 s{S_C+1}, s{S_T0+6}
    s_mov_b32 s{S_C+2}, 0x400000
    s_mov_b32 s{S_C+3}, 0x20000
    s_mov_b32 s{S_D}, s{S_T0+7}
    s_mov_b32 s{S_D+1}, s{S_T0+8}
    s_mov_b32 s{S_D+2}, 0x400000
    s_mov_b32 s{S_D+3}, 0x20000
    ''')
    a(f'''
    v_lshrrev_b32 v20, 2, v{vLANE}
    v_and_b32 v21, 3, v{vLANE}
    v_lshlrev_b32 v16, 13, v20
    v_lshl_add_u32 v16, v21, 4, v16
    s_lshl_b32 s{S_T0}, s{S_HEAD}, 8
    s_lshl_b32 s{S_T0+1}, s{S_WAVE}, 6
    s_add_u32 s{S_T0}, s{S_T0}, s{S_T0+1}
    v_add_u32 v16, s{S_T0}, v16
    v_lshlrev_b32 v17, 10, v20
    v_lshl_add_u32 v17, v21, 4, v17
    s_lshl_b32 s{S_T0}, s{S_HEAD}, 17
    s_lshl_b32 s{S_T0+1}, s{S_WAVE}, 8
    s_add_u32 s{S_T0}, s{S_T0}, s{S_T0+1}
    v_add_u32 v17, s{S_T0}, v17
    s_mul_i32 s{S_T0+2}, s{S_WAVE}, {WREG}
    s_lshl_b32 s{S_T0+3}, s{S_WAVE}, 1          ; 2w
    ''')
    units = [('v',s) for s in range(8)] + [('o',(kb,tp)) for tp in range(3) for kb in range(2)] + \
            [('k',s) for s in range(2,6)] + [('q',s) for s in range(2,8)] + STREAMED
    assert len(units) == 32
    def issue(n):
        mat, key = units[n]
        slot = (n+3) % 9
        if mat == 'o':
            kb2, tp = key
            for i in range(4):
                a(f'''s_add_u32 m0, s{S_T0+2}, {slot*4096 + i*1024}
                      s_mov_b32 s{S_T0+4}, {kb2*65536 + i*16384 + tp*64}
                      buffer_load_dwordx4 v17, s[{S_D}:{S_D+3}], s{S_T0+4} offen lds''')
        else:
            srd = {'q':S_A,'k':S_B,'v':S_C}[mat]
            a(f's_xor_b32 s{S_T0+5}, s{S_T0+3}, {key}\n s_lshl_b32 s{S_T0+5}, s{S_T0+5}, 19')
            for i in range(4):
                a(f'''s_add_u32 m0, s{S_T0+2}, {slot*4096 + i*1024}
                      s_add_u32 s{S_T0+4}, s{S_T0+5}, {i*131072}
                      buffer_load_dwordx4 v16, s[{srd}:{srd+3}], s{S_T0+4} offen lds''')
    for n in range(9): issue(n)
    a(f'''
    v_lshrrev_b32 v22, 4, v{vLANE}            ; g
    v_and_b32 v23, 15, v{vLANE}               ; j / i
    v_bfe_u32 v24, v{vLANE}, 2, 2
    v_and_b32 v25, 3, v{vLANE}                ; c
    v_lshrrev_b32 v26, 1, v22                 ; g>>1
    v_and_b32 v27, 1, v22                     ; g&1
    v_lshrrev_b32 v28, 1, v24                 ; r>>1
    v_and_b32 v29, 1, v24                     ; r&1
    v_lshl_add_u32 v18, v26, 2, v27
    v_lshl_add_u32 v18, v28, 1, v18
    v_lshl_add_u32 v18, v29, 4, v18
    v_lshlrev_b32 v18, 6, v18
    v_lshl_add_u32 v18, v25, 4, v18
    v_add_u32 v18, s{S_T0+2}, v18
    v_lshl_add_u32 v19, v26, 4, v29
    v_lshl_add_u32 v19, v27, 2, v19
    v_lshl_add_u32 v19, v28, 3, v19
    v_lshlrev_b32 v19, 6, v19
    v_lshl_add_u32 v19, v25, 3, v19
    v_add_u32 v19, s{S_T0+2}, v19
    ; vL
    v_lshlrev_b32 v30, 4, v{vLANE}            ; lane*16
    v_add_u32 v{vL}, s{S_T0+2}, v30
    v_lshlrev_b32 v31, 2, v{vLANE}            ; lane*4
    ''')
    for p in range(4):
        a(f'''s_xor_b32 s{S_T0+4}, s{S_WAVE}, {p}
              s_lshl_b32 s{S_T0+4}, s{S_T0+4}, 11
              s_add_u32 s{S_T0+5}, s{S_T0+4}, {SH}
              v_add_u32 v{vM[p]}, s{S_T0+5}, v30
              s_add_u32 s{S_T0+5}, s{S_T0+4}, {PS+1024}
              v_add_u32 v{vN[p]}, s{S_T0+5}, v31''')
    a(f'''
    s_lshl_b32 s{S_T0+4}, s{S_WAVE}, 11
    s_add_u32 s{S_T0+4}, s{S_T0+4}, {PS}
    v_lshlrev_b32 v{vQTw}, 7, v22
    v_lshl_add_u32 v{vQTw}, v23, 2, v{vQTw}
    v_add_u32 v{vQTw}, s{S_T0+4}, v{vQTw}
    v_and_b32 v32, 7, v23                     ; m
    v_lshrrev_b32 v33, 3, v23                 ; T
    v_lshlrev_b32 v{vQr}, 6, v32
    v_lshl_add_u32 v{vQr}, v27, 4, v{vQr}
    v_mov_b32 v34, 1280
    v_cmp_eq_u32 vcc, v26, v33
    s_nop 1
    v_cndmask_b32 v{vQr}, v34, v{vQr}, vcc
    v_add_u32 v{vQr}, s{S_T0+4}, v{vQr}
    v_lshl_add_u32 v35, v24, 1, v26           ; key
    v_lshlrev_b32 v{vKr}, 6, v35
    v_lshl_add_u32 v{vKr}, v27, 4, v{vKr}
    v_add_u32 v{vKr}, s{S_T0+4}, v{vKr}
    v_add_u32 v{vKr}, 512, v{vKr}
    v_and_b32 v36, 1, v{vLANE}
    v_lshl_add_u32 v{vKr}, v36, 5, v{vKr}
    v_lshlrev_b32 v{vKMst}, 8, v35
    v_lshl_add_u32 v{vKMst}, v27, 4, v{vKMst}
    v_lshl_add_u32 v{vKMst}, v36, 5, v{vKMst}
    s_lshl_b32 s{S_T0+5}, s{S_WAVE}, 6
    v_add_u32 v{vKMst}, s{S_T0+5}, v{vKMst}
    v_cmp_eq_u32 s[{S_MT0}:{S_MT0+1}], 0, v33
    v_cmp_eq_u32 s[{S_MT1}:{S_MT1+1}], 1, v33
    v_lshrrev_b32 v36, 1, v32                 ; m>>1
    v_and_b32 v37, 1, v32                     ; m&1
    v_lshl_add_u32 v{vOw}, v26, 4, v37
    v_lshl_add_u32 v{vOw}, v36, 2, v{vOw}
    v_lshl_add_u32 v{vOw}, v27, 1, v{vOw}
    v_lshlrev_b32 v{vOw}, 4, v{vOw}
    s_lshl_b32 s{S_T0+5}, s{S_WAVE}, 9         ; (w>>1)*1024 + (w&1)*512 = w*512
    s_add_u32 s{S_T0+5}, s{S_T0+5}, {SH}
    v_add_u32 v{vOw}, s{S_T0+5}, v{vOw}
    v_lshlrev_b32 v36, 4, v32
    v_lshl_add_u32 v36, v22, 7, v36
    v_add_u32 v36, s{S_T0+4}, v36
    v_add_u32 v36, 1536, v36
    v_cndmask_b32 v{vOw}, v{vOw}, v36, s[{S_MT1}:{S_MT1+1}]
    v_add_u32 v{vOr}, {SH}, v30
    v_bfe_u32 v38, v{vLANE}, 1, 1
    v_mov_b32 v{vIdx}, 0x4444
    v_mov_b32 v39, 0xeeee
    v_cmp_eq_u32 vcc, 1, v38
    s_nop 1
    v_cndmask_b32 v{vIdx}, v{vIdx}, v39, vcc
    v_mov_b32 v39, 0x3f80
    v_mov_b32 v40, 0x3f800000
    v_cmp_eq_u32 vcc, 1, v28
    s_nop 1
    v_cndmask_b32 v39, v39, v40, vcc
    v_cmp_gt_u32 vcc, 2, v25
    s_nop 1
    v_cndmask_b32 v39, 0, v39, vcc
    v_lshl_add_u32 v40, v29, 1, v25
    ''')
    for d in range(4):
        a(f'''v_cmp_eq_u32 vcc, {d}, v40
              s_nop 1
              v_cndmask_b32 v{vSel+d}, 0, v39, vcc''')
    a(f'''
    s_lshl_b32 s{S_T0+5}, s{S_WAVE}, 3
    v_add_u32 v{vPst}, s{S_T0+5}, v22
    v_lshlrev_b32 v{vPst}, 14, v{vPst}
    v_lshl_add_u32 v{vPst}, v24, 11, v{vPst}
    v_lshl_add_u32 v{vPst}, v25, 4, v{vPst}
    s_lshl_b32 s{S_T0+5}, s{S_HEAD}, 6
    v_add_u32 v{vPst}, s{S_T0+5}, v{vPst}
    s_lshl_b32 s{S_T0+5}, s{S_HEAD}, 14
    s_lshl_b32 s{S_T0+6}, s{S_WAVE}, 11
    s_add_u32 s{S_T0+5}, s{S_T0+5}, s{S_T0+6}
    s_add_u32 s{S_INL}, s{S_T0+5}, {WS_INBOX - SH}
    v_lshlrev_b32 v{vMst}, 7, v26
    v_lshl_add_u32 v{vMst}, v25, 3, v{vMst}
    v_lshl_add_u32 v{vMst}, v27, 2, v{vMst}
    s_lshl_b32 s{S_T0+5}, s{S_HEAD}, 8
    s_lshl_b32 s{S_T0+6}, s{S_WAVE}, 5
    s_add_u32 s{S_T0+5}, s{S_T0+5}, s{S_T0+6}
    v_add_u32 v{vMst}, s{S_T0+5}, v{vMst}
    s_mov_b32 s{S_MST}, 0x000f000f
    s_mov_b32 s{S_MST+1}, 0x000f000f
    v_and_b32 v40, 1, v{vLANE}
    v_lshlrev_b32 v{vMld}, 8, v24
    v_lshl_add_u32 v{vMld}, v40, 7, v{vMld}
    v_lshl_add_u32 v{vMld}, v22, 5, v{vMld}
    v_lshl_add_u32 v{vMld}, v38, 4, v{vMld}
    s_lshl_b32 s{S_T0+5}, s{S_WAVE}, 11
    v_add_u32 v{vMld}, s{S_T0+5}, v{vMld}
    v_lshlrev_b32 v{vTch}, 7, v23
    v_lshl_add_u32 v{vTch}, v27, 24, v{vTch}
    v_add_u32 v{vTch}, {SH + 32*8192}, v{vTch}
    s_sub_u32 s{S_T0+6}, {WS_KM + 6144 - WS_KX + SH + 2*32*8192}, s{S_T0+5}
    v_mov_b32 v40, s{S_T0+6}
    v_cmp_lt_u32 vcc, 31, v{vLANE}
    s_nop 1
    v_cndmask_b32 v{vTch}, v{vTch}, v40, vcc
    s_mov_b32 s{S_C1}, 0x3e0293ee      ; 128^-0.5 * log2(e)
    ''')
    ring = opt.get('ring', RING)
    a(f'''
    v_mov_b32 v44, -1
    v_mov_b32 v45, -1
    v_mov_b32 v46, -1
    v_mov_b32 v47, -1
    buffer_store_dwordx4 v[44:47], v{vOr}, s[{S_WS}:{S_WS+3}], s{S_INL} offen sc1
    buffer_store_dwordx4 v[44:47], v{vOr}, s[{S_WS}:{S_WS+3}], s{S_INL} offen offset:1024 sc1
    s_add_u32 s{S_T0+5}, s{S_INL}, 8192
    buffer_store_dwordx4 v[44:47], v{vOr}, s[{S_WS}:{S_WS+3}], s{S_T0+5} offen sc1
    buffer_store_dwordx4 v[44:47], v{vOr}, s[{S_WS}:{S_WS+3}], s{S_T0+5} offen offset:1024 sc1
    s_load_dwordx2 s[{S_T0+5}:{S_T0+6}], s[0:1], 8
    s_mov_b64 exec, s[{S_MST}:{S_MST+1}]
    ''')
    for s in range(1, ring):
        a(f'''s_mov_b32 s{S_T0+7}, {WS_MEM + s*8192}
              buffer_store_dword v44, v{vMst}, s[{S_WS}:{S_WS+3}], s{S_T0+7} offen sc1''')
    a(f'''
    s_mov_b64 exec, -1
    s_and_b32 s{S_T0+7}, s{S_HEAD}, 3
    s_lshl_b32 s{S_T0+7}, s{S_T0+7}, 11
    s_lshr_b32 s{S_T0+8}, s{S_HEAD}, 2
    s_lshl_b32 s{S_T0+8}, s{S_T0+8}, 7
    s_add_u32 s{S_T0+7}, s{S_T0+7}, s{S_T0+8}
    s_lshl_b32 s{S_T0+8}, s{S_WAVE}, 3
    s_add_u32 s{S_T0+7}, s{S_T0+7}, s{S_T0+8}
    v_lshlrev_b32 v41, 10, v26
    v_lshl_add_u32 v41, v25, 1, v41
    v_lshl_add_u32 v41, v27, 6, v41
    v_add_u32 v41, s{S_T0+7}, v41
    s_waitcnt lgkmcnt(0)
    global_load_ushort v48, v41, s[{S_T0+5}:{S_T0+6}]
    global_load_ushort v49, v41, s[{S_T0+5}:{S_T0+6}] offset:32
    v_mov_b32 v42, 0
    v_add_u32 v43, s{S_T0+4}, v31
    ds_write_b32 v43, v42 offset:1280
    ''')
    nextra = 4 + (ring-1) + 2
    for n in range(32):
        mat, key = units[n]
        slot = (n+3) % 9
        later = 4*min(8, 31-n)
        if n == 0:
            a(f's_waitcnt vmcnt(0)' if False else f's_waitcnt vmcnt({min(63, later + nextra)})')
        elif n <= 8:
            a(f's_waitcnt vmcnt({min(63, later + nextra)})')
        else:
            a(f's_waitcnt vmcnt({later})')
        streamed = (mat, key) in STREAMED
        for t in range(2):
            if mat == 'o':
                dst = wfrag('o', key[0], 2*key[1]+t)
            else:
                dst = wfrag(mat, key, t)
            for rho in range(4):
                if streamed:
                    d = vr(64 + 8*t + 2*rho, 2)
                else:
                    f, base = dst[0], int(dst[2:dst.index(':')])
                    d = f'{f}[{base+2*rho}:{base+2*rho+1}]'
                if mat == 'o':
                    off = (32*(rho>>1) + 2*(rho&1))*64 + 32*t + slot*4096
                    a(f'ds_read_b64_tr_b16 {d}, v19 offset:{off}')
                else:
                    off = (32*(rho&1) + 8*(rho>>1))*64 + 8*t + slot*4096
                    a(f'ds_read_b64_tr_b16 {d}, v18 offset:{off}')
        a('s_waitcnt lgkmcnt(0)')
        if streamed:
            assert slot == STREAMED.index((mat,key))
            for t in range(2):
                a(f'ds_write_b128 v{vL}, {vr(64+8*t,4)} offset:{slot*4096 + t*2048}')
                a(f'ds_write_b128 v{vL}, {vr(68+8*t,4)} offset:{slot*4096 + t*2048 + 1024}')
            a('s_waitcnt lgkmcnt(0)')
        if n + 9 < 32: issue(n+9)
        if n == 9:
            a(f'''
            v_lshl_or_b32 v48, v49, 16, v48
            v_min_u32 v48, -2, v48
            s_mov_b32 s{S_T0+7}, {WS_MEM}
            s_mov_b64 exec, s[{S_MST}:{S_MST+1}]
            buffer_store_dword v48, v{vMst}, s[{S_WS}:{S_WS+3}], s{S_T0+7} offen sc1
            s_mov_b64 exec, -1
            ''')
    a('s_waitcnt vmcnt(0)')

def chain_masks(a):
    a(f'''
    v_mov_b32 v{PMZ}, 0
    v_mov_b32 v{PMZ+1}, 0
    v_mov_b32 v{VMQ}, 0
    v_mov_b32 v{VMQ+1}, 0
    v_mov_b32 v{VMQ+2}, 0
    v_mov_b32 v{VMQ+3}, 0
    ''')

def stamp(a, opt, i, mode=1):
    if opt.get('stamps') == 3:
        if mode == 1 and i in (1,2,5,8,9,10,11): a(f's_memrealtime s[{S_STAMP+2*i}:{S_STAMP+2*i+1}]')
    elif opt.get('stamps') == 4:
        if (mode == 4) or (mode == 1 and i in (0,1,2,8,9,10,11)): a(f's_memtime s[{S_STAMP+2*i}:{S_STAMP+2*i+1}]')
    elif opt.get('stamps') == mode:
        a(f's_memtime s[{S_STAMP+2*i}:{S_STAMP+2*i+1}]')

def chain_loop(a, opt, st, tag):
    ring = opt.get('ring', RING)
    d1 = opt.get('d1', 4); d2 = opt.get('d2', 6)
    W = f's[{S_WS}:{S_WS+3}]'
    Q0,Q1,K0,K1 = ACC
    Ltop = f'L_step_{tag}'; P1 = f'L_p1_{tag}'; P2 = f'L_p2_{tag}'; Lfin = f'L_fin_{tag}'
    TO = lambda out: a(f's_add_u32 s{S_TO}, s{S_TO}, 1\n s_cmp_gt_u32 s{S_TO}, 0x100000\n s_cbranch_scc1 {out}')
    def zl(acc): return [f'v_mov_b32 v{acc+i}, 0' for i in range(4)]
    def zero(acc): a('\n'.join(zl(acc)))
    def sread(dst, mat, key, t):
        off = home(mat, key, t)
        a(f'ds_read_b128 {vr(dst,4)}, v{vL} offset:{off}\n ds_read_b128 {vr(dst+4,4)}, v{vL} offset:{off+1024}')
    a(f"""
    s_mov_b32 s{S_STEP}, 0
    s_mov_b32 s{S_MEMO}, {WS_MEM}
    s_mov_b32 s{S_MEMN}, {WS_MEM + 8192}
    s_mov_b32 s{S_INO}, {WS_INBOX}
    s_lshl_b32 s{S_T0}, s{S_HEAD}, 13
    s_lshl_b32 s{S_T0+1}, s{S_WAVE}, 11
    s_add_u32 s{S_KMO}, s{S_T0}, {WS_KM}
    s_add_u32 s{S_T0}, s{S_T0}, s{S_T0+1}
    s_add_u32 s{S_KXO}, s{S_T0}, {WS_KX - SH}
    s_add_u32 s{S_VXO}, s{S_T0}, {WS_VX - SH}
    s_mul_i32 s{S_KVL}, s{S_WAVE}, {WREG}
    s_add_u32 s{S_KVL}, s{S_KVL}, {L_KV}
    s_lshl_b32 s{S_T0+1}, s{S_WAVE}, 10
    s_add_u32 s{S_VMO}, s{S_KMO}, s{S_T0+1}
    s_add_u32 s{S_VMO}, s{S_VMO}, {2048 - SH - 32*8192}
    s_mov_b32 s{S_TO}, 0
    s_mov_b32 s{S_PH}, 0
    """)
    def kvdma(which=(0,1)):
        for m in which:
            so = S_KXO if m == 0 else S_VXO
            a(f's_add_u32 m0, s{S_KVL}, {m*2048}\n s_nop 0')
            for i in range(2):
                a(f'buffer_load_dwordx4 v{vOr}, {W}, s{so} offen offset:{i*1024} sc1 lds')
            a(f's_add_u32 s{so}, s{so}, {opt.get("kvs",32*8192)}')
    def pre_sb():
        sread(SB(0),'k',0,1); sread(SB(1),'q',1,0); sread(SB(2),'q',1,1); sread(SB(3),'k',1,0)
    def pre_af():
        sread(AF(2),'q',0,0); sread(AF(4),'q',0,1); sread(AF(6),'k',0,0)
    def p2_loads():
        a(f"""buffer_load_dwordx4 {vr(AF(0),4)}, v{vMld}, {W}, s{S_MEMO} offen sc1
              buffer_load_dwordx4 {vr(AF(1),4)}, v{vMld}, {W}, s{S_MEMO} offen offset:1024 sc1""")
    if opt.get('kvwait'): opt['kvwait'](a, first=True)
    kvdma()
    pre_sb(); pre_af()
    for x in ACC + [V0,V1] + XA: zero(x)
    D1p = opt.get('D1', 1); D2p = opt.get('D2', 1)
    chk2 = f"""
    v_max3_u32 v{vT}, v{AF(0)}, v{AF(0)+1}, v{AF(0)+2}
    v_max3_u32 v{vT}, v{vT}, v{AF(0)+3}, v{AF(1)}
    v_max3_u32 v{vT}, v{vT}, v{AF(1)+1}, v{AF(1)+2}
    v_max_u32 v{vT}, v{vT}, v{AF(1)+3}
    v_cmp_eq_u32 vcc, -1, v{vT}
    s_and_b64 exec, vcc, exec
    s_cbranch_execz {P2}x
    """
    p2_loads()
    a(f'{Ltop}:')
    stamp(a, opt, 0)
    a('s_waitcnt vmcnt(0)')
    if opt.get('stamps') == 4: a(f's_mov_b32 s{S_STAMP+14}, 0')
    a(chk2)
    if opt.get('stamps') == 4: a(f's_bcnt1_i32_b64 s{S_STAMP+14}, exec')
    for i in range(D2p-1):
        p2_loads(); a('s_nop 7\n'*opt.get('g2',2))
    a(f'{P2}:')
    p2_loads()
    a(f's_waitcnt vmcnt({2*(D2p-1)})')
    a(chk2)
    a(f"""
    s_add_u32 s{S_TO}, s{S_TO}, 1
    s_cmp_gt_u32 s{S_TO}, 0x100000
    s_cbranch_scc0 {P2}
    {P2}x:
    s_mov_b64 exec, -1
    ds_write_b128 v{vM[0]}, {vr(AF(0),4)}
    ds_write_b128 v{vM[0]}, {vr(AF(1),4)} offset:1024
    s_waitcnt lgkmcnt(2)
    """)
    stamp(a, opt, 1)
    smf(a,Q0,AF(0),vr(AF(2),8))
    if opt.get('tpos',1) == 0 and not opt.get('nodma'): a(f'buffer_load_dword v{vT+1}, v{vTch}, {W}, s{S_KXO} offen sc1')
    smf(a,Q1,AF(0),vr(AF(4),8))
    if opt.get('vmpos',3) == 0 and opt.get('nokm') not in (1,3): a(f'buffer_store_dwordx4 {vr(VMQ,4)}, v{vOr}, {W}, s{S_VMO} offen sc1\n s_add_u32 s{S_VMO}, s{S_VMO}, {32*8192}')
    smf(a,K0,AF(0),vr(AF(6),8)); smf(a,K1,AF(0),vr(SB(0),8))
    a('s_waitcnt lgkmcnt(0)\n s_barrier')
    stamp(a, opt, 2)
    if opt.get('log'):
        a(f'''{'s_memrealtime' if opt.get('prof') else 's_memtime'} s[{S_STAMP}:{S_STAMP+1}]
              s_lshl_b32 s{S_STAMP+2}, s{S_HEAD}, 10
              s_lshl_b32 s{S_STAMP+3}, s{S_WAVE}, 8
              s_add_u32 s{S_STAMP+2}, s{S_STAMP+2}, s{S_STAMP+3}
              s_lshl_b32 s{S_STAMP+3}, s{S_STEP}, 2
              s_add_u32 s{S_STAMP+2}, s{S_STAMP+2}, s{S_STAMP+3}
              s_add_u32 s{S_STAMP+2}, s{S_STAMP+2}, {65536}
              s_waitcnt lgkmcnt(0)
              v_mov_b32 v{vT}, s{S_STAMP}
              s_mov_b64 exec, 1
              buffer_store_dword v{vT}, v{PMZ+1}, {W}, s{S_STAMP+2} offen
              s_mov_b64 exec, -1''')
    vseq = [(s,t) for s in range(8) for t in range(2)]
    def vm(n, fill=()):
        fill = list(fill)
        for _ in range(n):
            if not vseq: break
            s,t = vseq.pop(0)
            smf(a, V0 if t == 0 else V1, AF(s), wfrag('v',s,t))
            a('\n'.join(fill[:2])); fill = fill[2:]
        a('\n'.join(fill))
    rd = []
    for p in (1,2,3):
        rd += [f'ds_read_b128 {vr(AF(2*p),4)}, v{vM[p]}', f'ds_read_b128 {vr(AF(2*p+1),4)}, v{vM[p]} offset:1024']
    a(rd[0]); a(rd[1])
    if opt.get('kvwait'): opt['kvwait'](a, first=False)
    if opt.get('tpos',1) == 1 and not opt.get('nodma'): a(f'buffer_load_dword v{vT+1}, v{vTch}, {W}, s{S_KXO} offen sc1')
    smf(a,Q0,AF(1),vr(SB(1),8)); a(rd[2]); a(rd[3])
    smf(a,Q1,AF(1),vr(SB(2),8)); a(rd[4]); a(rd[5])
    smf(a,K0,AF(1),vr(SB(3),8))
    vm(opt.get('v0',2))
    if opt.get('kmflag'): opt['kmflag'](a, last=False)
    def sr1(dst, mat, key, t, half):
        return f'ds_read_b128 {vr(dst+4*half,4)}, v{vL} offset:{home(mat,key,t)+1024*half}'
    late = [(SB(0),'k',1,1),(SB(1),'k',6,0),(SB(2),'k',6,1),(SB(3),'k',7,0)]
    for s in range(2,8):
        a(f's_waitcnt lgkmcnt({7-s + (0 if s<=2 else 2*min(s-2,4))})')
        smf(a,Q0,AF(s),wfrag('q',s,0))
        if s < 6: a(sr1(*late[s-2],0))
        smf(a,Q1,AF(s),wfrag('q',s,1))
        if s < 6: a(sr1(*late[s-2],1))
        if s == opt.get('vmpos',3) and opt.get('nokm') not in (1,3): a(f'buffer_store_dwordx4 {vr(VMQ,4)}, v{vOr}, {W}, s{S_VMO} offen {opt.get("kmfl","sc1")}\n s_add_u32 s{S_VMO}, s{S_VMO}, {opt.get("kms",32*8192)}')
        if s == opt.get('tpos',1) and not opt.get('nodma'): a(f'buffer_load_dword v{vT+1}, v{vTch}, {W}, s{S_KXO} offen sc1')
    stamp(a, opt, 3)
    a('s_waitcnt lgkmcnt(6)')
    smf(a,K1,AF(1),vr(SB(0),8))
    for s in (2,3,4,5):
        smf(a,K0,AF(s),wfrag('k',s,0))
        if s == 2: a(sr1(SB(0),'k',7,1,0))
        if s == 3: a(padd(Q0,Q0,Q0+2))
        if s == 4: a(f'v_cvt_pk_bf16_f32 v{vT}, v{Q0}, v{Q1}\n v_cvt_pk_bf16_f32 v{PMZ}, v{Q0+1}, v{Q1+1}')
        if s == 5: a('\n'.join(zl(Q0)[:2]))
        smf(a,K1,AF(s),wfrag('k',s,1))
        if s == 2: a(sr1(SB(0),'k',7,1,1))
        if s == 3: a(padd(Q1,Q1,Q1+2))
        if s == 4: a(f'ds_write2_b32 v{vQTw}, v{vT}, v{PMZ} offset0:0 offset1:16')
        if s == 5: a('\n'.join(zl(Q0)[2:]))
    a('s_waitcnt lgkmcnt(1)')
    QB, KX, KM, DX, DM = SB(1), SB(2), SB(0), SB(3), SB(3)+4
    smf(a,K0,AF(6),vr(SB(1),8)); a('\n'.join(zl(Q1)[:2]))
    smf(a,K1,AF(6),vr(SB(2),8)); a('\n'.join(zl(Q1)[2:]))
    smf(a,K0,AF(7),vr(SB(3),8))
    a(f'ds_read_b128 {vr(QB,4)}, v{vQr}')
    smf(a,K1,AF(7),vr(SB(0),8))
    a(f'ds_read_b128 {vr(KX,4)}, v{vL} offset:{L_KV}')
    stamp(a, opt, 4)
    vm(1, [f'ds_read_b128 {vr(QB+4,4)}, v{vQr} offset:32'])
    vm(1, [f'ds_read_b128 {vr(KX+4,4)}, v{vL} offset:{L_KV+1024}'])
    a(f"""
    {padd(K0,K0,K0+2)}
    {padd(K1,K1,K1+2)}
    v_cvt_pk_bf16_f32 v{vT}, v{K0}, v{K1}
    v_cvt_pk_bf16_f32 v{PMZ}, v{K0+1}, v{K1+1}
    ds_write2_b32 v{vQTw}, v{vT}, v{PMZ} offset0:128 offset1:144
    ds_read_b128 {vr(KM,4)}, v{vKr}
    ds_read_b128 {vr(KM+4,4)}, v{vKr} offset:32
    s_waitcnt lgkmcnt(3)
    v_mfma_f32_16x16x32_bf16 {vr(DX,4)}, {vr(KX,4)}, {vr(QB,4)}, 0
    v_mfma_f32_16x16x32_bf16 {vr(DX,4)}, {vr(KX+4,4)}, {vr(QB+4,4)}, {vr(DX,4)}
    """)
    vm(opt.get('va',3), zl(K0)+zl(K1)[:2])
    a(f"""
    s_waitcnt lgkmcnt(0)
    v_mfma_f32_16x16x32_bf16 {vr(DM,4)}, {vr(KM,4)}, {vr(QB,4)}, 0
    v_mfma_f32_16x16x32_bf16 {vr(DM,4)}, {vr(KM+4,4)}, {vr(QB+4,4)}, {vr(DM,4)}
    ds_write_b128 v{vM[0]}, {vr(DX,4)} offset:8192
    """)
    vm(2, zl(K1)[2:])
    a(f"""
    s_nop 0
    ds_write_b32 v{vN[0]}, v{DM}
    """)
    vm(opt.get('vb',3), [] if opt.get('nokm') in (1,2) else [f'buffer_store_dwordx4 {vr(KM,4)}, v{vKMst}, {W}, s{S_KMO} offen ' + opt.get('kmfl','sc1')])
    if opt.get('tpos') == 8: a(f'buffer_load_dword v{vT+1}, v{vTch}, {W}, s{S_KXO} offen sc1')
    if opt.get('dmapos',1) == 1: kvdma((0,))
    a('s_waitcnt lgkmcnt(0)\n s_barrier')
    stamp(a, opt, 5)
    X1, X2, X3, MM = SB(1), SB(1)+4, SB(2), SB(2)+4
    VX = SB(0)
    a(f"""
    ds_read_b128 {vr(X1,4)}, v{vM[1]} offset:8192
    ds_read_b32 v{MM}, v{vN[1]}
    """)
    vm(16, [f'ds_read_b128 {vr(X2,4)}, v{vM[2]} offset:8192', f'ds_read_b32 v{MM+1}, v{vN[2]}',
            f'ds_read_b128 {vr(X3,4)}, v{vM[3]} offset:8192', f'ds_read_b32 v{MM+2}, v{vN[3]}',
            f'ds_read_b128 {vr(VX,4)}, v{vL} offset:{L_KV+2048}', f'ds_read_b128 {vr(VX+4,4)}, v{vL} offset:{L_KV+3072}'])
    a(f"""
    s_waitcnt lgkmcnt(6)
    {padd(DX,DX,X1)}
    {padd(DX+2,DX+2,X1+2)}
    v_add_f32 v{DM}, v{DM}, v{MM}
    s_waitcnt lgkmcnt(4)
    {padd(DX,DX,X2)}
    {padd(DX+2,DX+2,X2+2)}
    v_add_f32 v{DM}, v{DM}, v{MM+1}
    s_waitcnt lgkmcnt(2)
    {padd(DX,DX,X3)}
    {padd(DX+2,DX+2,X3+2)}
    v_add_f32 v{DM}, v{DM}, v{MM+2}
    """)
    stamp(a, opt, 6)
    PX = SB(1)
    mx, tt, E = SB(2), SB(2)+1, SB(2)+2
    DPP = 'row_ror:8 row_mask:0xf bank_mask:0xf'
    a(f"""
    v_max3_f32 v{mx}, v{DX}, v{DX+1}, v{DX+2}
    v_max3_f32 v{mx}, v{mx}, v{DX+3}, v{DM}
    {padd(V0,V0,V0+2)}
    v_max_f32_dpp v{mx}, v{mx}, v{mx} {DPP}
    v_mov_b32 v{tt}, v{mx}
    {padd(V1,V1,V1+2)}
    v_permlane16_swap_b32 v{mx}, v{tt}
    v_max_f32 v{mx}, v{mx}, v{tt}
    v_mov_b32 v{tt}, v{mx}
    v_cvt_pk_bf16_f32 v{VMQ}, v{V0}, v{V0+1}
    v_cvt_pk_bf16_f32 v{VMQ+2}, v{V1}, v{V1+1}
    v_permlane32_swap_b32 v{mx}, v{tt}
    v_max_f32 v{mx}, v{mx}, v{tt}
    v_mul_f32 v{mx}, s{S_C1}, v{mx}
    v_fma_f32 v{E}, v{DX}, s{S_C1}, -v{mx}
    v_fma_f32 v{E+1}, v{DX+1}, s{S_C1}, -v{mx}
    v_exp_f32 v{E}, v{E}
    v_fma_f32 v{E+2}, v{DX+2}, s{S_C1}, -v{mx}
    v_exp_f32 v{E+1}, v{E+1}
    v_fma_f32 v{E+3}, v{DX+3}, s{S_C1}, -v{mx}
    v_exp_f32 v{E+2}, v{E+2}
    v_fma_f32 v{E+4}, v{DM}, s{S_C1}, -v{mx}
    v_exp_f32 v{E+3}, v{E+3}
    v_cvt_pk_bf16_f32 v{PX}, v{E}, v{E+1}
    v_exp_f32 v{E+4}, v{E+4}
    v_cvt_pk_bf16_f32 v{PX+1}, v{E+2}, v{E+3}
    v_mov_b32_dpp v{PX+2}, v{PX} {DPP}
    v_add_f32 v{mx}, v{E}, v{E+1}
    v_mov_b32_dpp v{PX+3}, v{PX+1} {DPP}
    v_mov_b32_dpp v{tt}, v{E+4} {DPP}
    s_waitcnt lgkmcnt(0)
    """)
    stamp(a, opt, 7)
    D0, D1 = V0, V1
    t2 = SB(2)+7
    a(f"""
    v_mfma_f32_16x16x32_bf16 {vr(D0,4)}, {vr(VX,4)}, {vr(PX,4)}, 0
    v_cvt_pk_bf16_f32 v{PMZ}, v{E+4}, v{tt}
    v_add_f32 v{t2}, v{E+2}, v{E+3}
    v_mfma_f32_16x16x32_bf16 {vr(D1,4)}, {vr(VX+4,4)}, {vr(PX,4)}, 0
    v_add_f32 v{mx}, v{mx}, v{t2}
    v_add_f32 v{mx}, v{mx}, v{E+4}
    v_mfma_f32_16x16x16_bf16 {vr(D0,4)}, {vr(VMQ,2)}, {vr(PMZ,2)}, {vr(D0,4)}
    {sr1(AF(0),'o',(0,3),0,0)}
    v_add_f32_dpp v{mx}, v{mx}, v{mx} {DPP}
    v_mfma_f32_16x16x16_bf16 {vr(D1,4)}, {vr(VMQ+2,2)}, {vr(PMZ,2)}, {vr(D1,4)}
    v_mov_b32 v{tt}, v{mx}
    {sr1(AF(0),'o',(0,3),0,1)}
    {sr1(AF(2),'o',(1,3),0,0)}
    v_permlane16_swap_b32 v{mx}, v{tt}
    v_add_f32 v{mx}, v{mx}, v{tt}
    v_mov_b32 v{tt}, v{mx}
    {sr1(AF(2),'o',(1,3),0,1)}
    s_nop 0
    v_permlane32_swap_b32 v{mx}, v{tt}
    v_add_f32 v{mx}, v{mx}, v{tt}
    v_rcp_f32 v{mx}, v{mx}
    s_nop 0
    """)
    OW = SB(1)
    for r in range(4): a(f'v_mul_f32 v{D0+r}, v{D0+r}, v{mx}')
    a(f'v_cvt_pk_bf16_f32 v{OW}, v{D0}, v{D0+1}\n v_cvt_pk_bf16_f32 v{OW+1}, v{D0+2}, v{D0+3}')
    for r in range(4): a(f'v_mul_f32 v{D1+r}, v{D1+r}, v{mx}')
    a(f"""
    v_cvt_pk_bf16_f32 v{OW+2}, v{D1}, v{D1+1}
    v_cvt_pk_bf16_f32 v{OW+3}, v{D1+2}, v{D1+3}
    ds_write_b128 v{vOw}, {vr(OW,4)}
    s_cmp_eq_u32 s{S_STEP}, 63
    s_cbranch_scc1 {Lfin}
    """)
    accs = [XA[0], XA[1], Q0, Q1, K0, K1, SB(3), SB(3)+4]
    zero(accs[6]); zero(accs[7])
    if opt.get('dmapos',1) == 1: kvdma((1,))
    a('s_waitcnt lgkmcnt(0)\n s_barrier')
    stamp(a, opt, 8)
    OF = SB(0)
    a(f'ds_read_b128 {vr(OF,4)}, v{vOr}\n ds_read_b128 {vr(OF+4,4)}, v{vOr} offset:1024')
    sread(AF(4),'o',(0,3),1); sread(AF(6),'o',(1,3),1)
    OUT = SB(2)
    def wo(kb2, t):
        r = wfrag('o', kb2, t)
        if r: return r
        return {(0,6):vr(AF(0),8),(1,6):vr(AF(2),8),(0,7):vr(AF(4),8),(1,7):vr(AF(6),8)}[(kb2,t)]
    def post(t):
        x = accs[t]
        return [f'v_add_f32 v{x}, v{x}, v{x+2}', f'v_add_f32 v{x+1}, v{x+1}, v{x+3}', f'v_cvt_pk_bf16_f32 v{OUT+t}, v{x}, v{x+1}', f'v_bfi_b32 v{OUT+t}, 1, s{S_PH}, v{OUT+t}']
    a('s_waitcnt lgkmcnt(5)')
    smf(a, accs[0], OF, wo(0,0)); smf(a, accs[1], OF, wo(0,1))
    a('s_waitcnt lgkmcnt(4)')
    smf(a, accs[0], OF+4, wo(1,0)); smf(a, accs[1], OF+4, wo(1,1))
    pend = []
    for t in range(2,8):
        if t == 7: a('s_waitcnt lgkmcnt(0)')
        smf(a, accs[t], OF, wo(0,t))
        if t == 3: pend += post(1)
        if t >= 4: pend += post(t-2)
        n = 3 if t in (3,4) else 2
        a('\n'.join(pend[:n])); pend = pend[n:]
        smf(a, accs[t], OF+4, wo(1,t))
        if t == 2: pend += post(0)
        a('\n'.join(pend[:2])); pend = pend[2:]
        if t == 5:
            assert not pend
            a(f'buffer_store_dwordx4 {vr(OUT,4)}, v{vPst}, {W}, s{S_INO} offen {st}')
    assert not pend
    a(f's_add_u32 s{S_T0}, s{S_INO}, 0x10000')
    a('\n'.join(post(6)))
    a('s_nop 0')
    a('\n'.join(post(7)))
    a(f'buffer_store_dwordx4 {vr(OUT+4,4)}, v{vPst}, {W}, s{S_T0} offen {st}')
    stamp(a, opt, 9)
    if opt.get('dmapos',1) == 0: kvdma()
    R0, R1, RD = AF(0), AF(1), AF(4)
    a('s_nop 7\n'*d1)
    def p1_loads():
        a(f"""buffer_load_dwordx4 {vr(R0,4)}, v{vOr}, {W}, s{S_INL} offen sc1
              buffer_load_dwordx4 {vr(R1,4)}, v{vOr}, {W}, s{S_INL} offen offset:1024 sc1""")
    fill = [f'v_mov_b32 v{RD+4+i}, -1' for i in range(2)]
    for x in [Q0,Q1,V0,V1] + XA + [K0,K1]: fill += zl(x)
    stamp(a,opt,3,4)
    p1_loads()
    pre_sb()
    a('\n'.join(fill))
    a(f's_branch {P1}c')
    a(f"""
    {P1}:
    s_add_u32 s{S_TO}, s{S_TO}, 1
    s_cmp_gt_u32 s{S_TO}, 0x100000
    s_cbranch_scc1 {P1}x
    """)
    p1_loads()
    a(f"""
    s_mov_b64 exec, -1
    {P1}c:
    s_waitcnt vmcnt(1)
    v_mfma_f32_16x16x32_bf16 {vr(RD,4)}, {vr(vSel,4)}, {vr(R0,4)}, 0
    v_bitop3_b32 v{vT}, v{R0}, v{R0+1}, s{S_PH} bitop3:0x7e
    v_bitop3_b32 v{RD+6}, v{R0+2}, v{R0+3}, s{S_PH} bitop3:0x7e
    s_waitcnt vmcnt(0)
    v_mfma_f32_16x16x32_bf16 {vr(RD,4)}, {vr(vSel,4)}, {vr(R1,4)}, {vr(RD,4)}
    v_bitop3_b32 v{RD+7}, v{R1}, v{R1+1}, s{S_PH} bitop3:0x7e
    v_or3_b32 v{vT}, v{vT}, v{RD+6}, v{RD+7}
    v_bitop3_b32 v{RD+6}, v{R1+2}, v{R1+3}, s{S_PH} bitop3:0x7e
    v_bitop3_b32 v{vT}, v{vT}, v{RD+6}, 1 bitop3:0xa8
    v_cmp_ne_u32 vcc, 0, v{vT}
    s_mov_b64 exec, vcc
    s_cbranch_execnz {P1}
    {P1}x:
    s_mov_b64 exec, -1
    """)
    stamp(a, opt, 10)
    a(f"""
    v_add_f32_dpp v{RD}, v{RD}, v{RD} row_ror:8 row_mask:0xf bank_mask:0xf
    v_add_f32_dpp v{RD+1}, v{RD+1}, v{RD+1} row_ror:8 row_mask:0xf bank_mask:0xf
    s_nop 0
    v_add_f32_dpp v{RD}, v{RD}, v{RD} row_ror:4 row_mask:0xf bank_mask:0xf
    v_add_f32_dpp v{RD+1}, v{RD+1}, v{RD+1} row_ror:4 row_mask:0xf bank_mask:0xf
    s_mov_b64 exec, s[{S_MST}:{S_MST+1}]
    v_cvt_pk_bf16_f32 v{vT}, v{RD}, v{RD+1}
    buffer_store_dword v{vT}, v{vMst}, {W}, s{S_MEMN} offen {st}
    """)
    if ring < 64:
        a(f'buffer_store_dword v{RD+4}, v{vMst}, {W}, s{S_MEMO} offen {st}')
    a(f"""
    s_mov_b64 exec, -1
    s_add_u32 s{S_STEP}, s{S_STEP}, 1
    s_mov_b32 s{S_MEMO}, s{S_MEMN}
    s_add_u32 s{S_T0}, s{S_STEP}, 1
    s_and_b32 s{S_T0}, s{S_T0}, {ring-1}
    s_lshl_b32 s{S_T0}, s{S_T0}, 13
    s_add_u32 s{S_MEMN}, s{S_T0}, {WS_MEM}
    s_xor_b32 s{S_PH}, s{S_PH}, 1
    s_add_u32 s{S_KMO}, s{S_KMO}, {opt.get('kms',32*8192)}
    """)
    if opt.get('tpos') == 9: a(f's_sub_u32 s{S_T0}, s{S_KXO}, {32*8192}')
    stamp(a, opt, 11)
    if opt.get('stamps'):
        L = a.label('ns')
        a(f's_waitcnt lgkmcnt(0)\n s_cmp_eq_u32 s{S_STEP}, {opt.get("sstep",43)+1}\n s_cbranch_scc0 {L}')
        for i in range(12): a(f's_mov_b32 s{84+i}, s{S_STAMP+2*i}')
        a(f'{L}:')
    a('s_nop 7\n'*d2)
    p2_loads()
    pre_af()
    a(f's_branch {Ltop}')
    a(f'{Lfin}:')
    a(f'buffer_store_dwordx4 {vr(VMQ,4)}, v{vOr}, {W}, s{S_VMO} offen sc1')
    a('s_waitcnt vmcnt(0) lgkmcnt(0)\n s_barrier')
    if opt.get('kmflag'): opt['kmflag'](a, last=True)
```

```python
NAME = 'parallel_sum__memory_aug_recurrent_mem_tr__mixer_gmlp__prompt_kernel'

KB = 1024; MB = 1 << 20
WS_FLAGS  = 0
WS_INBOX  = 512*KB
WS_MEM    = WS_INBOX + 512*KB
WS_XN     = 2*MB
WS_KM     = 128*MB
WS_KX     = 16*MB
WS_VX     = 32*MB
WS_QX     = 48*MB
WS_OX     = 64*MB
WS_Z1     = 80*MB
WS_Z2     = 84*MB
WS_Z2N    = 88*MB
WS_GZ     = 92*MB
WS_OB     = 96*MB
WS_PART   = 100*MB
WS_SIZE   = 256*MB

class Asm:
    def __init__(self):
        self.l = []
        self.n = 0
    def __call__(self, s):
        for line in s.split('\n'):
            line = line.strip()
            if line:
                self.l.append(('' if line.endswith(':') else '  ') + line)
    def label(self, base):
        self.n += 1
        return f'L_{base}_{self.n}'
    def text(self):
        return '\n'.join(self.l) + '\n'

def vr(a, n=1):
    return f'v{a}' if n == 1 else f'v[{a}:{a+n-1}]'
def ar(a, n=1):
    return f'a{a}' if n == 1 else f'a[{a}:{a+n-1}]'
def sr(a, n=1):
    return f's{a}' if n == 1 else f's[{a}:{a+n-1}]'

F_KVQ  = 0
F_CH   = 8192
F_Z1   = 10240
F_Z2   = 11264
F_GZ   = 12288
F_ATT  = 13312
F_OB   = 14336
F_SPL  = 15360
F_Z2N  = 16384
F_SIZE = 20480
D_ROLE=0; D_TEAM=4; D_QUEUE=8; D_INIT=12; D_LN=64
```

```python
from common import *
from chain import S_WS, S_DBG, S_A, S_B, S_C, S_D, S_XCC, S_WAVE, S_HEAD

W = f's[{S_WS}:{S_WS+3}]'
DBG = f's[{S_DBG}:{S_DBG+3}]'
SA = f's[{S_A}:{S_A+3}]'; SBd = f's[{S_B}:{S_B+3}]'; SC = f's[{S_C}:{S_C+3}]'; SD = f's[{S_D}:{S_D+3}]'
sT = 31
sTASK=40; sIDX=41; sBLK=42; sCT=43; sLDA=44; sLDB=45; sAO=46; sBO=47; sNST=48; sEPI=49
sSTG=50; sDST=51; sM0=52; sI=53; sAK=54; sBK=55; sOUT=56; sOSTR=57; sFLG=58; sWM=59; sWN=60; sSPL=61; sX=62; sY=63
sRET=64
sEX=66
sAUX=68; sAUX2=69; sFIRST=70; sA8=71; sB4=72; sC0=73; sC1=74; sCNT=75
vTID=0; vLN=1; vAe=2; vAo=3; vBs=4; vAr=5; vBr=9; vAc=11; vBc=15; vNXT=17; vE1=18; vE2=19; vZ=20; vT0=21
FR = 32
TK_LDS = 163840-16
STG = 32768

T_LN1=0; T_KV=128; T_WIN=T_KV+1024; T_LN2=T_WIN+224; T_Q=T_LN2+128; T_SP=T_Q+512; T_OB=T_SP+112; T_TAIL=T_OB+64; T_END=T_TAIL+16*48

def srd(a, s, karg, nbytes):
    a(f'''s_load_dwordx2 s[{sT+1}:{sT+2}], s[0:1], {karg}
          s_waitcnt lgkmcnt(0)
          s_mov_b32 s{s}, s{sT+1}
          s_mov_b32 s{s+1}, s{sT+2}
          s_mov_b32 s{s+2}, {nbytes}
          s_mov_b32 s{s+3}, 0x20000''')
def srd_ws(a, s):
    a(f'''s_mov_b32 s{s}, s{S_WS}
          s_mov_b32 s{s+1}, s{S_WS+1}
          s_mov_b32 s{s+2}, {WS_SIZE}
          s_mov_b32 s{s+3}, 0x20000''')

def wait_flag(a, srd_, off_sgpr, target, nd=1, cmp='ge'):
    L = a.label('wf'); Lx = a.label('wfx')
    ld = {1:'buffer_load_dword v21', 2:'buffer_load_dwordx2 v[22:23]', 3:'buffer_load_dwordx3 v[22:24]'}[nd]
    red = {1:'', 2:'v_min_u32 v21, v22, v23', 3:'v_min3_u32 v21, v22, v23, v24'}[nd]
    a(f'''s_mov_b32 s{sT+1}, 0
          {L}:
          s_add_u32 s{sT+1}, s{sT+1}, 1
          s_cmp_gt_u32 s{sT+1}, 0x40000
          s_cbranch_scc1 L_end
          {ld}, v{vZ}, {srd_}, s{off_sgpr} offen sc1
          s_waitcnt vmcnt(0)
          {red}
          s_nop 0
          v_readfirstlane_b32 s{sT}, v21
          s_nop 3
          s_cmp_ge_u32 s{sT}, {target}
          s_cbranch_scc1 {Lx}
          s_sleep 8
          s_branch {L}
          {Lx}:''')

def signal(a, srd_, off_sgpr, atomic):
    L = a.label('sg')
    a(f'''s_waitcnt vmcnt(0)
          s_barrier
          s_cmp_lg_u32 s{S_WAVE}, 0
          s_cbranch_scc1 {L}
          v_mov_b32 v21, 1
          s_mov_b64 exec, 1
          {'buffer_atomic_add v21' if atomic else 'buffer_store_dword v21'}, v{vZ}, {srd_}, s{off_sgpr} offen {'' if atomic else 'sc1'}
          s_mov_b64 exec, -1
          {L}:''')

def gemm_setup_consts(a):
    a(f'''
    v_and_b32 v{vLN}, 63, v{vTID}
    v_mov_b32 v{vZ}, 0
    s_lshr_b32 s{sWM}, s{S_WAVE}, 1
    s_and_b32 s{sWN}, s{S_WAVE}, 1
    v_and_b32 v21, 31, v{vLN}
    v_lshrrev_b32 v22, 5, v{vLN}
    v_bfe_u32 v23, v{vLN}, 1, 3
    v_xor_b32 v22, v22, v23
    v_lshlrev_b32 v24, 7, v21
    v_lshl_add_u32 v24, v22, 4, v24
    s_lshl_b32 s{sT}, s{sWM}, 13
    v_add_u32 v{vAr}, s{sT}, v24
    v_xor_b32 v{vAr+1}, 32, v{vAr}
    v_xor_b32 v{vAr+2}, 64, v{vAr}
    v_xor_b32 v{vAr+3}, 96, v{vAr}
    v_bfe_u32 v21, v{vLN}, 4, 1          ; nh
    v_lshrrev_b32 v22, 5, v{vLN}         ; kh
    v_bfe_u32 v23, v{vLN}, 2, 2          ; r
    v_and_b32 v24, 1, v{vLN}
    v_bfe_u32 v25, v{vLN}, 1, 1
    v_lshl_add_u32 v25, v24, 1, v25      ; 2*(c&1) + (c>>1)
    v_lshl_add_u32 v25, v21, 2, v25
    v_lshl_add_u32 v26, v22, 3, v23
    v_lshlrev_b32 v26, 8, v26
    v_lshl_add_u32 v26, v25, 3, v26
    s_lshl_b32 s{sT}, s{sWN}, 1
    v_xor_b32 v27, s{sT}, v23
    v_lshl_add_u32 v{vBr}, v27, 6, v26
    v_add_u32 v{vBr}, 16384, v{vBr}
    v_xor_b32 v{vBr+1}, 64, v{vBr}
    ''')

def gemm_task_addr(a):
    a(f'''
    v_lshrrev_b32 v21, 3, v{vLN}
    v_mul_lo_u32 v21, v21, s{sLDA}
    v_and_b32 v22, 7, v{vLN}
    v_lshrrev_b32 v23, 4, v{vLN}
    v_xor_b32 v22, v22, v23
    v_lshl_add_u32 v{vAe}, v22, 4, v21
    v_xor_b32 v{vAo}, 64, v{vAe}
    v_lshrrev_b32 v21, 4, v{vLN}
    v_mul_lo_u32 v22, v21, s{sLDB}
    v_and_b32 v23, 15, v{vLN}
    v_lshlrev_b32 v21, 2, v21
    v_xor_b32 v23, v23, v21
    v_lshl_add_u32 v{vBs}, v23, 4, v22
    s_lshl_b32 s{sA8}, s{sLDA}, 3
    s_lshl_b32 s{sB4}, s{sLDB}, 2
    s_lshl_b32 s{sT}, s{sLDA}, 5
    s_mul_i32 s{sT}, s{sT}, s{S_WAVE}
    s_add_u32 s{sAK}, s{sAO}, s{sT}
    s_lshl_b32 s{sT}, s{sLDB}, 4
    s_mul_i32 s{sT}, s{sT}, s{S_WAVE}
    s_add_u32 s{sBK}, s{sBO}, s{sT}
    s_lshl_b32 s{sDST}, s{S_WAVE}, 12
    s_mov_b32 s{sSTG}, 0
    ''')

def dma_list():
    out = []
    for i in range(4):
        out.append([f's_add_u32 m0, s{sDST}, {i*1024}',
                    f's_add_u32 s{sX}, s{sX}, s{sA8}' if i else f's_mov_b32 s{sX}, s{sAK}',
                    f'buffer_load_dwordx4 v{vAo if i&1 else vAe}, {SA}, s{sX} offen sc1 lds'])
    for i in range(4):
        out.append([f's_add_u32 m0, s{sDST}, {16384+i*1024}',
                    f's_add_u32 s{sY}, s{sY}, s{sB4}' if i else f's_mov_b32 s{sY}, s{sBK}',
                    f'buffer_load_dwordx4 v{vBs}, {SBd}, s{sY} offen sc1 lds'])
    out[-1] += [f's_add_u32 s{sAK}, s{sAK}, 128',
                f's_lshl_b32 s{sT}, s{sLDB}, 6', f's_add_u32 s{sBK}, s{sBK}, s{sT}',
                f's_add_u32 s{sDST}, s{sDST}, {STG}', f's_and_b32 s{sDST}, s{sDST}, {4*STG-1}']
    return out

def frag_reads(ks, buf):
    b = FR + 16*buf
    r = []
    for mt in range(2):
        r.append(f'ds_read_b128 {vr(b+4*mt,4)}, v{vAc+ks} offset:{mt*4096}')
    for nt in range(2):
        for rho in range(2):
            r.append(f'ds_read_b64_tr_b16 {vr(b+8+4*nt+2*rho,2)}, v{vBc+nt} offset:{ks*4096+rho*1024}')
    return r

def stage(a, swapped, dma, vm):
    a(f's_waitcnt vmcnt({vm})\n s_barrier')
    for i in range(4): a(f'v_add_u32 v{vAc+i}, s{sSTG}, v{vAr+i}')
    for i in range(2): a(f'v_add_u32 v{vBc+i}, s{sSTG}, v{vBr+i}')
    a('\n'.join(frag_reads(0,0)))
    d = dma_list() if dma else []
    a(f's_add_u32 s{sSTG}, s{sSTG}, {STG}\n s_and_b32 s{sSTG}, s{sSTG}, {4*STG-1}')
    if d: a('\n'.join(d.pop(0)))
    for ks in range(4):
        nxt = frag_reads(ks+1, (ks+1)&1) if ks < 3 else []
        a('\n'.join(nxt))
        a(f's_waitcnt lgkmcnt({len(nxt)})')
        b = FR + 16*(ks&1)
        for mt in range(2):
            for nt in range(2):
                acc = ar(16*(2*mt+nt),16)
                A_, B_ = vr(b+4*mt,4), vr(b+8+4*nt,4)
                if swapped: A_, B_ = B_, A_
                a(f'v_mfma_f32_32x32x16_bf16 {acc}, {A_}, {B_}, {acc}')
                if d and (2*mt+nt) in (0,2): a('\n'.join(d.pop(0)))
    assert not d

def gemm_core(a, swapped, tag):
    for st in range(3):
        for g in dma_list(): a('\n'.join(g))
    for i in range(64): a(f'v_accvgpr_write_b32 a{i}, 0')
    a(f's_sub_u32 s{sI}, s{sNST}, 3')
    L = f'L_gl_{tag}'
    a(f'{L}:')
    stage(a, swapped, True, 16)
    a(f's_sub_u32 s{sI}, s{sI}, 1\n s_cmp_lg_u32 s{sI}, 0\n s_cbranch_scc1 {L}')
    stage(a, swapped, False, 16)
    stage(a, swapped, False, 8)
    stage(a, swapped, False, 0)
    a('s_nop 15\n s_barrier')

def acc_read(a, dst, src, n):
    for i in range(n): a(f'v_accvgpr_read_b32 v{dst+i}, a{src+i}')

def gelu8(a, x, t):
    for i in range(0,8,2): a(f'v_cvt_pk_bf16_f32 v{t+i}, v{x+i}, v{x+i+1}')
    for i in range(0,8,2):
        a(f'v_lshlrev_b32 v{x+i}, 16, v{t+i}\n v_and_b32 v{x+i+1}, 0xffff0000, v{t+i}')
    for i in range(8): a(f'v_mul_f32 v{t+i}, v{x+i}, v{x+i}')
    for i in range(8): a(f'v_fma_f32 v{t+i}, v{t+i}, s{sC0}, 1.0')
    for i in range(8): a(f'v_mul_f32 v{t+i}, v{t+i}, v{x+i}')
    for i in range(8): a(f'v_mul_f32 v{t+i}, s{sC1}, v{t+i}')
    for i in range(8): a(f'v_exp_f32 v{t+i}, v{t+i}')
    for i in range(8): a(f'v_add_f32 v{t+i}, 1.0, v{t+i}')
    for i in range(8): a(f'v_rcp_f32 v{t+i}, v{t+i}')
    a('s_nop 0')
    for i in range(8): a(f'v_mul_f32 v{x+i}, v{x+i}, v{t+i}')

def epi_kq(a):
    a(f'''
    v_bfe_u32 v21, v{vLN}, 4, 1
    v_lshrrev_b32 v22, 5, v{vLN}
    v_and_b32 v23, 15, v{vLN}
    v_lshlrev_b32 v{vE1}, 9, v21
    v_lshl_add_u32 v{vE1}, v22, 8, v{vE1}
    v_lshl_add_u32 v{vE1}, v23, 4, v{vE1}
    s_lshl_b32 s{sT}, s{sWM}, 14
    s_lshl_b32 s{sT+1}, s{sWN}, 12
    s_add_u32 s{sT}, s{sT}, s{sT+1}
    v_add_u32 v{vE1}, s{sT}, v{vE1}
    ''')
    for mt in range(2):
        for nt in range(2):
            for ap in range(2):
                x = 64 + 16*((2*nt+ap)&1); o = x+8
                acc_read(a, x, 16*(2*mt+nt)+8*ap, 8)
                for c in range(4): a(f'v_cvt_pk_bf16_f32 v{o+c}, v{x+c}, v{x+4+c}')
                a(f'ds_write_b128 v{vE1}, {vr(o,4)} offset:{mt*8192+nt*2048+ap*1024}')

def epi_v(a):
    a(f'''
    v_lshrrev_b32 v21, 5, v{vLN}          ; hb
    v_bfe_u32 v22, v{vLN}, 3, 1           ; t = a'&1
    v_bfe_u32 v23, v{vLN}, 4, 1           ; a'>>1
    v_and_b32 v24, 7, v{vLN}              ; 4*hb' + c'
    v_lshl_add_u32 v24, v23, 3, v24       ; i
    v_lshl_add_u32 v24, v21, 4, v24       ; + 16*g (g = hb (+2))
    v_lshlrev_b32 v{vE1}, 4, v24
    v_lshl_add_u32 v{vE1}, v22, 10, v{vE1}
    s_lshl_b32 s{sT}, s{sWM}, 14
    s_lshl_b32 s{sT+1}, s{sWN}, 12
    s_add_u32 s{sT}, s{sT}, s{sT+1}
    v_add_u32 v{vE1}, s{sT}, v{vE1}
    ''')
    for mt in range(2):
        for nt in range(2):
            for g2 in range(2):
                x = 64 + 16*g2; o = x+8
                acc_read(a, x, 16*(2*mt+nt)+4*g2, 4); acc_read(a, x+4, 16*(2*mt+nt)+4*g2+8, 4)
                for c in range(4): a(f'v_cvt_pk_bf16_f32 v{o+c}, v{x+2*c}, v{x+2*c+1}')
                a(f'ds_write_b128 v{vE1}, {vr(o,4)} offset:{mt*8192+nt*2048+g2*512}')

def epi_row(a, gelu):
    a(f'''
    v_and_b32 v21, 31, v{vLN}
    v_lshrrev_b32 v22, 5, v{vLN}
    v_and_b32 v23, 15, v{vLN}
    s_lshl_b32 s{sT}, s{sWN}, 3
    v_or_b32 v22, s{sT}, v22
    v_xor_b32 v22, v22, v23
    v_lshlrev_b32 v{vE1}, 8, v21
    v_lshl_add_u32 v{vE1}, v22, 4, v{vE1}
    s_lshl_b32 s{sT}, s{sWM}, 14
    v_add_u32 v{vE1}, s{sT}, v{vE1}
    ''')
    for nt in range(2):
        for ap in range(2):
            if nt or ap: a(f'v_xor_b32 v{vE2}, {(4*nt+2*ap)*16}, v{vE1}')
            adr = vE2 if (nt or ap) else vE1
            for mt in range(2):
                x = 64 + 24*mt; o = x+8
                acc_read(a, x, 16*(2*mt+nt)+8*ap, 8)
                if gelu: gelu8(a, x, x+8)
                for c in range(4): a(f'v_cvt_pk_bf16_f32 v{o+c}, v{x+2*c}, v{x+2*c+1}')
                a(f'ds_write_b128 v{adr}, {vr(o,4)} offset:{mt*8192}')

def copy_blocks(a):
    a(f'''
    s_waitcnt lgkmcnt(0)
    s_barrier
    v_lshlrev_b32 v21, 4, v{vLN}
    s_lshl_b32 s{sT}, s{S_WAVE}, 13
    v_add_u32 v22, s{sT}, v21
    s_lshl_b32 s{sT}, s{S_WAVE}, 18
    s_add_u32 s{sT}, s{sT}, s{sOUT}
    s_add_u32 s{sT+1}, s{sT}, 4096
    ''')
    for i in range(8): a(f'ds_read_b128 {vr(64+4*i,4)}, v22 offset:{i*1024}')
    for i in range(8):
        a(f's_waitcnt lgkmcnt({7-i})\n buffer_store_dwordx4 {vr(64+4*i,4)}, v21, {W}, s{sT+(i>>2)} offen offset:{(i&3)*1024} sc1')

def unpack(a, d, s):
    a(f'v_lshlrev_b32 v{d}, 16, v{s}\n v_and_b32 v{d+1}, 0xffff0000, v{s}')

def rows_phase(a, mode):
    a(f'''
    v_lshrrev_b32 v21, 4, v{vLN}
    v_and_b32 v22, 15, v{vLN}
    v_mul_lo_u32 v23, v21, s{sOSTR}
    v_lshl_add_u32 v23, v22, 4, v23
    s_lshl_b32 s{sT}, s{S_WAVE}, 5
    s_mul_i32 s{sT+1}, s{sT}, s{sOSTR}
    s_add_u32 s{sX}, s{sOUT}, s{sT+1}
    s_add_u32 s{sY}, s{sAUX}, s{sT+1}
    s_lshl_b32 s{sT+2}, s{sOSTR}, 2
    v_xor_b32 v24, v22, v21
    v_lshlrev_b32 v25, 8, v21
    v_lshl_add_u32 v25, v24, 4, v25
    s_lshl_b32 s{sT+3}, s{S_WAVE}, 13
    v_add_u32 v25, s{sT+3}, v25
    v_lshlrev_b32 v26, 1, v21
    s_lshl_b32 s{sT+3}, s{S_WAVE}, 6
    s_add_u32 s{sT+3}, s{sT+3}, s{sAUX2}
    ''')
    if mode != 'plain':
        a(f's_mov_b32 s{sT+4}, s{sY}\n s_mov_b32 s{sT+5}, s{sX}')
        for i in range(8):
            a(f'buffer_load_dwordx4 {vr(96+4*i,4)}, v23, {W}, s{sT+4} offen sc1\n s_add_u32 s{sT+4}, s{sT+4}, s{sT+2}')
            if mode == 'gate':
                a(f'buffer_load_ushort v{128+i}, v26, {SC}, s{sT+3} offen offset:{i*8}')
            else:
                a(f'buffer_load_dwordx4 {vr(128+4*i,4)}, v23, {SC}, s{sT+5} offen\n s_add_u32 s{sT+5}, s{sT+5}, s{sT+2}')
    a('s_waitcnt lgkmcnt(0)\n s_barrier')
    for i in range(8):
        a(f'v_xor_b32 v27, {(i&3)*64}, v25\n ds_read_b128 {vr(64+4*i,4)}, v27 offset:{i*1024}')
    if mode != 'plain': a('s_waitcnt vmcnt(0)')
    for i in range(8):
        r = 64+4*i
        a(f's_waitcnt lgkmcnt({7-i})')
        if mode == 'gate':
            a(f'v_lshlrev_b32 v{128+i}, 16, v{128+i}')
            for d in range(4):
                unpack(a, 28, r+d); unpack(a, 30, 96+4*i+d)
                a(f'''v_add_f32 v28, v28, v{128+i}
                      v_add_f32 v29, v29, v{128+i}
                      v_cvt_pk_bf16_f32 v{r+d}, v28, v29''')
                unpack(a, 28, r+d)
                a(f'''v_mul_f32 v28, v28, v30
                      v_mul_f32 v29, v29, v31
                      v_cvt_pk_bf16_f32 v{r+d}, v28, v29''')
        if mode == 'final':
            for d in range(4):
                unpack(a, 28, r+d); unpack(a, 30, 128+4*i+d)
                a(f'''v_add_f32 v28, v28, v30
                      v_add_f32 v29, v29, v31
                      v_cvt_pk_bf16_f32 v{r+d}, v28, v29''')
                unpack(a, 28, r+d); unpack(a, 30, 96+4*i+d)
                a(f'''v_add_f32 v28, v28, v30
                      v_add_f32 v29, v29, v31
                      v_cvt_pk_bf16_f32 v{r+d}, v28, v29''')
        if mode == 'final':
            a(f'buffer_store_dwordx4 {vr(r,4)}, v23, {SD}, s{sX} offen')
        else:
            a(f'buffer_store_dwordx4 {vr(r,4)}, v23, {W}, s{sX} offen sc1')
        a(f's_add_u32 s{sX}, s{sX}, s{sT+2}')

def ln_task(a, width, src_srd, sc, tag):
    nch = width//8//16
    stride = 2*width
    a(f'''
    v_lshrrev_b32 v21, 4, v{vLN}
    v_and_b32 v22, 15, v{vLN}
    s_lshl_b32 s{sT}, s{S_WAVE}, 2
    v_add_u32 v21, s{sT}, v21
    s_mov_b32 s{sT}, {stride}
    v_mul_lo_u32 v21, v21, s{sT}
    v_lshl_add_u32 v23, v22, 4, v21
    ''')
    for c in range(nch): a(f'buffer_load_dwordx4 {vr(64+4*c,4)}, v23, {src_srd}, s{sAO} offen offset:{c*256} {sc}')
    a('s_waitcnt vmcnt(0)')
    n = nch*8; X = 96
    for d in range(nch*4): unpack(a, X+2*d, 64+d)
    def red(reg):
        for sh in (8,4,2,1):
            a(f's_nop 1\n v_add_f32_dpp v{reg}, v{reg}, v{reg} row_ror:{sh} row_mask:0xf bank_mask:0xf')
    a(f'v_add_f32 v24, v{X}, v{X+1}')
    for i in range(2,n): a(f'v_add_f32 v24, v24, v{X+i}')
    red(24)
    inv = {512:0x3b000000, 896:0x3a924925}[width]
    a(f'v_mul_f32 v24, {inv:#x}, v24')
    a(f'v_sub_f32 v26, v{X}, v24\n v_mul_f32 v25, v26, v26')
    for i in range(1,n): a(f'v_sub_f32 v26, v{X+i}, v24\n v_fmac_f32 v25, v26, v26')
    red(25)
    a(f'''
    v_mul_f32 v25, {inv:#x}, v25
    v_cvt_pk_bf16_f32 v24, v24, v25
    v_and_b32 v25, 0xffff0000, v24
    v_lshlrev_b32 v24, 16, v24
    v_add_f32 v25, 0x3727c5ac, v25          ; + 1e-5
    v_cvt_pk_bf16_f32 v25, v25, v25
    v_and_b32 v25, 0xffff0000, v25
    v_sqrt_f32 v25, v25
    s_nop 0
    v_cvt_pk_bf16_f32 v25, v25, v25
    v_and_b32 v25, 0xffff0000, v25
    v_rcp_f32 v27, v25
    s_nop 0
    ''')
    for d in range(nch*4):
        x = X+2*d
        a(f'''v_sub_f32 v{x}, v{x}, v24
              v_sub_f32 v{x+1}, v{x+1}, v24
              v_cvt_pk_bf16_f32 v26, v{x}, v{x+1}''')
        unpack(a, x, 26)
        a(f'''v_mul_f32 v28, v{x}, v27
              v_mul_f32 v29, v{x+1}, v27
              v_fma_f32 v{x}, -v28, v25, v{x}
              v_fma_f32 v{x+1}, -v29, v25, v{x+1}
              v_fmac_f32 v28, v{x}, v27
              v_fmac_f32 v29, v{x+1}, v27
              v_cvt_pk_bf16_f32 v{64+d}, v28, v29''')
    for c in range(nch): a(f'buffer_store_dwordx4 {vr(64+4*c,4)}, v23, {W}, s{sOUT} offen offset:{c*256} sc1')

def att_task(a):
    KF=64; QF=96; VF=128; KMF=160; VMF=176; SX=192
    a(f'''
    s_lshl_b32 s{sT}, s{sBLK}, 2
    s_add_u32 s{sT}, s{sT}, s{S_WAVE}          ; seg
    s_lshl_b32 s{sT+1}, s{sT}, 5
    s_add_u32 s{sT+1}, s{sT+1}, s{sCT}
    s_lshl_b32 s{sT+1}, s{sT+1}, 13            ; (seg*32+h)*8192
    s_add_u32 s{sT+2}, s{sT+1}, {WS_KX}
    s_add_u32 s{sT+3}, s{sT+1}, {WS_QX}
    s_add_u32 s{sT+4}, s{sT+1}, {WS_VX}
    s_add_u32 s{sT+5}, s{sT+1}, {WS_KM}
    s_add_u32 s{sT+6}, s{sT+2}, 4096
    s_add_u32 s{sT+7}, s{sT+3}, 4096
    s_add_u32 s{sT+8}, s{sT+4}, 4096
    v_lshrrev_b32 v21, 4, v{vLN}               ; g
    v_and_b32 v22, 15, v{vLN}                  ; i
    v_lshrrev_b32 v23, 1, v21
    v_and_b32 v24, 1, v21
    v_lshlrev_b32 v25, 10, v23
    v_lshl_add_u32 v25, v24, 8, v25
    v_lshl_add_u32 v25, v22, 4, v25
    v_lshlrev_b32 v26, 4, v{vLN}
    v_lshrrev_b32 v27, 2, v22
    v_and_b32 v28, 1, v22
    v_lshl_add_u32 v27, v27, 1, v28
    v_lshlrev_b32 v27, 8, v27
    v_lshl_add_u32 v27, v21, 4, v27
    ''')
    for T in range(2):
        for ks in range(4):
            so = sT+2 if ks < 2 else sT+6
            a(f'buffer_load_dwordx4 {vr(KF+16*T+4*ks,4)}, v25, {W}, s{so} offen offset:{(ks&1)*2048+T*512} sc1')
            so = sT+3 if ks < 2 else sT+7
            a(f'buffer_load_dwordx4 {vr(QF+16*T+4*ks,4)}, v25, {W}, s{so} offen offset:{(ks&1)*2048+T*512} sc1')
    for ks in range(4): a(f'buffer_load_dwordx4 {vr(KMF+4*ks,4)}, v27, {W}, s{sT+5} offen offset:{ks*64} sc1')
    for f in range(8):
        so = sT+4 if f < 4 else sT+8
        a(f'buffer_load_dwordx4 {vr(VF+4*f,4)}, v26, {W}, s{so} offen offset:{(f&3)*1024} sc1')
    a(f's_add_u32 s{sT+5}, s{sT+5}, 2048')
    for w in range(4): a(f'buffer_load_dwordx4 {vr(VMF+4*w,4)}, v26, {W}, s{sT+5} offen offset:{w*1024} sc1')
    a(f'''
    v_lshlrev_b32 v29, 13, v22
    v_lshl_add_u32 v29, v21, 4, v29
    s_lshl_b32 s{sX}, s{sT}, 18
    s_lshl_b32 s{sY}, s{sCT}, 8
    s_add_u32 s{sX}, s{sX}, s{sY}
    s_add_u32 s{sX}, s{sX}, {WS_OX}
    s_mov_b32 s{sC0}, 0x3e0293ee
    v_lshlrev_b32 v30, 2, v21                  ; 4g
    v_mov_b32 v31, 0xff800000
    s_waitcnt vmcnt(12)
    ''')
    for qt in range(2):
        S = SX
        tiles = [0,2] if qt == 0 else [0,1,2]
        for T in tiles:
            for ks in range(4):
                A_ = vr(KF+16*T+4*ks,4) if T < 2 else vr(KMF+4*ks,4)
                c = '0' if ks == 0 else vr(S+4*T,4)
                a(f'v_mfma_f32_16x16x32_bf16 {vr(S+4*T,4)}, {A_}, {vr(QF+16*qt+4*ks,4)}, {c}')
        a('s_nop 7')
        for r in range(4):
            a(f'''v_add_u32 v{SX+28}, {r}, v30
                  v_cmp_le_u32 vcc, v{SX+28}, v22
                  s_nop 1
                  v_cndmask_b32 v{S+4*qt+r}, v31, v{S+4*qt+r}, vcc''')
        vals = [S+4*T+r for T in tiles if T < 2 for r in range(4)] + [S+8, S+9]
        mx, tt = SX+28, SX+29
        a(f'v_max_f32 v{mx}, v{vals[0]}, v{vals[1]}')
        for i in range(2,len(vals),2): a(f'v_max3_f32 v{mx}, v{mx}, v{vals[i]}, v{vals[i+1]}')
        for p in (16,32):
            a(f'v_mov_b32 v{tt}, v{mx}\n s_nop 1\n v_permlane{p}_swap_b32 v{mx}, v{tt}\n v_max_f32 v{mx}, v{mx}, v{tt}')
        a(f'v_mul_f32 v{mx}, s{sC0}, v{mx}')
        for v_ in vals: a(f'v_fma_f32 v{v_}, v{v_}, s{sC0}, -v{mx}')
        for v_ in vals: a(f'v_exp_f32 v{v_}, v{v_}')
        a(f's_nop 0\n v_add_f32 v{mx}, v{vals[0]}, v{vals[1]}')
        for v_ in vals[2:]: a(f'v_add_f32 v{mx}, v{mx}, v{v_}')
        for p in (16,32):
            a(f'v_mov_b32 v{tt}, v{mx}\n s_nop 1\n v_permlane{p}_swap_b32 v{mx}, v{tt}\n v_add_f32 v{mx}, v{mx}, v{tt}')
        a(f'v_rcp_f32 v{mx}, v{mx}\n s_nop 0')
        for v_ in vals: a(f'v_mul_f32 v{v_}, v{v_}, v{mx}')
        P = SX+12; PM = SX+16
        a(f'v_cvt_pk_bf16_f32 v{P}, v{S}, v{S+1}\n v_cvt_pk_bf16_f32 v{P+1}, v{S+2}, v{S+3}')
        if qt: a(f'v_cvt_pk_bf16_f32 v{P+2}, v{S+4}, v{S+5}\n v_cvt_pk_bf16_f32 v{P+3}, v{S+6}, v{S+7}')
        else:  a(f'v_mov_b32 v{P+2}, 0\n v_mov_b32 v{P+3}, 0')
        a(f'v_cvt_pk_bf16_f32 v{PM}, v{S+8}, v{S+9}\n v_mov_b32 v{PM+1}, 0')
        if qt == 0: a('s_waitcnt vmcnt(0)')
        a('s_nop 1')
        O = 224
        for f in range(8):
            a(f'v_mfma_f32_16x16x32_bf16 {vr(O+4*f,4)}, {vr(VF+4*f,4)}, {vr(P,4)}, 0')
        for f in range(8):
            a(f'v_mfma_f32_16x16x16_bf16 {vr(O+4*f,4)}, {vr(VMF+4*(f>>1)+2*(f&1),2)}, {vr(PM,2)}, {vr(O+4*f,4)}')
        a('s_nop 7')
        if qt: a(f's_add_u32 s{sX}, s{sX}, {16*8192}')
        for w in range(4):
            o = SX+20 if w&1 else SX+24
            for c in range(4): a(f'v_cvt_pk_bf16_f32 v{o+c}, v{O+8*w+2*c}, v{O+8*w+2*c+1}')
            a(f'buffer_store_dwordx4 {vr(o,4)}, v29, {W}, s{sX} offen offset:{w*64} sc1')
            a('s_nop 1')
```

```python
import sys
from common import *
import chain as C
from chain import S_WS, S_DBG, S_A, S_B, S_C, S_D, S_XCC, S_WAVE, S_HEAD, SH
from worker import *

HDR = open('parallel_sum__memory_aug_recurrent_mem_tr__mixer_gmlp__prompt.s.ref').read().split('; @launch')[0]

def bcast_ticket(a, vsrc, sdst):
    L = a.label('bt')
    a(f'''s_cmp_lg_u32 s{S_WAVE}, 0
          v_mov_b32 v21, {TK_LDS}
          s_cbranch_scc1 {L}
          s_mov_b64 exec, 1
          ds_write_b32 v21, v{vsrc}
          s_mov_b64 exec, -1
          s_waitcnt lgkmcnt(0)
          {L}:
          s_barrier
          ds_read_b32 v22, v21
          s_waitcnt lgkmcnt(0)
          v_readfirstlane_b32 s{sdst}, v22
          s_barrier''')

def atomic_ret(a, vdst, off, val=1, srd_=None, soff='0'):
    L = a.label('ar')
    a(f'''s_cmp_lg_u32 s{S_WAVE}, 0
          s_cbranch_scc1 {L}
          v_mov_b32 v{vdst}, {val}
          v_mov_b32 v21, {off}
          s_mov_b64 exec, 1
          buffer_atomic_add v{vdst}, v21, {srd_ or DBG}, {soff} offen sc0
          s_mov_b64 exec, -1
          {L}:''')

def gen(opt={}):
    a = Asm()
    a(f'''
    s_cmp_ge_u32 s2, 256
    s_cbranch_scc1 L_end
    s_load_dwordx4 s[32:35], s[0:1], 104
    s_getreg_b32 s{S_XCC}, hwreg(HW_REG_XCC_ID)
    s_and_b32 s{S_XCC}, s{S_XCC}, 15
    v_lshrrev_b32 v1, 6, v0
    v_mov_b32 v{vNXT}, 0
    v_readfirstlane_b32 s{S_WAVE}, v1
    s_waitcnt lgkmcnt(0)
    s_mov_b32 s{S_DBG}, s32
    s_mov_b32 s{S_DBG+1}, s33
    s_mov_b32 s{S_DBG+2}, 256
    s_mov_b32 s{S_DBG+3}, 0x20000
    s_mov_b32 s{S_WS}, s34
    s_mov_b32 s{S_WS+1}, s35
    s_mov_b32 s{S_WS+2}, {WS_SIZE}
    s_mov_b32 s{S_WS+3}, 0x20000
    s_cmp_lg_u32 s{S_XCC}, {opt.get('team_xcc',0)}
    s_cbranch_scc1 L_worker
    L_tryrole:
    ''')
    atomic_ret(a, vNXT, D_ROLE)
    a('s_waitcnt vmcnt(0)')
    bcast_ticket(a, vNXT, S_HEAD)
    a(f'''
    s_cmp_lt_u32 s{S_HEAD}, 32
    s_cbranch_scc1 L_chain
    s_branch L_worker_noq
    ''')
    a('L_worker:')
    a(f's_mov_b32 s{sFIRST}, 1\n s_branch L_winit')
    a('L_worker_noq:')
    a(f's_mov_b32 s{sFIRST}, 0')
    a('L_winit:')
    for s in (S_A,S_B,S_C,S_D): srd_ws(a, s)
    gemm_setup_consts(a)
    a(f's_mov_b32 s{sCNT}, 0')
    atomic_ret(a, vNXT, D_QUEUE)
    a('L_next:')
    a('s_waitcnt vmcnt(0)')
    bcast_ticket(a, vNXT, sTASK)
    a(f's_cmp_ge_u32 s{sTASK}, {T_END}\n s_cbranch_scc1 L_wdone')
    a(f's_cmp_eq_u32 s{sFIRST}, 1\n s_cbranch_scc1 L_nopf')
    atomic_ret(a, vNXT, D_QUEUE)
    a('L_nopf:')
    a(f's_cmp_lt_u32 s{sTASK}, {T_KV}\n s_cbranch_scc1 L_ln1')
    a(f's_cmp_eq_u32 s{sCNT}, 1\n s_cbranch_scc1 L_initok\n s_mov_b32 s{sFLG}, {D_INIT}')
    wait_flag(a, DBG, sFLG, 1)
    a(f's_mov_b32 s{sCNT}, 1\n L_initok:')
    a(f'''
    s_cmp_lt_u32 s{sTASK}, {T_WIN}
    s_cbranch_scc1 L_kv
    s_cmp_lt_u32 s{sTASK}, {T_LN2}
    s_cbranch_scc1 L_win
    s_cmp_lt_u32 s{sTASK}, {T_Q}
    s_cbranch_scc1 L_ln2
    s_cmp_lt_u32 s{sTASK}, {T_SP}
    s_cbranch_scc1 L_q
    s_cmp_lt_u32 s{sTASK}, {T_OB}
    s_cbranch_scc1 L_sp
    s_cmp_lt_u32 s{sTASK}, {T_TAIL}
    s_cbranch_scc1 L_ob
    s_branch L_tail
    ''')
    def wait_ln():
        a(f's_lshl_b32 s{sFLG}, s{sBLK}, 2\n s_add_u32 s{sFLG}, s{sFLG}, {D_LN}')
        wait_flag(a, DBG, sFLG, 8)
    def a_xn():
        srd_ws(a, S_A)
        a(f's_lshl_b32 s{sAO}, s{sBLK}, 17\n s_add_u32 s{sAO}, s{sAO}, {WS_XN}\n s_mov_b32 s{sLDA}, 1024\n s_mov_b32 s{sNST}, 8')
    a('L_ln1:')
    a(f's_cmp_lg_u32 s{sTASK}, 0\n s_cbranch_scc1 L_ln1b')
    a(f'''v_mov_b32 v24, 0
          v_mov_b32 v25, 0
          v_mov_b32 v26, 0
          v_mov_b32 v27, 0
          v_lshlrev_b32 v21, 4, v{vTID}
          v_lshlrev_b32 v22, 13, v{vTID}''')
    for i in range(F_SIZE//4096):
        a(f's_mov_b32 s{sT}, {WS_FLAGS + i*4096}\n buffer_store_dwordx4 v[24:27], v21, {W}, s{sT} offen sc1')
    for i in range(8):
        a(f's_mov_b32 s{sT}, {WS_KM + 6144 + i*256*8192}\n buffer_store_dword v24, v22, {W}, s{sT} offen sc1')
    a(f's_mov_b32 s{sFLG}, {D_INIT}')
    signal(a, DBG, sFLG, False)
    a('L_ln1b:')
    srd(a, S_A, 0, 2*MB)
    a(f's_lshl_b32 s{sAO}, s{sTASK}, 14\n s_add_u32 s{sOUT}, s{sAO}, {WS_XN}')
    ln_task(a, 512, SA, '', 'a')
    a(f's_lshr_b32 s{sFLG}, s{sTASK}, 3\n s_lshl_b32 s{sFLG}, s{sFLG}, 2\n s_add_u32 s{sFLG}, s{sFLG}, {D_LN}')
    signal(a, DBG, sFLG, True)
    a('s_branch L_done')
    a('L_ln2:')
    a(f'''s_sub_u32 s{sIDX}, s{sTASK}, {T_LN2}
          s_lshr_b32 s{sFLG}, s{sIDX}, 3
          s_lshl_b32 s{sFLG}, s{sFLG}, 6
          s_add_u32 s{sFLG}, s{sFLG}, {WS_FLAGS+F_Z2}''')
    wait_flag(a, W, sFLG, 7)
    a(f'''s_mul_i32 s{sAO}, s{sIDX}, {16*1792}
          s_add_u32 s{sOUT}, s{sAO}, {WS_Z2N}
          s_add_u32 s{sAO}, s{sAO}, {WS_Z2}''')
    ln_task(a, 896, W, 'sc1', 'b')
    a(f's_mov_b32 s{sFLG}, {WS_FLAGS+F_Z2N}')
    signal(a, W, sFLG, True)
    a('s_branch L_done')
    a('L_kv:')
    a(f'''s_sub_u32 s{sIDX}, s{sTASK}, {T_KV}
          s_lshr_b32 s{sBLK}, s{sIDX}, 6
          s_bfe_u32 s{sCT}, s{sIDX}, 0x50001
          s_lshl_b32 s{sBO}, s{sCT}, 8
          s_mov_b32 s{sLDB}, 8192
          s_lshl_b32 s{sOUT}, s{sBLK}, 7
          s_add_u32 s{sOUT}, s{sOUT}, s{sCT}
          s_lshl_b32 s{sOUT}, s{sOUT}, 13
          s_add_u32 s{sAUX}, s{sOUT}, {WS_KM+6144}''')
    a_xn(); wait_ln()
    a(f's_bitcmp1_b32 s{sIDX}, 0\n s_cbranch_scc1 L_v')
    srd(a, S_B, 24, 4*MB)
    a(f's_add_u32 s{sOUT}, s{sOUT}, {WS_KX}\n s_mov_b32 s{sEPI}, 0\n s_branch L_gs')
    a('L_v:')
    srd(a, S_B, 32, 4*MB)
    a(f's_add_u32 s{sOUT}, s{sOUT}, {WS_VX}')
    gemm_task_addr(a)
    gemm_core(a, False, 'n')
    epi_v(a)
    a('L_kvout:')
    copy_blocks(a)
    a(f'''s_waitcnt vmcnt(0)
          s_barrier
          s_cmp_lg_u32 s{S_WAVE}, 0
          s_cbranch_scc1 L_done
          v_mov_b32 v21, 1
          v_lshlrev_b32 v22, 18, v{vLN}
          s_mov_b64 exec, 15
          buffer_atomic_add v21, v22, {W}, s{sAUX} offen
          s_mov_b64 exec, -1
          s_branch L_done''')
    a('L_q:')
    a(f'''s_sub_u32 s{sIDX}, s{sTASK}, {T_Q}
          s_lshr_b32 s{sBLK}, s{sIDX}, 5
          s_and_b32 s{sCT}, s{sIDX}, 31
          s_lshl_b32 s{sBO}, s{sCT}, 8
          s_mov_b32 s{sLDB}, 8192
          s_lshl_b32 s{sOUT}, s{sBLK}, 7
          s_add_u32 s{sOUT}, s{sOUT}, s{sCT}
          s_lshl_b32 s{sOUT}, s{sOUT}, 13
          s_add_u32 s{sOUT}, s{sOUT}, {WS_QX}''')
    a_xn(); wait_ln()
    srd(a, S_B, 16, 4*MB)
    a(f's_mov_b32 s{sEPI}, 1\n s_branch L_gs')
    a('L_win:')
    a(f'''s_sub_u32 s{sIDX}, s{sTASK}, {T_WIN}
          s_mul_i32 s{sBLK}, s{sIDX}, 4682
          s_lshr_b32 s{sBLK}, s{sBLK}, 16            ; idx / 14
          s_mul_i32 s{sT}, s{sBLK}, 14
          s_sub_u32 s{sCT}, s{sIDX}, s{sT}
          s_sub_u32 s{sCT}, 13, s{sCT}
          s_lshl_b32 s{sBO}, s{sCT}, 8
          s_mov_b32 s{sLDB}, 3584
          s_mul_i32 s{sOUT}, s{sBLK}, {128*1792}
          s_add_u32 s{sOUT}, s{sOUT}, s{sBO}
          s_lshl_b32 s{sAUX2}, s{sBLK}, 6
          s_cmp_lt_u32 s{sCT}, 7
          s_cselect_b32 s{sT}, 0, {WS_Z2 - 7*256 - WS_Z1}
          s_add_u32 s{sOUT}, s{sOUT}, s{sT}
          s_add_u32 s{sOUT}, s{sOUT}, {WS_Z1}
          s_cmp_lt_u32 s{sCT}, 7
          s_cselect_b32 s{sT}, 0, {F_Z2-F_Z1}
          s_add_u32 s{sSPL}, s{sAUX2}, s{sT}
          s_add_u32 s{sSPL}, s{sSPL}, {WS_FLAGS+F_Z1}
          s_mov_b32 s{sOSTR}, 1792''')
    a_xn(); wait_ln()
    srd(a, S_B, 64, 512*3584)
    a(f's_mov_b32 s{sEPI}, 2\n s_branch L_gs')
    a('L_sp:')
    a(f'''s_sub_u32 s{sIDX}, s{sTASK}, {T_SP}
          s_mul_i32 s{sBLK}, s{sIDX}, 9363
          s_lshr_b32 s{sBLK}, s{sBLK}, 16            ; idx / 7
          s_mul_i32 s{sT}, s{sBLK}, 7
          s_sub_u32 s{sCT}, s{sIDX}, s{sT}
          s_mov_b32 s{sFLG}, {WS_FLAGS+F_Z2N}''')
    wait_flag(a, W, sFLG, 128)
    a(f's_lshl_b32 s{sFLG}, s{sBLK}, 6\n s_add_u32 s{sSPL}, s{sFLG}, {WS_FLAGS+F_GZ}\n s_add_u32 s{sFLG}, s{sFLG}, {WS_FLAGS+F_Z1}')
    wait_flag(a, W, sFLG, 7)
    srd(a, S_A, 72, 8*MB); srd_ws(a, S_B); srd(a, S_C, 80, 4096)
    a(f'''s_lshl_b32 s{sAO}, s{sBLK}, 19
          s_mov_b32 s{sLDA}, 4096
          s_lshl_b32 s{sT}, s{sCT}, 8
          s_add_u32 s{sBO}, s{sT}, {WS_Z2N}
          s_mov_b32 s{sLDB}, 1792
          s_mov_b32 s{sNST}, 32
          s_mul_i32 s{sOUT}, s{sBLK}, {128*1792}
          s_add_u32 s{sOUT}, s{sOUT}, s{sT}
          s_add_u32 s{sAUX}, s{sOUT}, {WS_Z1}
          s_add_u32 s{sOUT}, s{sOUT}, {WS_GZ}
          s_lshl_b32 s{sAUX2}, s{sBLK}, 8
          s_mov_b32 s{sOSTR}, 1792
          s_mov_b32 s{sEPI}, 3
          s_branch L_gs''')
    a('L_ob:')
    a(f'''s_sub_u32 s{sIDX}, s{sTASK}, {T_OB}
          s_lshr_b32 s{sBLK}, s{sIDX}, 2
          s_and_b32 s{sCT}, s{sIDX}, 3
          s_lshl_b32 s{sFLG}, s{sBLK}, 6
          s_add_u32 s{sFLG}, s{sFLG}, {WS_FLAGS+F_GZ}''')
    wait_flag(a, W, sFLG, 7)
    srd_ws(a, S_A); srd(a, S_B, 88, 896*1024)
    a(f'''s_mul_i32 s{sAO}, s{sBLK}, {128*1792}
          s_add_u32 s{sAO}, s{sAO}, {WS_GZ}
          s_mov_b32 s{sLDA}, 1792
          s_lshl_b32 s{sBO}, s{sCT}, 8
          s_mov_b32 s{sLDB}, 1024
          s_mov_b32 s{sNST}, 14
          s_lshl_b32 s{sOUT}, s{sBLK}, 17
          s_add_u32 s{sOUT}, s{sOUT}, s{sBO}
          s_add_u32 s{sOUT}, s{sOUT}, {WS_OB}
          s_mov_b32 s{sOSTR}, 1024
          s_lshl_b32 s{sSPL}, s{sIDX}, 4
          s_add_u32 s{sSPL}, s{sSPL}, {WS_FLAGS+F_OB}
          s_mov_b32 s{sEPI}, 4
          s_branch L_gs''')
    a('L_tail:')
    a(f'''s_sub_u32 s{sIDX}, s{sTASK}, {T_TAIL}
          s_mul_i32 s{sBLK}, s{sIDX}, 1366
          s_lshr_b32 s{sBLK}, s{sBLK}, 16            ; idx / 48
          s_mul_i32 s{sT}, s{sBLK}, 48
          s_sub_u32 s{sCT}, s{sIDX}, s{sT}
          s_cmp_ge_u32 s{sCT}, 32
          s_cbranch_scc1 L_g3
          s_lshl_b32 s{sFLG}, s{sBLK}, 5
          s_add_u32 s{sFLG}, s{sFLG}, s{sCT}
          s_lshl_b32 s{sFLG}, s{sFLG}, 4
          s_add_u32 s{sFLG}, s{sFLG}, {WS_FLAGS+F_KVQ}''')
    wait_flag(a, W, sFLG, 1)
    a(f'''s_lshl_b32 s{sFLG}, s{sCT}, 6
          s_add_u32 s{sFLG}, s{sFLG}, {WS_FLAGS+F_CH}
          s_lshl_b32 s{sAUX}, s{sBLK}, 2
          s_add_u32 s{sAUX}, s{sAUX}, 4''')
    wait_flag(a, W, sFLG, f's{sAUX}')
    att_task(a)
    a(f'''s_lshl_b32 s{sFLG}, s{sBLK}, 2
          s_lshr_b32 s{sT}, s{sCT}, 3
          s_add_u32 s{sFLG}, s{sFLG}, s{sT}
          s_lshl_b32 s{sFLG}, s{sFLG}, 4
          s_add_u32 s{sFLG}, s{sFLG}, {WS_FLAGS+F_ATT}''')
    signal(a, W, sFLG, True)
    a('s_branch L_done')
    a('L_g3:')
    a(f'''s_sub_u32 s{sCT}, s{sCT}, 32
          s_lshr_b32 s{sSPL}, s{sCT}, 2
          s_and_b32 s{sCT}, s{sCT}, 3
          s_lshl_b32 s{sFLG}, s{sBLK}, 2
          s_add_u32 s{sFLG}, s{sFLG}, s{sSPL}
          s_lshl_b32 s{sFLG}, s{sFLG}, 4
          s_add_u32 s{sFLG}, s{sFLG}, {WS_FLAGS+F_ATT}''')
    wait_flag(a, W, sFLG, 8)
    srd_ws(a, S_A); srd(a, S_B, 40, 4*MB); srd(a, S_C, 0, 2*MB); srd(a, S_D, 96, 2*MB)
    a(f'''s_lshl_b32 s{sAO}, s{sBLK}, 20
          s_lshl_b32 s{sT}, s{sSPL}, 11
          s_add_u32 s{sAO}, s{sAO}, s{sT}
          s_add_u32 s{sAO}, s{sAO}, {WS_OX}
          s_mov_b32 s{sLDA}, 8192
          s_lshl_b32 s{sBO}, s{sSPL}, 20
          s_lshl_b32 s{sT}, s{sCT}, 8
          s_add_u32 s{sBO}, s{sBO}, s{sT}
          s_mov_b32 s{sLDB}, 1024
          s_mov_b32 s{sNST}, 16
          s_lshl_b32 s{sOUT}, s{sBLK}, 17
          s_add_u32 s{sOUT}, s{sOUT}, s{sT}
          s_add_u32 s{sAUX}, s{sOUT}, {WS_OB}
          s_mov_b32 s{sOSTR}, 1024
          s_mov_b32 s{sEPI}, 5''')
    a('L_gs:')
    gemm_task_addr(a)
    gemm_core(a, True, 's')
    a(f's_cmp_ge_u32 s{sEPI}, 2\n s_cbranch_scc1 L_e2')
    epi_kq(a)
    a(f's_cmp_eq_u32 s{sEPI}, 0\n s_cbranch_scc1 L_kvout')
    copy_blocks(a)
    a(f's_lshl_b32 s{sFLG}, s{sIDX}, 4\n s_add_u32 s{sFLG}, s{sFLG}, {WS_FLAGS+F_KVQ}')
    signal(a, W, sFLG, False)
    a('s_branch L_done')
    a('L_e2:')
    a(f's_cmp_lg_u32 s{sEPI}, 2\n s_cbranch_scc1 L_e3')
    a(f's_mov_b32 s{sC0}, 0x3d372713\n s_mov_b32 s{sC1}, 0xc0135761')
    epi_row(a, True)
    a('L_plain:')
    rows_phase(a, 'plain')
    signal(a, W, sSPL, True)
    a('s_branch L_done')
    a('L_e3:')
    a(f's_cmp_eq_u32 s{sEPI}, 5\n s_cbranch_scc1 L_e5')
    epi_row(a, False)
    a(f's_cmp_eq_u32 s{sEPI}, 4\n s_cbranch_scc1 L_plain')
    rows_phase(a, 'gate')
    signal(a, W, sSPL, True)
    a('s_branch L_done')
    a('L_e5:')
    a(f'''s_lshl_b32 s{sIDX}, s{sBLK}, 2
          s_add_u32 s{sIDX}, s{sIDX}, s{sCT}
          s_lshl_b32 s{sX}, s{sIDX}, 18
          s_lshl_b32 s{sT}, s{S_WAVE}, 14
          s_add_u32 s{sX}, s{sX}, s{sT}
          s_add_u32 s{sX}, s{sX}, {WS_PART}
          s_lshl_b32 s{sT}, s{sSPL}, 16
          s_add_u32 s{sY}, s{sX}, s{sT}
          v_lshlrev_b32 v23, 4, v{vLN}''')
    for q in range(16):
        a(f'buffer_store_dwordx4 {ar(4*q,4)}, v23, {W}, s{sY} offen offset:{(q&3)*1024} sc1')
        if q & 3 == 3: a(f's_add_u32 s{sY}, s{sY}, 4096')
    a(f's_waitcnt vmcnt(0)\n s_barrier\n s_lshl_b32 s{sFLG}, s{sIDX}, 4\n s_add_u32 s{sFLG}, s{sFLG}, {WS_FLAGS+F_SPL}')
    atomic_ret(a, 24, 0, 1, W, f's{sFLG}')
    a('s_waitcnt vmcnt(0)')
    bcast_ticket(a, 24, sT+8)
    a(f's_cmp_lg_u32 s{sT+8}, 3\n s_cbranch_scc1 L_done')
    a(f's_lshl_b32 s{sFLG}, s{sIDX}, 4\n s_add_u32 s{sFLG}, s{sFLG}, {WS_FLAGS+F_OB}')
    wait_flag(a, W, sFLG, 1)
    a(f'v_lshlrev_b32 v23, 4, v{vLN}')
    for half in range(2):
        for sp in range(4):
            for q in range(8):
                if q % 4 == 0: a(f's_add_u32 s{sY}, s{sX}, {sp*65536 + half*8192 + (q>>2)*4096}')
                a(f'buffer_load_dwordx4 {vr(64+32*sp+4*q,4)}, v23, {W}, s{sY} offen offset:{(q&3)*1024} sc1')
        a('s_waitcnt vmcnt(0)')
        for i in range(32):
            a(f'''v_add_f32 v{64+i}, v{64+i}, v{96+i}
                  v_add_f32 v{128+i}, v{128+i}, v{160+i}
                  v_add_f32 v{64+i}, v{64+i}, v{128+i}
                  v_accvgpr_write_b32 a{32*half+i}, v{64+i}''')
    a('s_nop 1')
    epi_row(a, False)
    rows_phase(a, 'final')
    a('s_waitcnt vmcnt(0)\n s_barrier')
    a('L_done:')
    a(f's_cmp_eq_u32 s{sFIRST}, 1\n s_cbranch_scc0 L_next')
    a(f'''s_mov_b32 s{sFIRST}, 0
          buffer_load_dword v21, v{vZ}, {DBG}, 0 offen sc1
          s_waitcnt vmcnt(0)''')
    a(f'v_mov_b32 v24, v21')
    bcast_ticket(a, 24, sT+8)
    a(f's_cmp_lt_u32 s{sT+8}, 32\n s_cbranch_scc1 L_tryrole')
    atomic_ret(a, vNXT, D_QUEUE)
    a('s_branch L_next')
    a('L_wdone:')
    a(f's_cmp_eq_u32 s{sFIRST}, 1\n s_cbranch_scc1 L_done\n s_branch L_end')

    a('L_chain:')
    copt = dict(opt)
    Wc = W
    def kvwait(a, first):
        if first:
            L = a.label('kw')
            a(f'''s_lshl_b32 s{C.S_T0}, s{S_HEAD}, 13
                  s_add_u32 s{C.S_T0}, s{C.S_T0}, {WS_KM+6144}
                  s_mov_b32 s{C.S_T0+1}, {D_INIT}
                  s_mov_b32 s{C.S_T0+3}, 0
                  {L}:
                  s_add_u32 s{C.S_T0+3}, s{C.S_T0+3}, 1
                  s_cmp_gt_u32 s{C.S_T0+3}, 0x40000
                  s_cbranch_scc1 L_end
                  buffer_load_dword v16, v{C.PMZ+1}, {DBG}, s{C.S_T0+1} offen sc1
                  s_waitcnt vmcnt(0)
                  buffer_load_dword v17, v{C.PMZ+1}, {Wc}, s{C.S_T0} offen sc1
                  s_waitcnt vmcnt(0)
                  v_lshlrev_b32 v16, 1, v16
                  v_min_u32 v16, v16, v17
                  s_nop 0
                  v_readfirstlane_b32 s{C.S_T0+2}, v16
                  s_nop 3
                  s_cmp_lg_u32 s{C.S_T0+2}, 2
                  s_cbranch_scc1 {L}
                  v_mov_b32 v{C.vT+1}, 2''')
        else:
            L = a.label('kw'); Lx = a.label('kwx')
            a(f'''v_readlane_b32 s{C.S_T0}, v{C.vT+1}, 32
                  s_cmp_ge_u32 s{C.S_STEP}, 62
                  s_cbranch_scc1 {Lx}
                  s_cmp_eq_u32 s{C.S_T0}, 2
                  s_cbranch_scc1 {Lx}
                  s_sub_u32 s{C.S_T0+1}, s{C.S_KXO}, {32*8192}
                  s_mov_b32 exec_lo, 0
                  {L}:
                  s_add_u32 s{C.S_TO}, s{C.S_TO}, 16
                  s_cmp_gt_u32 s{C.S_TO}, 0x400000
                  s_cbranch_scc1 L_end
                  buffer_load_dword v{C.vT+1}, v{C.vTch}, {Wc}, s{C.S_T0+1} offen sc1
                  s_waitcnt vmcnt(0)
                  v_readlane_b32 s{C.S_T0}, v{C.vT+1}, 32
                  s_nop 3
                  s_cmp_lg_u32 s{C.S_T0}, 2
                  s_cbranch_scc1 {L}
                  s_mov_b64 exec, -1
                  {Lx}:''')
    def kmflag(a, last):
        L = a.label('kf')
        if last:
            a(f's_mov_b32 s{C.S_T0}, 64\n s_cmp_lg_u32 s{S_WAVE}, 0\n s_cbranch_scc1 {L}')
        else:
            a(f'''s_sub_u32 s{C.S_T0}, s{C.S_STEP}, 1
                  s_and_b32 s{C.S_T0+1}, s{C.S_T0}, 3
                  s_or_b32 s{C.S_T0+1}, s{C.S_T0+1}, s{S_WAVE}
                  s_cmp_lg_u32 s{C.S_T0+1}, 0
                  s_cbranch_scc1 {L}''')
        a(f'''s_lshl_b32 s{C.S_T0+1}, s{S_HEAD}, 6
              s_add_u32 s{C.S_T0+1}, s{C.S_T0+1}, {WS_FLAGS+F_CH}
              v_mov_b32 v{C.vT}, s{C.S_T0}
              s_mov_b64 exec, 1
              buffer_store_dword v{C.vT}, v{C.PMZ+1}, {Wc}, s{C.S_T0+1} offen sc1
              s_mov_b64 exec, -1
              {L}:''')
    copt['kvwait'] = kvwait; copt['kmflag'] = kmflag
    C.chain_setup(a, copt)
    a(f'''
    s_barrier
    s_cmp_eq_u32 s{S_XCC}, {opt.get('team_xcc',0)}
    s_cselect_b32 s{C.S_T0}, 1, 0x10001
    v_mov_b32 v16, s{C.S_T0}
    v_mov_b32 v17, {D_TEAM}
    s_mov_b32 s{C.S_T0+3}, 0
    s_cmp_lg_u32 s{S_WAVE}, 0
    s_cbranch_scc1 L_cspin
    s_mov_b64 exec, 1
    buffer_atomic_add v16, v17, {DBG}, 0 offen
    s_mov_b64 exec, -1
    L_cspin:
    s_add_u32 s{C.S_T0+3}, s{C.S_T0+3}, 1
    s_cmp_gt_u32 s{C.S_T0+3}, 0x40000
    s_cbranch_scc1 L_end
    buffer_load_dword v16, v17, {DBG}, 0 offen sc1
    s_waitcnt vmcnt(0)
    v_readfirstlane_b32 s{C.S_T0}, v16
    s_nop 3
    s_and_b32 s{C.S_T0+1}, s{C.S_T0}, 0xffff
    s_cmp_lt_u32 s{C.S_T0+1}, 32
    s_cbranch_scc1 L_cspin
    s_mov_b32 s59, s{C.S_T0}
    ''')
    C.chain_masks(a)
    a(f'''buffer_load_dwordx4 v[16:19], v{C.vOr}, {W}, s{C.S_INL} offen sc1
          buffer_load_dwordx4 v[20:23], v{C.vOr}, {W}, s{C.S_INL} offen offset:1024 sc1''')
    for s in range(1, C.RING):
        a(f'''s_mov_b32 s{C.S_T0}, {WS_MEM + s*8192}
              buffer_load_dwordx4 v[16:19], v{C.vMld}, {W}, s{C.S_T0} offen sc1
              buffer_load_dwordx4 v[20:23], v{C.vMld}, {W}, s{C.S_T0} offen offset:1024 sc1''')
    a(f's_waitcnt vmcnt(0)\n s_cmp_gt_u32 s59, 0xffff\n s_cbranch_scc1 L_slow')
    C.chain_loop(a, copt, '', 'f')
    a('s_branch L_end\n L_slow:')
    C.chain_loop(a, copt, 'sc1', 's')
    a('L_end:\n s_endpgm')
    head = HDR + f'''; @launch grid=(256,1,1) block=(256,1,1) lds=163840
.amdgcn_target "amdgcn-amd-amdhsa--gfx950"
.text
.globl {NAME}
.p2align 8
.type {NAME},@function
{NAME}:
'''
    tail = f'''.section .rodata,"a"
.p2align 6
.amdhsa_kernel {NAME}
  .amdhsa_next_free_vgpr 512
  .amdhsa_next_free_sgpr 102
  .amdhsa_accum_offset 256
  .amdhsa_group_segment_fixed_size 0
  .amdhsa_kernarg_size 120
  .amdhsa_user_sgpr_count 2
  .amdhsa_user_sgpr_kernarg_segment_ptr 1
  .amdhsa_system_sgpr_workgroup_id_x 1
.end_amdhsa_kernel
'''
    return head + a.text() + tail

if __name__ == '__main__':
    out = sys.argv[1] if len(sys.argv) > 1 else 'parallel_sum__memory_aug_recurrent_mem_tr__mixer_gmlp__prompt.s'
    open(out,'w').write(gen({}))
```

```python
from common import *
from chain import S_WS, S_DBG, S_A, S_B, S_C, S_D, S_XCC, S_WAVE, S_HEAD

W = f's[{S_WS}:{S_WS+3}]'
DBG = f's[{S_DBG}:{S_DBG+3}]'
SA = f's[{S_A}:{S_A+3}]'; SBd = f's[{S_B}:{S_B+3}]'; SC = f's[{S_C}:{S_C+3}]'; SD = f's[{S_D}:{S_D+3}]'
sT = 31
sTASK=40; sIDX=41; sBLK=42; sCT=43; sLDA=44; sLDB=45; sAO=46; sBO=47; sNST=48; sEPI=49
sSTG=50; sDST=51; sM0=52; sI=53; sAK=54; sBK=55; sOUT=56; sOSTR=57; sFLG=58; sWM=59; sWN=60; sSPL=61; sX=62; sY=63
sRET=64
sEX=66
sAUX=68; sAUX2=69; sFIRST=70; sA8=71; sB4=72; sC0=73; sC1=74; sCNT=75
sNT=82; sLS=83; sLT=84; sA0=85; sB0=86; sWC=87; sPEND=88; sDOUT=89; sDFLG=90; sLNM=91; sJ=92; sPK=93; sDA=94; sDB=95; sPH=96; sQ=97; sHOME=98; sTB=100
vTID=0; vLN=1; vAe=2; vAo=3; vBs=4; vAr=5; vBr=9; vAc=11; vBc=15; vNXT=17; vE1=18; vE2=19; vZ=20; vT0=21
FR = 32
TK_LDS = 0
EP = 131072
STG = 32768

T_LN1=0; T_KV=128; T_WIN=T_KV+256; T_Q=T_WIN+64; T_LN2=T_Q+128; T_SP=T_LN2+128; T_OB=T_SP+112; T_TAIL=T_OB+64; T_END=T_TAIL+16*48

def srd(a, s, karg, nbytes):
    a(f'''s_load_dwordx2 s[{sT+1}:{sT+2}], s[0:1], {karg}
          s_waitcnt lgkmcnt(0)
          s_mov_b32 s{s}, s{sT+1}
          s_mov_b32 s{s+1}, s{sT+2}
          s_mov_b32 s{s+2}, {nbytes}
          s_mov_b32 s{s+3}, 0x20000''')
def srd_ws(a, s):
    a(f'''s_mov_b32 s{s}, s{S_WS}
          s_mov_b32 s{s+1}, s{S_WS+1}
          s_mov_b32 s{s+2}, {WS_SIZE}
          s_mov_b32 s{s+3}, 0x20000''')

def wait_flag(a, srd_, off_sgpr, target, sleep=8, bar=True):
    L = a.label('wf'); Lx = a.label('wfx')
    a(f'''s_cmp_lg_u32 s{S_WAVE}, 0
          s_cbranch_scc1 {Lx}
          s_mov_b32 s{sT+1}, 0
          s_mov_b64 exec, 1
          {L}:
          buffer_load_dword v21, v{vZ}, {srd_}, s{off_sgpr} offen sc1
          s_add_u32 s{sT+1}, s{sT+1}, 1
          s_waitcnt vmcnt(0)
          v_readfirstlane_b32 s{sT}, v21
          s_cmp_gt_u32 s{sT+1}, 0x40000
          s_cbranch_scc1 {Lx}
          s_cmp_ge_u32 s{sT}, {target}
          s_cbranch_scc1 {Lx}
          s_sleep {sleep}
          s_branch {L}
          {Lx}:
          s_mov_b64 exec, -1''')
    if bar: a('s_barrier')

def signal(a, srd_, off_sgpr, atomic):
    L = a.label('sg')
    a(f'''s_waitcnt vmcnt(0)
          s_barrier
          s_cmp_lg_u32 s{S_WAVE}, 0
          s_cbranch_scc1 {L}
          v_mov_b32 v21, 1
          s_mov_b64 exec, 1
          {'buffer_atomic_add v21' if atomic else 'buffer_store_dword v21'}, v{vZ}, {srd_}, s{off_sgpr} offen {'' if atomic else 'sc1'}
          s_mov_b64 exec, -1
          {L}:''')

def gemm_setup_consts(a):
    a(f'''
    v_and_b32 v{vLN}, 63, v{vTID}
    v_mov_b32 v{vZ}, 0
    s_lshr_b32 s{sWM}, s{S_WAVE}, 1
    s_and_b32 s{sWN}, s{S_WAVE}, 1
    v_and_b32 v21, 31, v{vLN}
    v_lshrrev_b32 v22, 5, v{vLN}
    v_bfe_u32 v23, v{vLN}, 1, 3
    v_xor_b32 v22, v22, v23
    v_lshlrev_b32 v24, 7, v21
    v_lshl_add_u32 v24, v22, 4, v24
    s_lshl_b32 s{sT}, s{sWM}, 13
    v_add_u32 v{vAr}, s{sT}, v24
    v_xor_b32 v{vAr+1}, 32, v{vAr}
    v_xor_b32 v{vAr+2}, 64, v{vAr}
    v_xor_b32 v{vAr+3}, 96, v{vAr}
    v_bfe_u32 v21, v{vLN}, 4, 1          ; nh
    v_lshrrev_b32 v22, 5, v{vLN}         ; kh
    v_bfe_u32 v23, v{vLN}, 2, 2          ; r
    v_and_b32 v24, 1, v{vLN}
    v_bfe_u32 v25, v{vLN}, 1, 1
    v_lshl_add_u32 v25, v24, 1, v25      ; 2*(c&1) + (c>>1)
    v_lshl_add_u32 v25, v21, 2, v25
    v_lshl_add_u32 v26, v22, 3, v23
    v_lshlrev_b32 v26, 8, v26
    v_lshl_add_u32 v26, v25, 3, v26
    s_lshl_b32 s{sT}, s{sWN}, 1
    v_xor_b32 v27, s{sT}, v23
    v_lshl_add_u32 v{vBr}, v27, 6, v26
    v_add_u32 v{vBr}, 16384, v{vBr}
    v_xor_b32 v{vBr+1}, 64, v{vBr}
    ''')

def gemm_task_addr(a):
    a(f'''
    v_lshrrev_b32 v21, 3, v{vLN}
    v_mul_lo_u32 v21, v21, s{sLDA}
    v_and_b32 v22, 7, v{vLN}
    v_lshrrev_b32 v23, 4, v{vLN}
    v_xor_b32 v22, v22, v23
    v_lshl_add_u32 v{vAe}, v22, 4, v21
    v_xor_b32 v{vAo}, 64, v{vAe}
    v_lshrrev_b32 v21, 4, v{vLN}
    v_mul_lo_u32 v22, v21, s{sLDB}
    v_and_b32 v23, 15, v{vLN}
    v_lshlrev_b32 v21, 2, v21
    v_xor_b32 v23, v23, v21
    v_lshl_add_u32 v{vBs}, v23, 4, v22
    s_lshl_b32 s{sA8}, s{sLDA}, 3
    s_lshl_b32 s{sB4}, s{sLDB}, 2
    s_lshl_b32 s{sT}, s{sLDA}, 5
    s_mul_i32 s{sT}, s{sT}, s{S_WAVE}
    s_add_u32 s{sAK}, s{sAO}, s{sT}
    s_lshl_b32 s{sT}, s{sLDB}, 4
    s_mul_i32 s{sT}, s{sT}, s{S_WAVE}
    s_add_u32 s{sBK}, s{sBO}, s{sT}
    s_lshl_b32 s{sDST}, s{S_WAVE}, 12
    s_mov_b32 s{sSTG}, 0
    s_mov_b32 s{sA0}, s{sAK}
    s_mov_b32 s{sB0}, s{sBK}
    s_mov_b32 s{sLS}, s{sNST}
    s_mul_i32 s{sLT}, s{sNST}, s{sNT}
    s_mov_b32 s{sPK}, 0
    ''')

def dma_list():
    out = []
    for i in range(4):
        out.append([f's_add_u32 m0, s{sDST}, {i*1024}',
                    f's_add_u32 s{sX}, s{sX}, s{sA8}' if i else f's_mov_b32 s{sX}, s{sAK}',
                    f'buffer_load_dwordx4 v{vAo if i&1 else vAe}, {SA}, s{sX} offen sc1 lds'])
    for i in range(4):
        out.append([f's_add_u32 m0, s{sDST}, {16384+i*1024}',
                    f's_add_u32 s{sY}, s{sY}, s{sB4}' if i else f's_mov_b32 s{sY}, s{sBK}',
                    f'buffer_load_dwordx4 v{vBs}, {SBd}, s{sY} offen sc1 lds'])
    out[-1] += [f's_add_u32 s{sAK}, s{sAK}, 128',
                f's_lshl_b32 s{sT}, s{sLDB}, 6', f's_add_u32 s{sBK}, s{sBK}, s{sT}',
                f's_add_u32 s{sDST}, s{sDST}, {STG}', f's_and_b32 s{sDST}, s{sDST}, {4*STG-1}',
                f's_sub_u32 s{sLT}, s{sLT}, 1',
                f's_sub_u32 s{sLS}, s{sLS}, 1', f's_cmp_eq_u32 s{sLS}, 0',
                f's_cselect_b32 s{sT}, s{sDB}, 0', f's_cselect_b32 s{sT+1}, s{sDA}, 0', f's_add_u32 s{sB0}, s{sB0}, s{sT}', f's_add_u32 s{sA0}, s{sA0}, s{sT+1}', f's_cmp_eq_u32 s{sLS}, 0',
                f's_cselect_b32 s{sAK}, s{sA0}, s{sAK}', f's_cselect_b32 s{sBK}, s{sB0}, s{sBK}', f's_cselect_b32 s{sLS}, s{sNST}, s{sLS}']
    return out

def frag_reads(ks, buf):
    b = FR + 16*buf
    r = []
    for mt in range(2):
        r.append(f'ds_read_b128 {vr(b+4*mt,4)}, v{vAc+ks} offset:{mt*4096}')
    for nt in range(2):
        for rho in range(2):
            r.append(f'ds_read_b64_tr_b16 {vr(b+8+4*nt+2*rho,2)}, v{vBc+nt} offset:{ks*4096+rho*1024}')
    return r

def stage(a, swapped, dma):
    for i in range(4): a(f'v_add_u32 v{vAc+i}, s{sSTG}, v{vAr+i}')
    for i in range(2): a(f'v_add_u32 v{vBc+i}, s{sSTG}, v{vBr+i}')
    a('\n'.join(frag_reads(0,0)))
    d = dma_list() if dma else []
    a(f's_add_u32 s{sSTG}, s{sSTG}, {STG}\n s_and_b32 s{sSTG}, s{sSTG}, {4*STG-1}')
    if d: a('\n'.join(d.pop(0)))
    for ks in range(4):
        nxt = frag_reads(ks+1, (ks+1)&1) if ks < 3 else []
        a('\n'.join(nxt))
        a(f's_waitcnt lgkmcnt({len(nxt)})')
        b = FR + 16*(ks&1)
        for mt in range(2):
            for nt in range(2):
                acc = ar(16*(2*mt+nt),16)
                A_, B_ = vr(b+4*mt,4), vr(b+8+4*nt,4)
                if swapped: A_, B_ = B_, A_
                a(f'v_mfma_f32_32x32x16_bf16 {acc}, {A_}, {B_}, {acc}')
                if d and (2*mt+nt) in (0,2): a('\n'.join(d.pop(0)))
    assert not d

def pend_signal(a):
    L = a.label('ps')
    a(f'''s_cmp_eq_u32 s{sPK}, 0
          s_cbranch_scc1 {L}
          s_cmp_eq_u32 s{sPK}, 1
          s_cselect_b32 s{sT}, 15, 1
          s_mov_b32 s{sPK}, 0
          s_cmp_lg_u32 s{S_WAVE}, 0
          s_cbranch_scc1 {L}
          v_mov_b32 v21, 1
          v_lshlrev_b32 v22, 18, v{vLN}
          s_mov_b32 exec_lo, s{sT}
          s_mov_b32 exec_hi, 0
          buffer_atomic_add v21, v22, {W}, s{sPEND} offen
          s_mov_b64 exec, -1
          {L}:''')

def gemm_start(a):
    for st in range(3):
        for g in dma_list(): a('\n'.join(g))

def gemm_tile(a, swapped, tag):
    for i in range(64): a(f'v_accvgpr_write_b32 a{i}, 0')
    a(f's_mov_b32 s{sJ}, 0')
    L = f'L_gl_{tag}'; Ln = f'L_gn_{tag}'; Lx = f'L_gx_{tag}'
    a(f'''{L}:
          s_cmp_eq_u32 s{sLT}, 0
          s_cbranch_scc1 {Ln}
          s_cmp_lt_u32 s{sJ}, 3
          s_cselect_b32 s{sT}, s{sPK}, 0
          s_cmp_lg_u32 s{sT}, 0
          s_cbranch_scc1 {L}a
          s_waitcnt vmcnt(16)
          s_barrier''')
    pend_signal(a)
    a(f'''s_branch {L}b
          {L}a:
          s_waitcnt vmcnt(24)
          s_barrier
          {L}b:''')
    stage(a, swapped, True)
    a(f's_add_u32 s{sJ}, s{sJ}, 1\n s_cmp_lt_u32 s{sJ}, s{sNST}\n s_cbranch_scc1 {L}\n s_branch {Lx}')
    a(f'{Ln}:')
    for vm in (16,8,0):
        a(f's_waitcnt vmcnt({vm})\n s_barrier')
        stage(a, swapped, False)
    a(f'{Lx}:\n s_nop 15')

def acc_read(a, dst, src, n):
    for i in range(n): a(f'v_accvgpr_read_b32 v{dst+i}, a{src+i}')

def gelu8(a, x, t):
    for i in range(0,8,2): a(f'v_cvt_pk_bf16_f32 v{t+i}, v{x+i}, v{x+i+1}')
    for i in range(0,8,2):
        a(f'v_lshlrev_b32 v{x+i}, 16, v{t+i}\n v_and_b32 v{x+i+1}, 0xffff0000, v{t+i}')
    for i in range(8): a(f'v_mul_f32 v{t+i}, v{x+i}, v{x+i}')
    for i in range(8): a(f'v_fma_f32 v{t+i}, v{t+i}, s{sC0}, 1.0')
    for i in range(8): a(f'v_mul_f32 v{t+i}, v{t+i}, v{x+i}')
    for i in range(8): a(f'v_mul_f32 v{t+i}, s{sC1}, v{t+i}')
    for i in range(8): a(f'v_exp_f32 v{t+i}, v{t+i}')
    for i in range(8): a(f'v_add_f32 v{t+i}, 1.0, v{t+i}')
    for i in range(8): a(f'v_rcp_f32 v{t+i}, v{t+i}')
    a('s_nop 0')
    for i in range(8): a(f'v_mul_f32 v{x+i}, v{x+i}, v{t+i}')

def epi_kq(a):
    a(f'''
    v_bfe_u32 v21, v{vLN}, 4, 1
    v_lshrrev_b32 v22, 5, v{vLN}
    v_and_b32 v23, 15, v{vLN}
    v_lshlrev_b32 v{vE1}, 9, v21
    v_lshl_add_u32 v{vE1}, v22, 8, v{vE1}
    v_lshl_add_u32 v{vE1}, v23, 4, v{vE1}
    s_lshl_b32 s{sT}, s{sWM}, 14
    s_lshl_b32 s{sT+1}, s{sWN}, 12
    s_add_u32 s{sT}, s{sT}, s{sT+1}
    s_add_u32 s{sT}, s{sT}, {EP}
    v_add_u32 v{vE1}, s{sT}, v{vE1}
    ''')
    for mt in range(2):
        for nt in range(2):
            for ap in range(2):
                x = 64 + 16*((2*nt+ap)&1); o = x+8
                acc_read(a, x, 16*(2*mt+nt)+8*ap, 8)
                for c in range(4): a(f'v_cvt_pk_bf16_f32 v{o+c}, v{x+c}, v{x+4+c}')
                a(f'ds_write_b128 v{vE1}, {vr(o,4)} offset:{mt*8192+nt*2048+ap*1024}')

def epi_v(a):
    a(f'''
    v_lshrrev_b32 v21, 5, v{vLN}          ; hb
    v_bfe_u32 v22, v{vLN}, 3, 1           ; t = a'&1
    v_bfe_u32 v23, v{vLN}, 4, 1           ; a'>>1
    v_and_b32 v24, 7, v{vLN}              ; 4*hb' + c'
    v_lshl_add_u32 v24, v23, 3, v24       ; i
    v_lshl_add_u32 v24, v21, 4, v24       ; + 16*g (g = hb (+2))
    v_lshlrev_b32 v{vE1}, 4, v24
    v_lshl_add_u32 v{vE1}, v22, 10, v{vE1}
    s_lshl_b32 s{sT}, s{sWM}, 14
    s_lshl_b32 s{sT+1}, s{sWN}, 12
    s_add_u32 s{sT}, s{sT}, s{sT+1}
    s_add_u32 s{sT}, s{sT}, {EP}
    v_add_u32 v{vE1}, s{sT}, v{vE1}
    ''')
    for mt in range(2):
        for nt in range(2):
            for g2 in range(2):
                x = 64 + 16*g2; o = x+8
                acc_read(a, x, 16*(2*mt+nt)+4*g2, 4); acc_read(a, x+4, 16*(2*mt+nt)+4*g2+8, 4)
                for c in range(4): a(f'v_cvt_pk_bf16_f32 v{o+c}, v{x+2*c}, v{x+2*c+1}')
                a(f'ds_write_b128 v{vE1}, {vr(o,4)} offset:{mt*8192+nt*2048+g2*512}')

def epi_row(a, gelu):
    a(f'''
    v_and_b32 v21, 31, v{vLN}
    v_lshrrev_b32 v22, 5, v{vLN}
    v_and_b32 v23, 15, v{vLN}
    s_lshl_b32 s{sT}, s{sWN}, 3
    v_or_b32 v22, s{sT}, v22
    v_xor_b32 v22, v22, v23
    v_lshlrev_b32 v{vE1}, 8, v21
    v_lshl_add_u32 v{vE1}, v22, 4, v{vE1}
    s_lshl_b32 s{sT}, s{sWM}, 14
    s_add_u32 s{sT}, s{sT}, {EP}
    v_add_u32 v{vE1}, s{sT}, v{vE1}
    ''')
    for nt in range(2):
        for ap in range(2):
            if nt or ap: a(f'v_xor_b32 v{vE2}, {(4*nt+2*ap)*16}, v{vE1}')
            adr = vE2 if (nt or ap) else vE1
            for mt in range(2):
                x = 64 + 24*mt; o = x+8
                acc_read(a, x, 16*(2*mt+nt)+8*ap, 8)
                if gelu: gelu8(a, x, x+8)
                for c in range(4): a(f'v_cvt_pk_bf16_f32 v{o+c}, v{x+2*c}, v{x+2*c+1}')
                a(f'ds_write_b128 v{adr}, {vr(o,4)} offset:{mt*8192}')

def copy_blocks(a):
    a(f'''
    s_waitcnt lgkmcnt(0)
    s_barrier
    v_lshlrev_b32 v21, 4, v{vLN}
    s_lshl_b32 s{sT}, s{S_WAVE}, 13
    s_add_u32 s{sT}, s{sT}, {EP}
    v_add_u32 v22, s{sT}, v21
    s_lshl_b32 s{sT}, s{S_WAVE}, 18
    s_add_u32 s{sT}, s{sT}, s{sOUT}
    s_add_u32 s{sT+1}, s{sT}, 4096
    ''')
    for i in range(8): a(f'ds_read_b128 {vr(64+4*i,4)}, v22 offset:{i*1024}')
    for i in range(8):
        a(f's_waitcnt lgkmcnt({7-i})\n buffer_store_dwordx4 {vr(64+4*i,4)}, v21, {W}, s{sT+(i>>2)} offen offset:{(i&3)*1024} sc1')

def unpack(a, d, s):
    a(f'v_lshlrev_b32 v{d}, 16, v{s}\n v_and_b32 v{d+1}, 0xffff0000, v{s}')

def rows_phase(a, mode):
    a(f'''
    v_lshrrev_b32 v21, 4, v{vLN}
    v_and_b32 v22, 15, v{vLN}
    v_mul_lo_u32 v23, v21, s{sOSTR}
    v_lshl_add_u32 v23, v22, 4, v23
    s_lshl_b32 s{sT}, s{S_WAVE}, 5
    s_mul_i32 s{sT+1}, s{sT}, s{sOSTR}
    s_add_u32 s{sX}, s{sOUT}, s{sT+1}
    s_add_u32 s{sY}, s{sAUX}, s{sT+1}
    s_lshl_b32 s{sT+2}, s{sOSTR}, 2
    v_xor_b32 v24, v22, v21
    v_lshlrev_b32 v25, 8, v21
    v_lshl_add_u32 v25, v24, 4, v25
    s_lshl_b32 s{sT+3}, s{S_WAVE}, 13
    s_add_u32 s{sT+3}, s{sT+3}, {EP}
    v_add_u32 v25, s{sT+3}, v25
    v_lshlrev_b32 v26, 1, v21
    s_lshl_b32 s{sT+3}, s{S_WAVE}, 6
    s_add_u32 s{sT+3}, s{sT+3}, s{sAUX2}
    ''')
    if mode != 'plain':
        a(f's_mov_b32 s{sT+4}, s{sY}\n s_mov_b32 s{sT+5}, s{sX}')
        for i in range(8):
            a(f'buffer_load_dwordx4 {vr(96+4*i,4)}, v23, {W}, s{sT+4} offen sc1\n s_add_u32 s{sT+4}, s{sT+4}, s{sT+2}')
            if mode == 'gate':
                a(f'buffer_load_ushort v{128+i}, v26, {SC}, s{sT+3} offen offset:{i*8}')
            else:
                a(f'buffer_load_dwordx4 {vr(128+4*i,4)}, v23, {SC}, s{sT+5} offen\n s_add_u32 s{sT+5}, s{sT+5}, s{sT+2}')
    a('s_waitcnt lgkmcnt(0)\n s_barrier')
    for i in range(8):
        a(f'v_xor_b32 v27, {(i&3)*64}, v25\n ds_read_b128 {vr(64+4*i,4)}, v27 offset:{i*1024}')
    if mode != 'plain': a('s_waitcnt vmcnt(0)')
    for i in range(8):
        r = 64+4*i
        a(f's_waitcnt lgkmcnt({7-i})')
        if mode == 'gate':
            a(f'v_lshlrev_b32 v{128+i}, 16, v{128+i}')
            for d in range(4):
                unpack(a, 28, r+d); unpack(a, 30, 96+4*i+d)
                a(f'''v_add_f32 v28, v28, v{128+i}
                      v_add_f32 v29, v29, v{128+i}
                      v_cvt_pk_bf16_f32 v{r+d}, v28, v29''')
                unpack(a, 28, r+d)
                a(f'''v_mul_f32 v28, v28, v30
                      v_mul_f32 v29, v29, v31
                      v_cvt_pk_bf16_f32 v{r+d}, v28, v29''')
        if mode == 'final':
            for d in range(4):
                unpack(a, 28, r+d); unpack(a, 30, 128+4*i+d)
                a(f'''v_add_f32 v28, v28, v30
                      v_add_f32 v29, v29, v31
                      v_cvt_pk_bf16_f32 v{r+d}, v28, v29''')
                unpack(a, 28, r+d); unpack(a, 30, 96+4*i+d)
                a(f'''v_add_f32 v28, v28, v30
                      v_add_f32 v29, v29, v31
                      v_cvt_pk_bf16_f32 v{r+d}, v28, v29''')
        if mode == 'final':
            a(f'buffer_store_dwordx4 {vr(r,4)}, v23, {SD}, s{sX} offen')
        else:
            a(f'buffer_store_dwordx4 {vr(r,4)}, v23, {W}, s{sX} offen sc1')
        a(f's_add_u32 s{sX}, s{sX}, s{sT+2}')

def ln_task(a, width, src_srd, sc, tag):
    nch = width//8//16
    stride = 2*width
    a(f'''
    v_lshrrev_b32 v21, 4, v{vLN}
    v_and_b32 v22, 15, v{vLN}
    s_lshl_b32 s{sT}, s{S_WAVE}, 2
    v_add_u32 v21, s{sT}, v21
    s_mov_b32 s{sT}, {stride}
    v_mul_lo_u32 v21, v21, s{sT}
    v_lshl_add_u32 v23, v22, 4, v21
    ''')
    for c in range(nch): a(f'buffer_load_dwordx4 {vr(64+4*c,4)}, v23, {src_srd}, s{sAO} offen offset:{c*256} {sc}')
    a('s_waitcnt vmcnt(0)')
    n = nch*8; X = 96
    for d in range(nch*4): unpack(a, X+2*d, 64+d)
    def red(reg):
        for sh in (8,4,2,1):
            a(f's_nop 1\n v_add_f32_dpp v{reg}, v{reg}, v{reg} row_ror:{sh} row_mask:0xf bank_mask:0xf')
    a(f'v_add_f32 v24, v{X}, v{X+1}')
    for i in range(2,n): a(f'v_add_f32 v24, v24, v{X+i}')
    red(24)
    inv = {512:0x3b000000, 896:0x3a924925}[width]
    a(f'v_mul_f32 v24, {inv:#x}, v24')
    a(f'v_sub_f32 v26, v{X}, v24\n v_mul_f32 v25, v26, v26')
    for i in range(1,n): a(f'v_sub_f32 v26, v{X+i}, v24\n v_fmac_f32 v25, v26, v26')
    red(25)
    a(f'''
    v_mul_f32 v25, {inv:#x}, v25
    v_cvt_pk_bf16_f32 v24, v24, v25
    v_and_b32 v25, 0xffff0000, v24
    v_lshlrev_b32 v24, 16, v24
    v_add_f32 v25, 0x3727c5ac, v25          ; + 1e-5
    v_cvt_pk_bf16_f32 v25, v25, v25
    v_and_b32 v25, 0xffff0000, v25
    v_sqrt_f32 v25, v25
    s_nop 0
    v_cvt_pk_bf16_f32 v25, v25, v25
    v_and_b32 v25, 0xffff0000, v25
    v_rcp_f32 v27, v25
    s_nop 0
    ''')
    for d in range(nch*4):
        x = X+2*d
        a(f'''v_sub_f32 v{x}, v{x}, v24
              v_sub_f32 v{x+1}, v{x+1}, v24
              v_cvt_pk_bf16_f32 v26, v{x}, v{x+1}''')
        unpack(a, x, 26)
        a(f'''v_mul_f32 v28, v{x}, v27
              v_mul_f32 v29, v{x+1}, v27
              v_fma_f32 v{x}, -v28, v25, v{x}
              v_fma_f32 v{x+1}, -v29, v25, v{x+1}
              v_fmac_f32 v28, v{x}, v27
              v_fmac_f32 v29, v{x+1}, v27
              v_cvt_pk_bf16_f32 v{64+d}, v28, v29''')
    for c in range(nch): a(f'buffer_store_dwordx4 {vr(64+4*c,4)}, v23, {W}, s{sOUT} offen offset:{c*256} sc1')

def att_task(a):
    KF=64; QF=96; VF=128; KMF=160; VMF=176; SX=192
    a(f'''
    s_lshl_b32 s{sT}, s{sBLK}, 2
    s_add_u32 s{sT}, s{sT}, s{S_WAVE}          ; seg
    s_lshl_b32 s{sT+1}, s{sT}, 5
    s_add_u32 s{sT+1}, s{sT+1}, s{sCT}
    s_lshl_b32 s{sT+1}, s{sT+1}, 13            ; (seg*32+h)*8192
    s_add_u32 s{sT+2}, s{sT+1}, {WS_KX}
    s_add_u32 s{sT+3}, s{sT+1}, {WS_QX}
    s_add_u32 s{sT+4}, s{sT+1}, {WS_VX}
    s_add_u32 s{sT+5}, s{sT+1}, {WS_KM}
    s_add_u32 s{sT+6}, s{sT+2}, 4096
    s_add_u32 s{sT+7}, s{sT+3}, 4096
    s_add_u32 s{sT+8}, s{sT+4}, 4096
    v_lshrrev_b32 v21, 4, v{vLN}               ; g
    v_and_b32 v22, 15, v{vLN}                  ; i
    v_lshrrev_b32 v23, 1, v21
    v_and_b32 v24, 1, v21
    v_lshlrev_b32 v25, 10, v23
    v_lshl_add_u32 v25, v24, 8, v25
    v_lshl_add_u32 v25, v22, 4, v25
    v_lshlrev_b32 v26, 4, v{vLN}
    v_lshrrev_b32 v27, 2, v22
    v_and_b32 v28, 1, v22
    v_lshl_add_u32 v27, v27, 1, v28
    v_lshlrev_b32 v27, 8, v27
    v_lshl_add_u32 v27, v21, 4, v27
    ''')
    for T in range(2):
        for ks in range(4):
            so = sT+2 if ks < 2 else sT+6
            a(f'buffer_load_dwordx4 {vr(KF+16*T+4*ks,4)}, v25, {W}, s{so} offen offset:{(ks&1)*2048+T*512} sc1')
            so = sT+3 if ks < 2 else sT+7
            a(f'buffer_load_dwordx4 {vr(QF+16*T+4*ks,4)}, v25, {W}, s{so} offen offset:{(ks&1)*2048+T*512} sc1')
    for ks in range(4): a(f'buffer_load_dwordx4 {vr(KMF+4*ks,4)}, v27, {W}, s{sT+5} offen offset:{ks*64} sc1')
    for f in range(8):
        so = sT+4 if f < 4 else sT+8
        a(f'buffer_load_dwordx4 {vr(VF+4*f,4)}, v26, {W}, s{so} offen offset:{(f&3)*1024} sc1')
    a(f's_add_u32 s{sT+5}, s{sT+5}, 2048')
    for w in range(4): a(f'buffer_load_dwordx4 {vr(VMF+4*w,4)}, v26, {W}, s{sT+5} offen offset:{w*1024} sc1')
    a(f'''
    v_lshlrev_b32 v29, 13, v22
    v_lshl_add_u32 v29, v21, 4, v29
    s_lshl_b32 s{sX}, s{sT}, 18
    s_lshl_b32 s{sY}, s{sCT}, 8
    s_add_u32 s{sX}, s{sX}, s{sY}
    s_add_u32 s{sX}, s{sX}, {WS_OX}
    s_mov_b32 s{sC0}, 0x3e0293ee
    v_lshlrev_b32 v30, 2, v21                  ; 4g
    v_mov_b32 v31, 0xff800000
    s_waitcnt vmcnt(12)
    ''')
    for qt in range(2):
        S = SX
        tiles = [0,2] if qt == 0 else [0,1,2]
        for T in tiles:
            for ks in range(4):
                A_ = vr(KF+16*T+4*ks,4) if T < 2 else vr(KMF+4*ks,4)
                c = '0' if ks == 0 else vr(S+4*T,4)
                a(f'v_mfma_f32_16x16x32_bf16 {vr(S+4*T,4)}, {A_}, {vr(QF+16*qt+4*ks,4)}, {c}')
        a('s_nop 7')
        for r in range(4):
            a(f'''v_add_u32 v{SX+28}, {r}, v30
                  v_cmp_le_u32 vcc, v{SX+28}, v22
                  s_nop 1
                  v_cndmask_b32 v{S+4*qt+r}, v31, v{S+4*qt+r}, vcc''')
        vals = [S+4*T+r for T in tiles if T < 2 for r in range(4)] + [S+8, S+9]
        mx, tt = SX+28, SX+29
        a(f'v_max_f32 v{mx}, v{vals[0]}, v{vals[1]}')
        for i in range(2,len(vals),2): a(f'v_max3_f32 v{mx}, v{mx}, v{vals[i]}, v{vals[i+1]}')
        for p in (16,32):
            a(f'v_mov_b32 v{tt}, v{mx}\n s_nop 1\n v_permlane{p}_swap_b32 v{mx}, v{tt}\n v_max_f32 v{mx}, v{mx}, v{tt}')
        a(f'v_mul_f32 v{mx}, s{sC0}, v{mx}')
        for v_ in vals: a(f'v_fma_f32 v{v_}, v{v_}, s{sC0}, -v{mx}')
        for v_ in vals: a(f'v_exp_f32 v{v_}, v{v_}')
        a(f's_nop 0\n v_add_f32 v{mx}, v{vals[0]}, v{vals[1]}')
        for v_ in vals[2:]: a(f'v_add_f32 v{mx}, v{mx}, v{v_}')
        for p in (16,32):
            a(f'v_mov_b32 v{tt}, v{mx}\n s_nop 1\n v_permlane{p}_swap_b32 v{mx}, v{tt}\n v_add_f32 v{mx}, v{mx}, v{tt}')
        a(f'v_rcp_f32 v{mx}, v{mx}\n s_nop 0')
        for v_ in vals: a(f'v_mul_f32 v{v_}, v{v_}, v{mx}')
        P = SX+12; PM = SX+16
        a(f'v_cvt_pk_bf16_f32 v{P}, v{S}, v{S+1}\n v_cvt_pk_bf16_f32 v{P+1}, v{S+2}, v{S+3}')
        if qt: a(f'v_cvt_pk_bf16_f32 v{P+2}, v{S+4}, v{S+5}\n v_cvt_pk_bf16_f32 v{P+3}, v{S+6}, v{S+7}')
        else:  a(f'v_mov_b32 v{P+2}, 0\n v_mov_b32 v{P+3}, 0')
        a(f'v_cvt_pk_bf16_f32 v{PM}, v{S+8}, v{S+9}\n v_mov_b32 v{PM+1}, 0')
        if qt == 0: a('s_waitcnt vmcnt(0)')
        a('s_nop 1')
        O = 224
        for f in range(8):
            a(f'v_mfma_f32_16x16x32_bf16 {vr(O+4*f,4)}, {vr(VF+4*f,4)}, {vr(P,4)}, 0')
        for f in range(8):
            a(f'v_mfma_f32_16x16x16_bf16 {vr(O+4*f,4)}, {vr(VMF+4*(f>>1)+2*(f&1),2)}, {vr(PM,2)}, {vr(O+4*f,4)}')
        a('s_nop 7')
        if qt: a(f's_add_u32 s{sX}, s{sX}, {16*8192}')
        for w in range(4):
            o = SX+20 if w&1 else SX+24
            for c in range(4): a(f'v_cvt_pk_bf16_f32 v{o+c}, v{O+8*w+2*c}, v{O+8*w+2*c+1}')
            a(f'buffer_store_dwordx4 {vr(o,4)}, v29, {W}, s{sX} offen offset:{w*64} sc1')
            a('s_nop 1')
```

```python
import sys
from common import *
import chain as C
from chain import S_WS, S_DBG, S_A, S_B, S_C, S_D, S_XCC, S_WAVE, S_HEAD, SH
from worker import *

HDR = open('parallel_sum__memory_aug_recurrent_mem_tr__mixer_gmlp__prompt.s.ref').read().split('; @launch')[0]

def bcast_ticket(a, vsrc, sdst):
    L = a.label('bt')
    a(f'''s_cmp_lg_u32 s{S_WAVE}, 0
          v_mov_b32 v21, {TK_LDS}
          s_cbranch_scc1 {L}
          s_mov_b64 exec, 1
          ds_write_b32 v21, v{vsrc}
          s_mov_b64 exec, -1
          s_waitcnt lgkmcnt(0)
          {L}:
          s_barrier
          ds_read_b32 v22, v21
          s_waitcnt lgkmcnt(0)
          v_readfirstlane_b32 s{sdst}, v22
          s_barrier''')

def atomic_ret(a, vdst, off, val=1, srd_=None, soff='0'):
    L = a.label('ar')
    a(f'''s_cmp_lg_u32 s{S_WAVE}, 0
          s_cbranch_scc1 {L}
          v_mov_b32 v{vdst}, {val}
          v_mov_b32 v21, {off}
          s_mov_b64 exec, 1
          buffer_atomic_add v{vdst}, v21, {srd_ or DBG}, {soff} offen sc0
          s_mov_b64 exec, -1
          {L}:''')

TY_K=0; TY_Q=1; TY_WIN=2; TY_SP=3; TY_OB=4; TY_G3=5; TY_V=6; TY_LN1=7; TY_LN2=8; TY_ATT=9; TY_NOP=10
def ent(ty, blk=0, ct=0, nt=1): return ty | (blk << 4) | (ct << 12) | (nt << 20)
def build_tables(opt):
    kvs = [0,5,10,15,20,24,28,32]; qs = [0,4,8,12,16,21,26,32]
    g1 = []
    for j in range(7):
        q = []
        for b in range(3):
            for h in range(kvs[j],kvs[j+1]):
                q += [ent(TY_K,b,h,6 if b == 0 else 5), ent(TY_V,b,h,6 if b == 0 else 5)]
        for ct in (7+j, j):
            q += [ent(TY_WIN,4*i,ct,4) for i in range(4)]
        q += [ent(TY_Q,b,qs[j],qs[j+1]-qs[j]) for b in range(16)]
        g1.append(q)
    sp = [[ent(TY_SP,b,j) for b in range(16)] for j in range(7)]
    att = lambda b: [ent(TY_ATT,b,h) for h in range(32)]
    g3 = lambda b: [ent(TY_G3,b,c) for c in range(16)]
    ob = [ent(TY_OB,b,c) for b in range(16) for c in range(4)]
    E = opt.get('early', 3)
    tail = sum((att(b) for b in range(E)), []) + ob + sum((g3(b) for b in range(E)), [])
    for b in range(E,16): tail += att(b) + g3(b)
    return [([[ent(TY_LN1,i) for i in range(128)]],0), (g1,0), ([[ent(TY_LN2,i) for i in range(128)]],0), (sp,0), ([tail],0)]
def table_words(PH):
    hdr = []; body = []
    base = 4*len(PH)
    for qs_, pf in PH:
        L = max(len(q) for q in qs_)
        hdr += [len(qs_), L, base + len(body), pf]
        for q in qs_: body += q + [ent(TY_NOP)]*(L-len(q))
    return hdr + body

def gen(opt={}):
    a = Asm()
    a(f'''
    s_cmp_ge_u32 s2, 256
    s_cbranch_scc1 L_end
    s_load_dwordx4 s[32:35], s[0:1], 104
    s_getreg_b32 s{S_XCC}, hwreg(HW_REG_XCC_ID)
    s_and_b32 s{S_XCC}, s{S_XCC}, 15
    v_lshrrev_b32 v1, 6, v0
    v_mov_b32 v{vNXT}, 0
    v_readfirstlane_b32 s{S_WAVE}, v1
    s_waitcnt lgkmcnt(0)
    s_mov_b32 s{S_DBG}, s32
    s_mov_b32 s{S_DBG+1}, s33
    s_mov_b32 s{S_DBG+2}, 256
    s_mov_b32 s{S_DBG+3}, 0x20000
    s_mov_b32 s{S_WS}, s34
    s_mov_b32 s{S_WS+1}, s35
    s_mov_b32 s{S_WS+2}, {WS_SIZE}
    s_mov_b32 s{S_WS+3}, 0x20000
    s_cmp_lg_u32 s{S_XCC}, {opt.get('team_xcc',0)}
    s_cbranch_scc1 L_worker
    L_tryrole:
    ''')
    atomic_ret(a, vNXT, D_ROLE)
    a('s_waitcnt vmcnt(0)')
    bcast_ticket(a, vNXT, S_HEAD)
    a(f'''
    s_cmp_lt_u32 s{S_HEAD}, 32
    s_cbranch_scc1 L_chain
    s_branch L_worker_noq
    ''')
    a('L_worker:')
    a(f's_mov_b32 s{sFIRST}, 1\n s_branch L_winit')
    a('L_worker_noq:')
    a(f's_mov_b32 s{sFIRST}, 0')
    a('L_winit:')
    for s in (S_A,S_B,S_C,S_D): srd_ws(a, s)
    gemm_setup_consts(a)
    PH = build_tables(opt)
    a(f'''s_mov_b32 s{sCNT}, 0
          s_getpc_b64 s[{sTB}:{sTB+1}]
          L_pc:
          s_add_u32 s{sTB}, s{sTB}, task_table-L_pc
          s_addc_u32 s{sTB+1}, s{sTB+1}, 0
          s_add_u32 s{sHOME}, s{S_XCC}, 6
          s_cmp_ge_u32 s{sHOME}, 7
          s_cselect_b32 s{sT}, 7, 0
          s_sub_u32 s{sHOME}, s{sHOME}, s{sT}
          s_min_u32 s{sHOME}, s{sHOME}, 6
          s_mov_b32 s{sPH}, 0
          s_mov_b32 s{sQ}, 0''')
    def claim():
        a(f'''s_lshl_b32 s{sT}, s{sPH}, 5
              s_lshl_b32 s{sT+1}, s{sQ}, 2
              s_add_u32 s{sT}, s{sT}, s{sT+1}
              s_add_u32 s{sFLG}, s{sT}, 32''')
        atomic_ret(a, vNXT, 0, 1, DBG, f's{sFLG}')
    a('L_claim:')
    claim()
    a('L_next:')
    a(f's_lshl_b32 s{sT}, s{sPH}, 4\n s_load_dwordx4 s[36:39], s[{sTB}:{sTB+1}], s{sT}')
    a('s_waitcnt vmcnt(0)')
    bcast_ticket(a, vNXT, sTASK)
    a(f'''s_cmp_lt_u32 s{sTASK}, s37
          s_cbranch_scc1 L_got
          s_lshl_b32 s{sT}, s{sPH}, 5
          s_add_u32 s{sT}, s{sT}, 32
          v_lshlrev_b32 v21, 2, v{vLN}
          v_and_b32 v21, 31, v21
          buffer_load_dword v22, v21, {DBG}, s{sT} offen sc1
          s_waitcnt vmcnt(0)
          v_cmp_gt_u32 vcc, s37, v22
          s_lshl_b32 s{sT}, 1, s36
          s_sub_u32 s{sT}, s{sT}, 1
          s_and_b32 s{sT}, s{sT}, vcc_lo
          v_mov_b32 v24, s{sT}''')
    bcast_ticket(a, 24, sT+1)
    a(f'''s_cmp_eq_u32 s{sT+1}, 0
          s_cbranch_scc1 L_nextph
          s_lshr_b32 s{sT}, s{sT+1}, s{sQ}
          s_lshl_b32 s{sT}, s{sT}, s{sQ}
          s_cmp_lg_u32 s{sT}, 0
          s_cselect_b32 s{sT}, s{sT}, s{sT+1}
          s_ff1_i32_b32 s{sQ}, s{sT}
          s_branch L_claim
          L_nextph:
          s_add_u32 s{sPH}, s{sPH}, 1
          s_cmp_ge_u32 s{sPH}, {len(PH)}
          s_cbranch_scc1 L_wdone
          s_bitcmp1_b32 s{sPH}, 0
          s_cselect_b32 s{sQ}, s{sHOME}, 0
          s_branch L_claim
          L_got:
          s_mul_i32 s{sT}, s{sQ}, s37
          s_add_u32 s{sT}, s{sT}, s38
          s_add_u32 s{sTASK}, s{sTASK}, s{sT}
          s_lshl_b32 s{sT}, s{sTASK}, 2
          s_load_dword s{sIDX}, s[{sTB}:{sTB+1}], s{sT}
          s_mov_b32 s{sLNM}, 0
          s_cmp_eq_u32 s{sFIRST}, 1
          s_cbranch_scc1 L_nopf
          s_cmp_eq_u32 s39, 0
          s_cbranch_scc1 L_nopf
          s_mov_b32 s{sLNM}, 1''')
    claim()
    a('L_nopf:')
    if opt.get('prof'): a('s_memrealtime s[76:77]\n s_memrealtime s[78:79]')
    a(f'''s_waitcnt lgkmcnt(0)
          s_and_b32 s{sEPI}, s{sIDX}, 15          ; type
          s_bfe_u32 s{sBLK}, s{sIDX}, 0x80004
          s_bfe_u32 s{sCT}, s{sIDX}, 0x8000c
          s_bfe_u32 s{sNT}, s{sIDX}, 0x40014
          s_mov_b32 s{sDA}, 0
          s_mov_b32 s{sDB}, 256
          s_cmp_eq_u32 s{sEPI}, {TY_NOP}
          s_cbranch_scc1 L_done
          s_cmp_eq_u32 s{sEPI}, {TY_LN1}
          s_cbranch_scc1 L_ln1''')
    a(f's_cmp_eq_u32 s{sCNT}, 1\n s_cbranch_scc1 L_initok\n s_mov_b32 s{sFLG}, {D_INIT}')
    wait_flag(a, DBG, sFLG, 128)
    a(f's_mov_b32 s{sCNT}, 1\n L_initok:')
    for ty, L in ((TY_K,'L_kv'),(TY_V,'L_kv'),(TY_WIN,'L_win'),(TY_Q,'L_q'),(TY_LN2,'L_ln2'),(TY_SP,'L_sp'),(TY_OB,'L_ob'),(TY_ATT,'L_att')):
        a(f's_cmp_eq_u32 s{sEPI}, {ty}\n s_cbranch_scc1 {L}')
    a('s_branch L_g3')
    def wait_ln():
        pass
    def a_xn():
        srd_ws(a, S_A)
        a(f's_lshl_b32 s{sAO}, s{sBLK}, 17\n s_add_u32 s{sAO}, s{sAO}, {WS_XN}\n s_mov_b32 s{sLDA}, 1024\n s_mov_b32 s{sNST}, 8')
    a('L_ln1:')
    a(f'''s_cmp_lg_u32 s{S_WAVE}, 0
          s_cbranch_scc1 L_ln1b
          v_mov_b32 v24, 0
          v_mov_b32 v25, 0
          v_mov_b32 v26, 0
          v_mov_b32 v27, 0
          v_lshlrev_b32 v21, 4, v{vLN}
          v_lshlrev_b32 v22, 13, v{vLN}
          s_mul_i32 s{sT}, s{sBLK}, {F_SIZE//128}
          s_add_u32 s{sT}, s{sT}, {WS_FLAGS}
          s_lshl_b32 s{sT+1}, s{sBLK}, 17
          s_add_u32 s{sT+1}, s{sT+1}, {WS_KM + 6144}
          s_mov_b64 exec, 0x3ff
          buffer_store_dwordx4 v[24:27], v21, {W}, s{sT} offen sc1
          s_mov_b64 exec, 0xffff
          buffer_store_dword v24, v22, {W}, s{sT+1} offen sc1
          s_mov_b64 exec, -1
          L_ln1b:''')
    srd(a, S_A, 0, 2*MB)
    a(f's_lshl_b32 s{sAO}, s{sBLK}, 14\n s_add_u32 s{sOUT}, s{sAO}, {WS_XN}')
    ln_task(a, 512, SA, '', 'a')
    a(f's_mov_b32 s{sFLG}, {D_INIT}')
    signal(a, DBG, sFLG, True)
    a('s_branch L_done')
    a('L_ln2:')
    a(f'''s_mov_b32 s{sIDX}, s{sBLK}
          s_lshr_b32 s{sFLG}, s{sIDX}, 3
          s_lshl_b32 s{sFLG}, s{sFLG}, 6
          s_add_u32 s{sFLG}, s{sFLG}, {WS_FLAGS+F_Z2}''')
    wait_flag(a, W, sFLG, 7)
    a(f'''s_mul_i32 s{sAO}, s{sIDX}, {16*1792}
          s_add_u32 s{sOUT}, s{sAO}, {WS_Z2N}
          s_add_u32 s{sAO}, s{sAO}, {WS_Z2}''')
    ln_task(a, 896, W, 'sc1', 'b')
    a(f's_mov_b32 s{sFLG}, {WS_FLAGS+F_Z2N}')
    signal(a, W, sFLG, True)
    a('s_branch L_done')
    a('L_kv:')
    a(f'''s_lshl_b32 s{sBO}, s{sCT}, 8
          s_mov_b32 s{sLDB}, 8192
          s_lshl_b32 s{sOUT}, s{sBLK}, 7
          s_add_u32 s{sOUT}, s{sOUT}, s{sCT}
          s_lshl_b32 s{sOUT}, s{sOUT}, 13
          s_add_u32 s{sSPL}, s{sOUT}, {WS_KM+6144}
          s_mov_b32 s{sDOUT}, {3*128*8192}
          s_mov_b32 s{sDFLG}, {3*128*8192}
          s_mov_b32 s{sDA}, {3*128*1024}
          s_mov_b32 s{sDB}, 0''')
    a_xn()
    a(f's_cmp_eq_u32 s{sEPI}, {TY_V}\n s_cbranch_scc1 L_v')
    srd(a, S_B, 24, 4*MB)
    a(f's_add_u32 s{sOUT}, s{sOUT}, {WS_KX}\n s_mov_b32 s{sEPI}, 0\n s_branch L_gs')
    a('L_v:')
    if opt.get('prof'): a('s_memrealtime s[78:79]')
    srd(a, S_B, 32, 4*MB)
    a(f's_add_u32 s{sOUT}, s{sOUT}, {WS_VX}')
    gemm_task_addr(a)
    gemm_start(a)
    a('L_vt:')
    gemm_tile(a, False, 'n')
    epi_v(a)
    copy_blocks(a)
    def next_tile(kind, Lt):
        a(f'''s_mov_b32 s{sPEND}, s{sSPL}
              s_mov_b32 s{sPK}, {kind}
              s_add_u32 s{sOUT}, s{sOUT}, s{sDOUT}
              s_add_u32 s{sSPL}, s{sSPL}, s{sDFLG}
              s_sub_u32 s{sNT}, s{sNT}, 1
              s_cmp_lg_u32 s{sNT}, 0
              s_cbranch_scc1 {Lt}
              s_branch L_drain''')
    next_tile(1, 'L_vt')
    a('L_q:')
    a(f'''s_lshl_b32 s{sBO}, s{sCT}, 8
          s_mov_b32 s{sLDB}, 8192
          s_lshl_b32 s{sOUT}, s{sBLK}, 7
          s_add_u32 s{sOUT}, s{sOUT}, s{sCT}
          s_lshl_b32 s{sOUT}, s{sOUT}, 13
          s_add_u32 s{sOUT}, s{sOUT}, {WS_QX}
          s_lshl_b32 s{sSPL}, s{sBLK}, 5
          s_add_u32 s{sSPL}, s{sSPL}, s{sCT}
          s_lshl_b32 s{sSPL}, s{sSPL}, 4
          s_add_u32 s{sSPL}, s{sSPL}, {WS_FLAGS+F_KVQ}
          s_mov_b32 s{sDOUT}, 8192
          s_mov_b32 s{sDFLG}, 16''')
    a_xn()
    srd(a, S_B, 16, 4*MB)
    a(f's_mov_b32 s{sEPI}, 1\n s_branch L_gs')
    a('L_win:')
    a(f'''s_lshl_b32 s{sBO}, s{sCT}, 8
          s_mul_i32 s{sOUT}, s{sBLK}, {128*1792}
          s_add_u32 s{sOUT}, s{sOUT}, s{sBO}
          s_add_u32 s{sOUT}, s{sOUT}, {WS_Z1}
          s_lshl_b32 s{sSPL}, s{sBLK}, 6
          s_add_u32 s{sSPL}, s{sSPL}, {WS_FLAGS+F_Z1}
          s_cmp_ge_u32 s{sCT}, 7
          s_cselect_b32 s{sT}, {WS_Z2 - WS_Z1 - 1792}, 0
          s_add_u32 s{sOUT}, s{sOUT}, s{sT}
          s_cmp_ge_u32 s{sCT}, 7
          s_cselect_b32 s{sT}, {F_Z2-F_Z1}, 0
          s_add_u32 s{sSPL}, s{sSPL}, s{sT}
          s_mov_b32 s{sLDB}, 3584
          s_mov_b32 s{sDOUT}, {128*1792}
          s_mov_b32 s{sDFLG}, 64
          s_mov_b32 s{sDA}, {128*1024}
          s_mov_b32 s{sDB}, 0
          s_mov_b32 s{sOSTR}, 1792''')
    a_xn()
    srd(a, S_B, 64, 512*3584)
    a(f's_mov_b32 s{sEPI}, 2\n s_branch L_gs')
    a('L_sp:')
    a(f'''s_mov_b32 s{sFLG}, {WS_FLAGS+F_Z2N}''')
    wait_flag(a, W, sFLG, 128, bar=False)
    a(f's_lshl_b32 s{sFLG}, s{sBLK}, 6\n s_add_u32 s{sSPL}, s{sFLG}, {WS_FLAGS+F_GZ}\n s_add_u32 s{sFLG}, s{sFLG}, {WS_FLAGS+F_Z1}')
    wait_flag(a, W, sFLG, 7)
    srd(a, S_A, 72, 8*MB); srd_ws(a, S_B); srd(a, S_C, 80, 4096)
    a(f'''s_lshl_b32 s{sAO}, s{sBLK}, 19
          s_mov_b32 s{sLDA}, 4096
          s_lshl_b32 s{sT}, s{sCT}, 8
          s_add_u32 s{sBO}, s{sT}, {WS_Z2N}
          s_mov_b32 s{sLDB}, 1792
          s_mov_b32 s{sNST}, 32
          s_mul_i32 s{sOUT}, s{sBLK}, {128*1792}
          s_add_u32 s{sOUT}, s{sOUT}, s{sT}
          s_add_u32 s{sAUX}, s{sOUT}, {WS_Z1}
          s_add_u32 s{sOUT}, s{sOUT}, {WS_GZ}
          s_lshl_b32 s{sAUX2}, s{sBLK}, 8
          s_mov_b32 s{sOSTR}, 1792
          s_mov_b32 s{sEPI}, 3
          s_branch L_gs''')
    a('L_ob:')
    a(f'''s_lshl_b32 s{sIDX}, s{sBLK}, 2
          s_add_u32 s{sIDX}, s{sIDX}, s{sCT}
          s_lshl_b32 s{sFLG}, s{sBLK}, 6
          s_add_u32 s{sFLG}, s{sFLG}, {WS_FLAGS+F_GZ}''')
    wait_flag(a, W, sFLG, 7)
    srd_ws(a, S_A); srd(a, S_B, 88, 896*1024)
    a(f'''s_mul_i32 s{sAO}, s{sBLK}, {128*1792}
          s_add_u32 s{sAO}, s{sAO}, {WS_GZ}
          s_mov_b32 s{sLDA}, 1792
          s_lshl_b32 s{sBO}, s{sCT}, 8
          s_mov_b32 s{sLDB}, 1024
          s_mov_b32 s{sNST}, 14
          s_lshl_b32 s{sOUT}, s{sBLK}, 17
          s_add_u32 s{sOUT}, s{sOUT}, s{sBO}
          s_add_u32 s{sOUT}, s{sOUT}, {WS_OB}
          s_mov_b32 s{sOSTR}, 1024
          s_lshl_b32 s{sSPL}, s{sIDX}, 4
          s_add_u32 s{sSPL}, s{sSPL}, {WS_FLAGS+F_OB}
          s_mov_b32 s{sEPI}, 4
          s_branch L_gs''')
    a('L_att:')
    a(f'''
          s_lshl_b32 s{sFLG}, s{sBLK}, 5
          s_add_u32 s{sFLG}, s{sFLG}, s{sCT}
          s_lshl_b32 s{sFLG}, s{sFLG}, 4
          s_add_u32 s{sFLG}, s{sFLG}, {WS_FLAGS+F_KVQ}''')
    wait_flag(a, W, sFLG, 1, bar=False)
    a(f'''s_lshl_b32 s{sFLG}, s{sCT}, 6
          s_add_u32 s{sFLG}, s{sFLG}, {WS_FLAGS+F_CH}
          s_lshl_b32 s{sAUX}, s{sBLK}, 2
          s_add_u32 s{sAUX}, s{sAUX}, 4''')
    wait_flag(a, W, sFLG, f's{sAUX}')
    if opt.get('prof'): a('s_memrealtime s[78:79]')
    att_task(a)
    a(f'''s_lshl_b32 s{sFLG}, s{sBLK}, 2
          s_lshr_b32 s{sT}, s{sCT}, 3
          s_add_u32 s{sFLG}, s{sFLG}, s{sT}
          s_lshl_b32 s{sFLG}, s{sFLG}, 4
          s_add_u32 s{sFLG}, s{sFLG}, {WS_FLAGS+F_ATT}''')
    signal(a, W, sFLG, True)
    a('s_branch L_done')
    a('L_g3:')
    a(f'''s_lshr_b32 s{sSPL}, s{sCT}, 2
          s_and_b32 s{sCT}, s{sCT}, 3
          s_lshl_b32 s{sFLG}, s{sBLK}, 2
          s_add_u32 s{sFLG}, s{sFLG}, s{sSPL}
          s_lshl_b32 s{sFLG}, s{sFLG}, 4
          s_add_u32 s{sFLG}, s{sFLG}, {WS_FLAGS+F_ATT}''')
    wait_flag(a, W, sFLG, 8)
    srd_ws(a, S_A); srd(a, S_B, 40, 4*MB); srd(a, S_C, 0, 2*MB); srd(a, S_D, 96, 2*MB)
    a(f'''s_lshl_b32 s{sAO}, s{sBLK}, 20
          s_lshl_b32 s{sT}, s{sSPL}, 11
          s_add_u32 s{sAO}, s{sAO}, s{sT}
          s_add_u32 s{sAO}, s{sAO}, {WS_OX}
          s_mov_b32 s{sLDA}, 8192
          s_lshl_b32 s{sBO}, s{sSPL}, 20
          s_lshl_b32 s{sT}, s{sCT}, 8
          s_add_u32 s{sBO}, s{sBO}, s{sT}
          s_mov_b32 s{sLDB}, 1024
          s_mov_b32 s{sNST}, 16
          s_lshl_b32 s{sOUT}, s{sBLK}, 17
          s_add_u32 s{sOUT}, s{sOUT}, s{sT}
          s_add_u32 s{sAUX}, s{sOUT}, {WS_OB}
          s_mov_b32 s{sOSTR}, 1024
          s_mov_b32 s{sEPI}, 5''')
    a('L_gs:')
    if opt.get('prof'): a('s_memrealtime s[78:79]')
    gemm_task_addr(a)
    gemm_start(a)
    a('L_st:')
    gemm_tile(a, True, 's')
    a(f's_cmp_ge_u32 s{sEPI}, 2\n s_cbranch_scc1 L_e2')
    epi_kq(a)
    copy_blocks(a)
    a(f's_cmp_eq_u32 s{sEPI}, 0\n s_cbranch_scc0 L_nt2')
    next_tile(1, 'L_st')
    a('L_e2:')
    a(f's_cmp_lg_u32 s{sEPI}, 2\n s_cbranch_scc1 L_e3')
    a(f's_mov_b32 s{sC0}, 0x3d372713\n s_mov_b32 s{sC1}, 0xc0135761')
    epi_row(a, True)
    a('L_plain:')
    rows_phase(a, 'plain')
    a('L_nt2:')
    next_tile(2, 'L_st')
    a('L_e3:')
    a(f's_cmp_eq_u32 s{sEPI}, 5\n s_cbranch_scc1 L_e5')
    epi_row(a, False)
    a(f's_cmp_eq_u32 s{sEPI}, 4\n s_cbranch_scc1 L_plain')
    rows_phase(a, 'gate')
    a('s_branch L_nt2')
    a('L_drain:')
    a('s_waitcnt vmcnt(0)\n s_barrier')
    pend_signal(a)
    a('s_branch L_done')
    a('L_e5:')
    a(f'''s_lshl_b32 s{sIDX}, s{sBLK}, 2
          s_add_u32 s{sIDX}, s{sIDX}, s{sCT}
          s_lshl_b32 s{sX}, s{sIDX}, 18
          s_lshl_b32 s{sT}, s{S_WAVE}, 14
          s_add_u32 s{sX}, s{sX}, s{sT}
          s_add_u32 s{sX}, s{sX}, {WS_PART}
          s_lshl_b32 s{sT}, s{sSPL}, 16
          s_add_u32 s{sY}, s{sX}, s{sT}
          v_lshlrev_b32 v23, 4, v{vLN}''')
    for q in range(16):
        a(f'buffer_store_dwordx4 {ar(4*q,4)}, v23, {W}, s{sY} offen offset:{(q&3)*1024} sc1')
        if q & 3 == 3: a(f's_add_u32 s{sY}, s{sY}, 4096')
    a(f's_waitcnt vmcnt(0)\n s_barrier\n s_lshl_b32 s{sFLG}, s{sIDX}, 4\n s_add_u32 s{sFLG}, s{sFLG}, {WS_FLAGS+F_SPL}')
    atomic_ret(a, 24, 0, 1, W, f's{sFLG}')
    a('s_waitcnt vmcnt(0)')
    bcast_ticket(a, 24, sT+8)
    a(f's_cmp_lg_u32 s{sT+8}, 3\n s_cbranch_scc1 L_done')
    a(f's_lshl_b32 s{sFLG}, s{sIDX}, 4\n s_add_u32 s{sFLG}, s{sFLG}, {WS_FLAGS+F_OB}')
    wait_flag(a, W, sFLG, 1)
    a(f'v_lshlrev_b32 v23, 4, v{vLN}')
    for half in range(2):
        for sp in range(4):
            for q in range(8):
                if q % 4 == 0: a(f's_add_u32 s{sY}, s{sX}, {sp*65536 + half*8192 + (q>>2)*4096}')
                a(f'buffer_load_dwordx4 {vr(64+32*sp+4*q,4)}, v23, {W}, s{sY} offen offset:{(q&3)*1024} sc1')
        a('s_waitcnt vmcnt(0)')
        for i in range(32):
            a(f'''v_add_f32 v{64+i}, v{64+i}, v{96+i}
                  v_add_f32 v{128+i}, v{128+i}, v{160+i}
                  v_add_f32 v{64+i}, v{64+i}, v{128+i}
                  v_accvgpr_write_b32 a{32*half+i}, v{64+i}''')
    a('s_nop 1')
    epi_row(a, False)
    rows_phase(a, 'final')
    a('s_waitcnt vmcnt(0)\n s_barrier')
    a('L_done:')
    if opt.get('prof'):
        a(f'''s_memrealtime s[80:81]
              s_waitcnt lgkmcnt(0)
              v_mov_b32 v24, s76
              v_mov_b32 v25, s78
              v_mov_b32 v26, s80
              v_mov_b32 v27, s{S_XCC}
              s_lshl_b32 s{sT}, s{sTASK}, 4
              s_add_u32 s{sT}, s{sT}, {200*MB}
              s_mov_b64 exec, 1
              buffer_store_dwordx4 v[24:27], v{vZ}, {W}, s{sT} offen
              s_mov_b64 exec, -1''')
    a(f's_cmp_eq_u32 s{sFIRST}, 1\n s_cbranch_scc1 L_chk\n s_cmp_eq_u32 s{sLNM}, 1\n s_cbranch_scc1 L_next\n s_branch L_claim\n L_chk:')
    a(f'''s_mov_b32 s{sFIRST}, 0
          buffer_load_dword v21, v{vZ}, {DBG}, 0 offen sc1
          s_waitcnt vmcnt(0)''')
    a(f'v_mov_b32 v24, v21')
    bcast_ticket(a, 24, sT+8)
    a(f's_cmp_lt_u32 s{sT+8}, 32\n s_cbranch_scc1 L_tryrole')
    a(f's_cmp_lt_u32 s{sPH}, {len(PH)}\n s_cbranch_scc1 L_claim\n s_branch L_end')
    a('L_wdone:')
    a(f's_cmp_eq_u32 s{sFIRST}, 1\n s_cbranch_scc1 L_chk\n s_branch L_end')

    a('L_chain:')
    copt = dict(opt)
    Wc = W
    def kvwait(a, first):
        if first:
            L = a.label('kw')
            a(f'''s_lshl_b32 s{C.S_T0}, s{S_HEAD}, 13
                  s_add_u32 s{C.S_T0}, s{C.S_T0}, {WS_KM+6144}
                  s_mov_b32 s{C.S_T0+1}, {D_INIT}
                  s_mov_b32 s{C.S_T0+3}, 0
                  {L}:
                  s_add_u32 s{C.S_T0+3}, s{C.S_T0+3}, 1
                  s_cmp_gt_u32 s{C.S_T0+3}, 0x40000
                  s_cbranch_scc1 L_end
                  buffer_load_dword v16, v{C.PMZ+1}, {DBG}, s{C.S_T0+1} offen sc1
                  s_waitcnt vmcnt(0)
                  buffer_load_dword v17, v{C.PMZ+1}, {Wc}, s{C.S_T0} offen sc1
                  s_waitcnt vmcnt(0)
                  v_lshrrev_b32 v16, 6, v16
                  v_min_u32 v16, v16, v17
                  s_nop 0
                  v_readfirstlane_b32 s{C.S_T0+2}, v16
                  s_nop 3
                  s_cmp_lg_u32 s{C.S_T0+2}, 2
                  s_cbranch_scc1 {L}
                  v_mov_b32 v{C.vT+1}, 2''')
        else:
            L = a.label('kw'); Lx = a.label('kwx')
            a(f'''v_readlane_b32 s{C.S_T0}, v{C.vT+1}, 32
                  s_cmp_ge_u32 s{C.S_STEP}, 62
                  s_cbranch_scc1 {Lx}
                  s_cmp_eq_u32 s{C.S_T0}, 2
                  s_cbranch_scc1 {Lx}
                  s_sub_u32 s{C.S_T0+1}, s{C.S_KXO}, {32*8192}
                  s_mov_b32 exec_lo, 0
                  {L}:
                  s_add_u32 s{C.S_TO}, s{C.S_TO}, 16
                  s_cmp_gt_u32 s{C.S_TO}, 0x400000
                  s_cbranch_scc1 L_end
                  buffer_load_dword v{C.vT+1}, v{C.vTch}, {Wc}, s{C.S_T0+1} offen sc1
                  s_waitcnt vmcnt(0)
                  v_readlane_b32 s{C.S_T0}, v{C.vT+1}, 32
                  s_nop 3
                  s_cmp_lg_u32 s{C.S_T0}, 2
                  s_cbranch_scc1 {L}
                  s_mov_b64 exec, -1
                  {Lx}:''')
    def kmflag(a, last):
        L = a.label('kf')
        if last:
            a(f's_mov_b32 s{C.S_T0}, 64\n s_cmp_lg_u32 s{S_WAVE}, 0\n s_cbranch_scc1 {L}')
        else:
            a(f'''s_sub_u32 s{C.S_T0}, s{C.S_STEP}, 1
                  s_and_b32 s{C.S_T0+1}, s{C.S_T0}, 3
                  s_or_b32 s{C.S_T0+1}, s{C.S_T0+1}, s{S_WAVE}
                  s_cmp_lg_u32 s{C.S_T0+1}, 0
                  s_cbranch_scc1 {L}''')
        a(f'''s_lshl_b32 s{C.S_T0+1}, s{S_HEAD}, 6
              s_add_u32 s{C.S_T0+1}, s{C.S_T0+1}, {WS_FLAGS+F_CH}
              v_mov_b32 v{C.vT}, s{C.S_T0}
              s_mov_b64 exec, 1
              buffer_store_dword v{C.vT}, v{C.PMZ+1}, {Wc}, s{C.S_T0+1} offen sc1
              s_mov_b64 exec, -1
              {L}:''')
    copt['kvwait'] = kvwait; copt['kmflag'] = kmflag
    C.chain_setup(a, copt)
    a(f'''
    s_barrier
    s_cmp_eq_u32 s{S_XCC}, {opt.get('team_xcc',0)}
    s_cselect_b32 s{C.S_T0}, 1, 0x10001
    v_mov_b32 v16, s{C.S_T0}
    v_mov_b32 v17, {D_TEAM}
    s_mov_b32 s{C.S_T0+3}, 0
    s_cmp_lg_u32 s{S_WAVE}, 0
    s_cbranch_scc1 L_cspin
    s_mov_b64 exec, 1
    buffer_atomic_add v16, v17, {DBG}, 0 offen
    s_mov_b64 exec, -1
    L_cspin:
    s_add_u32 s{C.S_T0+3}, s{C.S_T0+3}, 1
    s_cmp_gt_u32 s{C.S_T0+3}, 0x40000
    s_cbranch_scc1 L_end
    buffer_load_dword v16, v17, {DBG}, 0 offen sc1
    s_waitcnt vmcnt(0)
    v_readfirstlane_b32 s{C.S_T0}, v16
    s_nop 3
    s_and_b32 s{C.S_T0+1}, s{C.S_T0}, 0xffff
    s_cmp_lt_u32 s{C.S_T0+1}, 32
    s_cbranch_scc1 L_cspin
    s_mov_b32 s59, s{C.S_T0}
    ''')
    C.chain_masks(a)
    a(f'''buffer_load_dwordx4 v[16:19], v{C.vOr}, {W}, s{C.S_INL} offen sc1
          buffer_load_dwordx4 v[20:23], v{C.vOr}, {W}, s{C.S_INL} offen offset:1024 sc1''')
    for s in range(1, C.RING):
        a(f'''s_mov_b32 s{C.S_T0}, {WS_MEM + s*8192}
              buffer_load_dwordx4 v[16:19], v{C.vMld}, {W}, s{C.S_T0} offen sc1
              buffer_load_dwordx4 v[20:23], v{C.vMld}, {W}, s{C.S_T0} offen offset:1024 sc1''')
    a(f's_waitcnt vmcnt(0)\n s_cmp_gt_u32 s59, 0xffff\n s_cbranch_scc1 L_slow')
    C.chain_loop(a, copt, '', 'f')
    a('s_branch L_end\n L_slow:')
    C.chain_loop(a, copt, 'sc1', 's')
    a('L_end:\n s_endpgm')
    a('.p2align 4\n.type task_table,@object\ntask_table:')
    words = table_words(PH)
    for i in range(0, len(words), 8): a('.long ' + ', '.join(hex(x) for x in words[i:i+8]))
    a(f'.size task_table, {4*len(words)}')
    head = HDR + f'''; @launch grid=(256,1,1) block=(256,1,1) lds=163840
.amdgcn_target "amdgcn-amd-amdhsa--gfx950"
.text
.globl {NAME}
.p2align 8
.type {NAME},@function
{NAME}:
'''
    tail = f'''.section .rodata,"a"
.p2align 6
.amdhsa_kernel {NAME}
  .amdhsa_next_free_vgpr 512
  .amdhsa_next_free_sgpr 102
  .amdhsa_accum_offset 256
  .amdhsa_group_segment_fixed_size 0
  .amdhsa_kernarg_size 120
  .amdhsa_user_sgpr_count 2
  .amdhsa_user_sgpr_kernarg_segment_ptr 1
  .amdhsa_system_sgpr_workgroup_id_x 1
.end_amdhsa_kernel
'''
    return head + a.text() + tail

if __name__ == '__main__':
    out = sys.argv[1] if len(sys.argv) > 1 else 'parallel_sum__memory_aug_recurrent_mem_tr__mixer_gmlp__prompt.s'
    open(out,'w').write(gen({}))
```

```python
from common import *

S_WS   = 4
S_DBG  = 8
S_A    = 12
S_B    = 16
S_C    = 20
S_D    = 24
S_XCC  = 28
S_WAVE = 29
S_HEAD = 30
S_T0   = 31
S_STEP = 40
S_MEMO = 41
S_MEMN = 42
S_INO  = 43
S_KXO  = 44
S_VXO  = 45
S_KVL  = 46
S_INL  = 47
S_VMO  = 51
S_KMO  = 48
S_TO   = 49
S_C1   = 50
S_MT0  = 52
S_MT1  = 54
S_MST  = 56
S_PH   = 58
S_STAMP= 60

WREG = 36864
SH = 4*WREG
L_KV = 32768
PS = SH + 8192

vLANE=1; vL=2; vM=[3,4,5,6]; vN=[7,8,9,10]; vQTw=11; vQr=12; vKr=13; vOw=14; vOr=15
AF = lambda s: 16+4*s
ACC = [48,52,56,60]
SB = lambda i: 64+8*i
vIdx=96; vPst=97; vMld=98; vMst=99; vSel=100
VMQ=104; vKVr=108; vT=109; vKMst=111
PMZ=0
RESV=128
V0=112; V1=116; XA=[120,124]
vTch = vKVr
RING = 4

def wfrag(mat, s, t):
    if mat == 'v': return ar(8*(2*s+t), 8)
    if mat == 'o':
        tp = t >> 1
        if tp == 3: return None
        return ar(128 + 8*(2*(2*tp+s) + (t&1)), 8)
    if mat == 'k':
        if s in (2,3): return ar(224 + 8*(2*(s-2)+t), 8)
        if s in (4,5): return vr(RESV + 8*(2*(s-4)+t), 8)
        return None
    if mat == 'q':
        if s < 2: return None
        return vr(RESV + 32 + 8*(2*(s-2)+t), 8)
STREAMED = [('q',0),('k',0),('q',1),('k',1),('k',6),('k',7),('o',(0,3)),('o',(1,3))]
def home(mat, key, t):
    return STREAMED.index((mat,key))*4096 + t*2048

def padd(d, x, y):
    return f'v_add_f32 v{d}, v{x}, v{y}\n v_add_f32 v{d+1}, v{x+1}, v{y+1}'
def smf(a, acc, A, B):
    a(f'v_smfmac_f32_16x16x64_bf16 {vr(acc,4)}, {vr(A,4)}, {B}, {vr(vIdx)}')

def chain_setup(a, opt):
    a(f'''
    s_load_dwordx4 s[{S_T0+1}:{S_T0+4}], s[0:1], 16
    s_load_dwordx4 s[{S_T0+5}:{S_T0+8}], s[0:1], 32
    v_and_b32 v{vLANE}, 63, v0
    s_waitcnt lgkmcnt(0)
    s_mov_b32 s{S_A}, s{S_T0+1}
    s_mov_b32 s{S_A+1}, s{S_T0+2}
    s_mov_b32 s{S_A+2}, 0x400000
    s_mov_b32 s{S_A+3}, 0x20000
    s_mov_b32 s{S_B}, s{S_T0+3}
    s_mov_b32 s{S_B+1}, s{S_T0+4}
    s_mov_b32 s{S_B+2}, 0x400000
    s_mov_b32 s{S_B+3}, 0x20000
    s_mov_b32 s{S_C}, s{S_T0+5}
    s_mov_b32 s{S_C+1}, s{S_T0+6}
    s_mov_b32 s{S_C+2}, 0x400000
    s_mov_b32 s{S_C+3}, 0x20000
    s_mov_b32 s{S_D}, s{S_T0+7}
    s_mov_b32 s{S_D+1}, s{S_T0+8}
    s_mov_b32 s{S_D+2}, 0x400000
    s_mov_b32 s{S_D+3}, 0x20000
    ''')
    a(f'''
    v_lshrrev_b32 v20, 2, v{vLANE}
    v_and_b32 v21, 3, v{vLANE}
    v_lshlrev_b32 v16, 13, v20
    v_lshl_add_u32 v16, v21, 4, v16
    s_lshl_b32 s{S_T0}, s{S_HEAD}, 8
    s_lshl_b32 s{S_T0+1}, s{S_WAVE}, 6
    s_add_u32 s{S_T0}, s{S_T0}, s{S_T0+1}
    v_add_u32 v16, s{S_T0}, v16
    v_lshlrev_b32 v17, 10, v20
    v_lshl_add_u32 v17, v21, 4, v17
    s_lshl_b32 s{S_T0}, s{S_HEAD}, 17
    s_lshl_b32 s{S_T0+1}, s{S_WAVE}, 8
    s_add_u32 s{S_T0}, s{S_T0}, s{S_T0+1}
    v_add_u32 v17, s{S_T0}, v17
    s_mul_i32 s{S_T0+2}, s{S_WAVE}, {WREG}
    s_lshl_b32 s{S_T0+3}, s{S_WAVE}, 1          ; 2w
    ''')
    units = [('v',s) for s in range(8)] + [('o',(kb,tp)) for tp in range(3) for kb in range(2)] + \
            [('k',s) for s in range(2,6)] + [('q',s) for s in range(2,8)] + STREAMED
    assert len(units) == 32
    def issue(n):
        mat, key = units[n]
        slot = (n+3) % 9
        if mat == 'o':
            kb2, tp = key
            for i in range(4):
                a(f'''s_add_u32 m0, s{S_T0+2}, {slot*4096 + i*1024}
                      s_mov_b32 s{S_T0+4}, {kb2*65536 + i*16384 + tp*64}
                      buffer_load_dwordx4 v17, s[{S_D}:{S_D+3}], s{S_T0+4} offen lds''')
        else:
            srd = {'q':S_A,'k':S_B,'v':S_C}[mat]
            a(f's_xor_b32 s{S_T0+5}, s{S_T0+3}, {key}\n s_lshl_b32 s{S_T0+5}, s{S_T0+5}, 19')
            for i in range(4):
                a(f'''s_add_u32 m0, s{S_T0+2}, {slot*4096 + i*1024}
                      s_add_u32 s{S_T0+4}, s{S_T0+5}, {i*131072}
                      buffer_load_dwordx4 v16, s[{srd}:{srd+3}], s{S_T0+4} offen lds''')
    for n in range(9): issue(n)
    a(f'''
    v_lshrrev_b32 v22, 4, v{vLANE}            ; g
    v_and_b32 v23, 15, v{vLANE}               ; j / i
    v_bfe_u32 v24, v{vLANE}, 2, 2
    v_and_b32 v25, 3, v{vLANE}                ; c
    v_lshrrev_b32 v26, 1, v22                 ; g>>1
    v_and_b32 v27, 1, v22                     ; g&1
    v_lshrrev_b32 v28, 1, v24                 ; r>>1
    v_and_b32 v29, 1, v24                     ; r&1
    v_lshl_add_u32 v18, v26, 2, v27
    v_lshl_add_u32 v18, v28, 1, v18
    v_lshl_add_u32 v18, v29, 4, v18
    v_lshlrev_b32 v18, 6, v18
    v_lshl_add_u32 v18, v25, 4, v18
    v_add_u32 v18, s{S_T0+2}, v18
    v_lshl_add_u32 v19, v26, 4, v29
    v_lshl_add_u32 v19, v27, 2, v19
    v_lshl_add_u32 v19, v28, 3, v19
    v_lshlrev_b32 v19, 6, v19
    v_lshl_add_u32 v19, v25, 3, v19
    v_add_u32 v19, s{S_T0+2}, v19
    ; vL
    v_lshlrev_b32 v30, 4, v{vLANE}            ; lane*16
    v_add_u32 v{vL}, s{S_T0+2}, v30
    v_lshlrev_b32 v31, 2, v{vLANE}            ; lane*4
    ''')
    for p in range(4):
        a(f'''s_xor_b32 s{S_T0+4}, s{S_WAVE}, {p}
              s_lshl_b32 s{S_T0+4}, s{S_T0+4}, 11
              s_add_u32 s{S_T0+5}, s{S_T0+4}, {SH}
              v_add_u32 v{vM[p]}, s{S_T0+5}, v30
              s_add_u32 s{S_T0+5}, s{S_T0+4}, {PS+1024}
              v_add_u32 v{vN[p]}, s{S_T0+5}, v31''')
    a(f'''
    s_lshl_b32 s{S_T0+4}, s{S_WAVE}, 11
    s_add_u32 s{S_T0+4}, s{S_T0+4}, {PS}
    v_lshlrev_b32 v{vQTw}, 7, v22
    v_lshl_add_u32 v{vQTw}, v23, 2, v{vQTw}
    v_add_u32 v{vQTw}, s{S_T0+4}, v{vQTw}
    v_and_b32 v32, 7, v23                     ; m
    v_lshrrev_b32 v33, 3, v23                 ; T
    v_lshlrev_b32 v{vQr}, 6, v32
    v_lshl_add_u32 v{vQr}, v27, 4, v{vQr}
    v_mov_b32 v34, 1280
    v_cmp_eq_u32 vcc, v26, v33
    s_nop 1
    v_cndmask_b32 v{vQr}, v34, v{vQr}, vcc
    v_add_u32 v{vQr}, s{S_T0+4}, v{vQr}
    v_lshl_add_u32 v35, v24, 1, v26           ; key
    v_lshlrev_b32 v{vKr}, 6, v35
    v_lshl_add_u32 v{vKr}, v27, 4, v{vKr}
    v_add_u32 v{vKr}, s{S_T0+4}, v{vKr}
    v_add_u32 v{vKr}, 512, v{vKr}
    v_and_b32 v36, 1, v{vLANE}
    v_lshl_add_u32 v{vKr}, v36, 5, v{vKr}
    v_lshlrev_b32 v{vKMst}, 8, v35
    v_lshl_add_u32 v{vKMst}, v27, 4, v{vKMst}
    v_lshl_add_u32 v{vKMst}, v36, 5, v{vKMst}
    s_lshl_b32 s{S_T0+5}, s{S_WAVE}, 6
    v_add_u32 v{vKMst}, s{S_T0+5}, v{vKMst}
    v_cmp_eq_u32 s[{S_MT0}:{S_MT0+1}], 0, v33
    v_cmp_eq_u32 s[{S_MT1}:{S_MT1+1}], 1, v33
    v_lshrrev_b32 v36, 1, v32                 ; m>>1
    v_and_b32 v37, 1, v32                     ; m&1
    v_lshl_add_u32 v{vOw}, v26, 4, v37
    v_lshl_add_u32 v{vOw}, v36, 2, v{vOw}
    v_lshl_add_u32 v{vOw}, v27, 1, v{vOw}
    v_lshlrev_b32 v{vOw}, 4, v{vOw}
    s_lshl_b32 s{S_T0+5}, s{S_WAVE}, 9         ; (w>>1)*1024 + (w&1)*512 = w*512
    s_add_u32 s{S_T0+5}, s{S_T0+5}, {SH}
    v_add_u32 v{vOw}, s{S_T0+5}, v{vOw}
    v_lshlrev_b32 v36, 4, v32
    v_lshl_add_u32 v36, v22, 7, v36
    v_add_u32 v36, s{S_T0+4}, v36
    v_add_u32 v36, 1536, v36
    v_cndmask_b32 v{vOw}, v{vOw}, v36, s[{S_MT1}:{S_MT1+1}]
    v_add_u32 v{vOr}, {SH}, v30
    v_bfe_u32 v38, v{vLANE}, 1, 1
    v_mov_b32 v{vIdx}, 0x4444
    v_mov_b32 v39, 0xeeee
    v_cmp_eq_u32 vcc, 1, v38
    s_nop 1
    v_cndmask_b32 v{vIdx}, v{vIdx}, v39, vcc
    v_mov_b32 v39, 0x3f80
    v_mov_b32 v40, 0x3f800000
    v_cmp_eq_u32 vcc, 1, v28
    s_nop 1
    v_cndmask_b32 v39, v39, v40, vcc
    v_cmp_gt_u32 vcc, 2, v25
    s_nop 1
    v_cndmask_b32 v39, 0, v39, vcc
    v_lshl_add_u32 v40, v29, 1, v25
    ''')
    for d in range(4):
        a(f'''v_cmp_eq_u32 vcc, {d}, v40
              s_nop 1
              v_cndmask_b32 v{vSel+d}, 0, v39, vcc''')
    a(f'''
    s_lshl_b32 s{S_T0+5}, s{S_WAVE}, 3
    v_add_u32 v{vPst}, s{S_T0+5}, v22
    v_lshlrev_b32 v{vPst}, 14, v{vPst}
    v_lshl_add_u32 v{vPst}, v24, 11, v{vPst}
    v_lshl_add_u32 v{vPst}, v25, 4, v{vPst}
    s_lshl_b32 s{S_T0+5}, s{S_HEAD}, 6
    v_add_u32 v{vPst}, s{S_T0+5}, v{vPst}
    s_lshl_b32 s{S_T0+5}, s{S_HEAD}, 14
    s_lshl_b32 s{S_T0+6}, s{S_WAVE}, 11
    s_add_u32 s{S_T0+5}, s{S_T0+5}, s{S_T0+6}
    s_add_u32 s{S_INL}, s{S_T0+5}, {WS_INBOX - SH}
    v_lshlrev_b32 v{vMst}, 7, v26
    v_lshl_add_u32 v{vMst}, v25, 3, v{vMst}
    v_lshl_add_u32 v{vMst}, v27, 2, v{vMst}
    s_lshl_b32 s{S_T0+5}, s{S_HEAD}, 8
    s_lshl_b32 s{S_T0+6}, s{S_WAVE}, 5
    s_add_u32 s{S_T0+5}, s{S_T0+5}, s{S_T0+6}
    v_add_u32 v{vMst}, s{S_T0+5}, v{vMst}
    s_mov_b32 s{S_MST}, 0x000f000f
    s_mov_b32 s{S_MST+1}, 0x000f000f
    v_and_b32 v40, 1, v{vLANE}
    v_lshlrev_b32 v{vMld}, 8, v24
    v_lshl_add_u32 v{vMld}, v40, 7, v{vMld}
    v_lshl_add_u32 v{vMld}, v22, 5, v{vMld}
    v_lshl_add_u32 v{vMld}, v38, 4, v{vMld}
    s_lshl_b32 s{S_T0+5}, s{S_WAVE}, 11
    v_add_u32 v{vMld}, s{S_T0+5}, v{vMld}
    v_lshlrev_b32 v{vTch}, 7, v23
    v_lshl_add_u32 v{vTch}, v27, 24, v{vTch}
    v_add_u32 v{vTch}, {SH + 32*8192}, v{vTch}
    s_sub_u32 s{S_T0+6}, {WS_KM + 6144 - WS_KX + SH + 2*32*8192}, s{S_T0+5}
    v_mov_b32 v40, s{S_T0+6}
    v_cmp_lt_u32 vcc, 31, v{vLANE}
    s_nop 1
    v_cndmask_b32 v{vTch}, v{vTch}, v40, vcc
    s_mov_b32 s{S_C1}, 0x3e0293ee      ; 128^-0.5 * log2(e)
    ''')
    ring = opt.get('ring', RING)
    a(f'''
    v_mov_b32 v44, -1
    v_mov_b32 v45, -1
    v_mov_b32 v46, -1
    v_mov_b32 v47, -1
    buffer_store_dwordx4 v[44:47], v{vOr}, s[{S_WS}:{S_WS+3}], s{S_INL} offen sc1
    buffer_store_dwordx4 v[44:47], v{vOr}, s[{S_WS}:{S_WS+3}], s{S_INL} offen offset:1024 sc1
    s_add_u32 s{S_T0+5}, s{S_INL}, 8192
    buffer_store_dwordx4 v[44:47], v{vOr}, s[{S_WS}:{S_WS+3}], s{S_T0+5} offen sc1
    buffer_store_dwordx4 v[44:47], v{vOr}, s[{S_WS}:{S_WS+3}], s{S_T0+5} offen offset:1024 sc1
    s_load_dwordx2 s[{S_T0+5}:{S_T0+6}], s[0:1], 8
    s_mov_b64 exec, s[{S_MST}:{S_MST+1}]
    ''')
    for s in range(1, ring):
        a(f'''s_mov_b32 s{S_T0+7}, {WS_MEM + s*8192}
              buffer_store_dword v44, v{vMst}, s[{S_WS}:{S_WS+3}], s{S_T0+7} offen sc1''')
    a(f'''
    s_mov_b64 exec, -1
    s_and_b32 s{S_T0+7}, s{S_HEAD}, 3
    s_lshl_b32 s{S_T0+7}, s{S_T0+7}, 11
    s_lshr_b32 s{S_T0+8}, s{S_HEAD}, 2
    s_lshl_b32 s{S_T0+8}, s{S_T0+8}, 7
    s_add_u32 s{S_T0+7}, s{S_T0+7}, s{S_T0+8}
    s_lshl_b32 s{S_T0+8}, s{S_WAVE}, 3
    s_add_u32 s{S_T0+7}, s{S_T0+7}, s{S_T0+8}
    v_lshlrev_b32 v41, 10, v26
    v_lshl_add_u32 v41, v25, 1, v41
    v_lshl_add_u32 v41, v27, 6, v41
    v_add_u32 v41, s{S_T0+7}, v41
    s_waitcnt lgkmcnt(0)
    global_load_ushort v48, v41, s[{S_T0+5}:{S_T0+6}]
    global_load_ushort v49, v41, s[{S_T0+5}:{S_T0+6}] offset:32
    v_mov_b32 v42, 0
    v_add_u32 v43, s{S_T0+4}, v31
    ds_write_b32 v43, v42 offset:1280
    ''')
    nextra = 4 + (ring-1) + 2
    for n in range(32):
        mat, key = units[n]
        slot = (n+3) % 9
        later = 4*min(8, 31-n)
        if n == 0:
            a(f's_waitcnt vmcnt(0)' if False else f's_waitcnt vmcnt({min(63, later + nextra)})')
        elif n <= 8:
            a(f's_waitcnt vmcnt({min(63, later + nextra)})')
        else:
            a(f's_waitcnt vmcnt({later})')
        streamed = (mat, key) in STREAMED
        for t in range(2):
            if mat == 'o':
                dst = wfrag('o', key[0], 2*key[1]+t)
            else:
                dst = wfrag(mat, key, t)
            for rho in range(4):
                if streamed:
                    d = vr(64 + 8*t + 2*rho, 2)
                else:
                    f, base = dst[0], int(dst[2:dst.index(':')])
                    d = f'{f}[{base+2*rho}:{base+2*rho+1}]'
                if mat == 'o':
                    off = (32*(rho>>1) + 2*(rho&1))*64 + 32*t + slot*4096
                    a(f'ds_read_b64_tr_b16 {d}, v19 offset:{off}')
                else:
                    off = (32*(rho&1) + 8*(rho>>1))*64 + 8*t + slot*4096
                    a(f'ds_read_b64_tr_b16 {d}, v18 offset:{off}')
        a('s_waitcnt lgkmcnt(0)')
        if streamed:
            assert slot == STREAMED.index((mat,key))
            for t in range(2):
                a(f'ds_write_b128 v{vL}, {vr(64+8*t,4)} offset:{slot*4096 + t*2048}')
                a(f'ds_write_b128 v{vL}, {vr(68+8*t,4)} offset:{slot*4096 + t*2048 + 1024}')
            a('s_waitcnt lgkmcnt(0)')
        if n + 9 < 32: issue(n+9)
        if n == 9:
            a(f'''
            v_lshl_or_b32 v48, v49, 16, v48
            v_min_u32 v48, -2, v48
            s_mov_b32 s{S_T0+7}, {WS_MEM}
            s_mov_b64 exec, s[{S_MST}:{S_MST+1}]
            buffer_store_dword v48, v{vMst}, s[{S_WS}:{S_WS+3}], s{S_T0+7} offen sc1
            s_mov_b64 exec, -1
            ''')
    a('s_waitcnt vmcnt(0)')

def chain_masks(a):
    a(f'''
    v_mov_b32 v{PMZ}, 0
    v_mov_b32 v{PMZ+1}, 0
    v_mov_b32 v{VMQ}, 0
    v_mov_b32 v{VMQ+1}, 0
    v_mov_b32 v{VMQ+2}, 0
    v_mov_b32 v{VMQ+3}, 0
    ''')

def stamp(a, opt, i, mode=1):
    if opt.get('stamps') == 3:
        if mode == 1 and i in (1,2,5,8,9,10,11): a(f's_memrealtime s[{S_STAMP+2*i}:{S_STAMP+2*i+1}]')
    elif opt.get('stamps') == 4:
        if (mode == 4) or (mode == 1 and i in (0,1,2,8,9,10,11)): a(f's_memtime s[{S_STAMP+2*i}:{S_STAMP+2*i+1}]')
    elif opt.get('stamps') == mode:
        a(f's_memtime s[{S_STAMP+2*i}:{S_STAMP+2*i+1}]')

def chain_loop(a, opt, st, tag):
    ring = opt.get('ring', RING)
    d1 = opt.get('d1', 4); d2 = opt.get('d2', 6)
    W = f's[{S_WS}:{S_WS+3}]'
    Q0,Q1,K0,K1 = ACC
    Ltop = f'L_step_{tag}'; P1 = f'L_p1_{tag}'; P2 = f'L_p2_{tag}'; Lfin = f'L_fin_{tag}'
    TO = lambda out: a(f's_add_u32 s{S_TO}, s{S_TO}, 1\n s_cmp_gt_u32 s{S_TO}, 0x100000\n s_cbranch_scc1 {out}')
    def zl(acc): return [f'v_mov_b32 v{acc+i}, 0' for i in range(4)]
    def zero(acc): a('\n'.join(zl(acc)))
    def sread(dst, mat, key, t):
        off = home(mat, key, t)
        a(f'ds_read_b128 {vr(dst,4)}, v{vL} offset:{off}\n ds_read_b128 {vr(dst+4,4)}, v{vL} offset:{off+1024}')
    a(f"""
    s_mov_b32 s{S_STEP}, 0
    s_mov_b32 s{S_MEMO}, {WS_MEM}
    s_mov_b32 s{S_MEMN}, {WS_MEM + 8192}
    s_mov_b32 s{S_INO}, {WS_INBOX}
    s_lshl_b32 s{S_T0}, s{S_HEAD}, 13
    s_lshl_b32 s{S_T0+1}, s{S_WAVE}, 11
    s_add_u32 s{S_KMO}, s{S_T0}, {WS_KM}
    s_add_u32 s{S_T0}, s{S_T0}, s{S_T0+1}
    s_add_u32 s{S_KXO}, s{S_T0}, {WS_KX - SH}
    s_add_u32 s{S_VXO}, s{S_T0}, {WS_VX - SH}
    s_mul_i32 s{S_KVL}, s{S_WAVE}, {WREG}
    s_add_u32 s{S_KVL}, s{S_KVL}, {L_KV}
    s_lshl_b32 s{S_T0+1}, s{S_WAVE}, 10
    s_add_u32 s{S_VMO}, s{S_KMO}, s{S_T0+1}
    s_add_u32 s{S_VMO}, s{S_VMO}, {2048 - SH - 32*8192}
    s_mov_b32 s{S_TO}, 0
    s_mov_b32 s{S_PH}, 0
    """)
    def kvdma(which=(0,1)):
        for m in which:
            so = S_KXO if m == 0 else S_VXO
            a(f's_add_u32 m0, s{S_KVL}, {m*2048}\n s_nop 0')
            for i in range(2):
                a(f'buffer_load_dwordx4 v{vOr}, {W}, s{so} offen offset:{i*1024} sc1 lds')
            a(f's_add_u32 s{so}, s{so}, {opt.get("kvs",32*8192)}')
    def pre_sb():
        sread(SB(0),'k',0,1); sread(SB(1),'q',1,0); sread(SB(2),'q',1,1); sread(SB(3),'k',1,0)
    def pre_af():
        sread(AF(2),'q',0,0); sread(AF(4),'q',0,1); sread(AF(6),'k',0,0)
    def p2_loads():
        a(f"""buffer_load_dwordx4 {vr(AF(0),4)}, v{vMld}, {W}, s{S_MEMO} offen sc1
              buffer_load_dwordx4 {vr(AF(1),4)}, v{vMld}, {W}, s{S_MEMO} offen offset:1024 sc1""")
    if opt.get('kvwait'): opt['kvwait'](a, first=True)
    kvdma()
    pre_sb(); pre_af()
    for x in ACC + [V0,V1] + XA: zero(x)
    D1p = opt.get('D1', 1); D2p = opt.get('D2', 1)
    chk2 = f"""
    v_max3_u32 v{vT}, v{AF(0)}, v{AF(0)+1}, v{AF(0)+2}
    v_max3_u32 v{vT}, v{vT}, v{AF(0)+3}, v{AF(1)}
    v_max3_u32 v{vT}, v{vT}, v{AF(1)+1}, v{AF(1)+2}
    v_max_u32 v{vT}, v{vT}, v{AF(1)+3}
    v_cmp_eq_u32 vcc, -1, v{vT}
    s_and_b64 exec, vcc, exec
    s_cbranch_execz {P2}x
    """
    p2_loads()
    a(f'{Ltop}:')
    stamp(a, opt, 0)
    a('s_waitcnt vmcnt(0)')
    if opt.get('stamps') == 4: a(f's_mov_b32 s{S_STAMP+14}, 0')
    a(chk2)
    if opt.get('stamps') == 4: a(f's_bcnt1_i32_b64 s{S_STAMP+14}, exec')
    for i in range(D2p-1):
        p2_loads(); a('s_nop 7\n'*opt.get('g2',2))
    a(f'{P2}:')
    p2_loads()
    a(f's_waitcnt vmcnt({2*(D2p-1)})')
    a(chk2)
    a(f"""
    s_add_u32 s{S_TO}, s{S_TO}, 1
    s_cmp_gt_u32 s{S_TO}, 0x100000
    s_cbranch_scc0 {P2}
    {P2}x:
    s_mov_b64 exec, -1
    ds_write_b128 v{vM[0]}, {vr(AF(0),4)}
    ds_write_b128 v{vM[0]}, {vr(AF(1),4)} offset:1024
    s_waitcnt lgkmcnt(2)
    """)
    stamp(a, opt, 1)
    smf(a,Q0,AF(0),vr(AF(2),8))
    if opt.get('tpos',1) == 0 and not opt.get('nodma'): a(f'buffer_load_dword v{vT+1}, v{vTch}, {W}, s{S_KXO} offen sc1')
    smf(a,Q1,AF(0),vr(AF(4),8))
    if opt.get('vmpos',3) == 0 and opt.get('nokm') not in (1,3): a(f'buffer_store_dwordx4 {vr(VMQ,4)}, v{vOr}, {W}, s{S_VMO} offen sc1\n s_add_u32 s{S_VMO}, s{S_VMO}, {32*8192}')
    smf(a,K0,AF(0),vr(AF(6),8)); smf(a,K1,AF(0),vr(SB(0),8))
    a('s_waitcnt lgkmcnt(0)\n s_barrier')
    stamp(a, opt, 2)
    if opt.get('log'):
        a(f'''{'s_memrealtime' if opt.get('prof') else 's_memtime'} s[{S_STAMP}:{S_STAMP+1}]
              s_lshl_b32 s{S_STAMP+2}, s{S_HEAD}, 10
              s_lshl_b32 s{S_STAMP+3}, s{S_WAVE}, 8
              s_add_u32 s{S_STAMP+2}, s{S_STAMP+2}, s{S_STAMP+3}
              s_lshl_b32 s{S_STAMP+3}, s{S_STEP}, 2
              s_add_u32 s{S_STAMP+2}, s{S_STAMP+2}, s{S_STAMP+3}
              s_add_u32 s{S_STAMP+2}, s{S_STAMP+2}, {65536}
              s_waitcnt lgkmcnt(0)
              v_mov_b32 v{vT}, s{S_STAMP}
              s_mov_b64 exec, 1
              buffer_store_dword v{vT}, v{PMZ+1}, {W}, s{S_STAMP+2} offen
              s_mov_b64 exec, -1''')
    vseq = [(s,t) for s in range(8) for t in range(2)]
    def vm(n, fill=()):
        fill = list(fill)
        for _ in range(n):
            if not vseq: break
            s,t = vseq.pop(0)
            smf(a, V0 if t == 0 else V1, AF(s), wfrag('v',s,t))
            a('\n'.join(fill[:2])); fill = fill[2:]
        a('\n'.join(fill))
    rd = []
    for p in (1,2,3):
        rd += [f'ds_read_b128 {vr(AF(2*p),4)}, v{vM[p]}', f'ds_read_b128 {vr(AF(2*p+1),4)}, v{vM[p]} offset:1024']
    a(rd[0]); a(rd[1])
    if opt.get('kvwait'): opt['kvwait'](a, first=False)
    if opt.get('tpos',1) == 1 and not opt.get('nodma'): a(f'buffer_load_dword v{vT+1}, v{vTch}, {W}, s{S_KXO} offen sc1')
    smf(a,Q0,AF(1),vr(SB(1),8)); a(rd[2]); a(rd[3])
    smf(a,Q1,AF(1),vr(SB(2),8)); a(rd[4]); a(rd[5])
    smf(a,K0,AF(1),vr(SB(3),8))
    vm(opt.get('v0',2))
    if opt.get('kmflag'): opt['kmflag'](a, last=False)
    def sr1(dst, mat, key, t, half):
        return f'ds_read_b128 {vr(dst+4*half,4)}, v{vL} offset:{home(mat,key,t)+1024*half}'
    late = [(SB(0),'k',1,1),(SB(1),'k',6,0),(SB(2),'k',6,1),(SB(3),'k',7,0)]
    for s in range(2,8):
        a(f's_waitcnt lgkmcnt({7-s + (0 if s<=2 else 2*min(s-2,4))})')
        smf(a,Q0,AF(s),wfrag('q',s,0))
        if s < 6: a(sr1(*late[s-2],0))
        smf(a,Q1,AF(s),wfrag('q',s,1))
        if s < 6: a(sr1(*late[s-2],1))
        if s == opt.get('vmpos',3) and opt.get('nokm') not in (1,3): a(f'buffer_store_dwordx4 {vr(VMQ,4)}, v{vOr}, {W}, s{S_VMO} offen {opt.get("kmfl","sc1")}\n s_add_u32 s{S_VMO}, s{S_VMO}, {opt.get("kms",32*8192)}')
        if s == opt.get('tpos',1) and not opt.get('nodma'): a(f'buffer_load_dword v{vT+1}, v{vTch}, {W}, s{S_KXO} offen sc1')
    stamp(a, opt, 3)
    a('s_waitcnt lgkmcnt(6)')
    smf(a,K1,AF(1),vr(SB(0),8))
    for s in (2,3,4,5):
        smf(a,K0,AF(s),wfrag('k',s,0))
        if s == 2: a(sr1(SB(0),'k',7,1,0))
        if s == 3: a(padd(Q0,Q0,Q0+2))
        if s == 4: a(f'v_cvt_pk_bf16_f32 v{vT}, v{Q0}, v{Q1}\n v_cvt_pk_bf16_f32 v{PMZ}, v{Q0+1}, v{Q1+1}')
        if s == 5: a('\n'.join(zl(Q0)[:2]))
        smf(a,K1,AF(s),wfrag('k',s,1))
        if s == 2: a(sr1(SB(0),'k',7,1,1))
        if s == 3: a(padd(Q1,Q1,Q1+2))
        if s == 4: a(f'ds_write2_b32 v{vQTw}, v{vT}, v{PMZ} offset0:0 offset1:16')
        if s == 5: a('\n'.join(zl(Q0)[2:]))
    a('s_waitcnt lgkmcnt(1)')
    QB, KX, KM, DX, DM = SB(1), SB(2), SB(0), SB(3), SB(3)+4
    smf(a,K0,AF(6),vr(SB(1),8)); a('\n'.join(zl(Q1)[:2]))
    smf(a,K1,AF(6),vr(SB(2),8)); a('\n'.join(zl(Q1)[2:]))
    smf(a,K0,AF(7),vr(SB(3),8))
    a(f'ds_read_b128 {vr(QB,4)}, v{vQr}')
    smf(a,K1,AF(7),vr(SB(0),8))
    a(f'ds_read_b128 {vr(KX,4)}, v{vL} offset:{L_KV}')
    stamp(a, opt, 4)
    vm(1, [f'ds_read_b128 {vr(QB+4,4)}, v{vQr} offset:32'])
    vm(1, [f'ds_read_b128 {vr(KX+4,4)}, v{vL} offset:{L_KV+1024}'])
    a(f"""
    {padd(K0,K0,K0+2)}
    {padd(K1,K1,K1+2)}
    v_cvt_pk_bf16_f32 v{vT}, v{K0}, v{K1}
    v_cvt_pk_bf16_f32 v{PMZ}, v{K0+1}, v{K1+1}
    ds_write2_b32 v{vQTw}, v{vT}, v{PMZ} offset0:128 offset1:144
    ds_read_b128 {vr(KM,4)}, v{vKr}
    ds_read_b128 {vr(KM+4,4)}, v{vKr} offset:32
    s_waitcnt lgkmcnt(3)
    v_mfma_f32_16x16x32_bf16 {vr(DX,4)}, {vr(KX,4)}, {vr(QB,4)}, 0
    v_mfma_f32_16x16x32_bf16 {vr(DX,4)}, {vr(KX+4,4)}, {vr(QB+4,4)}, {vr(DX,4)}
    """)
    vm(opt.get('va',3), zl(K0)+zl(K1)[:2])
    a(f"""
    s_waitcnt lgkmcnt(0)
    v_mfma_f32_16x16x32_bf16 {vr(DM,4)}, {vr(KM,4)}, {vr(QB,4)}, 0
    v_mfma_f32_16x16x32_bf16 {vr(DM,4)}, {vr(KM+4,4)}, {vr(QB+4,4)}, {vr(DM,4)}
    ds_write_b128 v{vM[0]}, {vr(DX,4)} offset:8192
    """)
    vm(2, zl(K1)[2:])
    a(f"""
    s_nop 0
    ds_write_b32 v{vN[0]}, v{DM}
    """)
    vm(opt.get('vb',3), [] if opt.get('nokm') in (1,2) else [f'buffer_store_dwordx4 {vr(KM,4)}, v{vKMst}, {W}, s{S_KMO} offen ' + opt.get('kmfl','sc1')])
    if opt.get('tpos') == 8: a(f'buffer_load_dword v{vT+1}, v{vTch}, {W}, s{S_KXO} offen sc1')
    if opt.get('dmapos',1) == 1: kvdma((0,))
    a('s_waitcnt lgkmcnt(0)\n s_barrier')
    stamp(a, opt, 5)
    X1, X2, X3, MM = SB(1), SB(1)+4, SB(2), SB(2)+4
    VX = SB(0)
    a(f"""
    ds_read_b128 {vr(X1,4)}, v{vM[1]} offset:8192
    ds_read_b32 v{MM}, v{vN[1]}
    """)
    vm(16, [f'ds_read_b128 {vr(X2,4)}, v{vM[2]} offset:8192', f'ds_read_b32 v{MM+1}, v{vN[2]}',
            f'ds_read_b128 {vr(X3,4)}, v{vM[3]} offset:8192', f'ds_read_b32 v{MM+2}, v{vN[3]}',
            f'ds_read_b128 {vr(VX,4)}, v{vL} offset:{L_KV+2048}', f'ds_read_b128 {vr(VX+4,4)}, v{vL} offset:{L_KV+3072}'])
    a(f's_cmp_eq_u32 s{S_STEP}, 63\n s_cbranch_scc1 {Lfin}')
    a(f"""
    s_waitcnt lgkmcnt(6)
    {padd(DX,DX,X1)}
    {padd(DX+2,DX+2,X1+2)}
    v_add_f32 v{DM}, v{DM}, v{MM}
    s_waitcnt lgkmcnt(4)
    {padd(DX,DX,X2)}
    {padd(DX+2,DX+2,X2+2)}
    v_add_f32 v{DM}, v{DM}, v{MM+1}
    s_waitcnt lgkmcnt(2)
    {padd(DX,DX,X3)}
    {padd(DX+2,DX+2,X3+2)}
    v_add_f32 v{DM}, v{DM}, v{MM+2}
    """)
    stamp(a, opt, 6)
    PX = SB(1)
    mx, tt, E = SB(2), SB(2)+1, SB(2)+2
    DPP = 'row_ror:8 row_mask:0xf bank_mask:0xf'
    a(f"""
    v_max3_f32 v{mx}, v{DX}, v{DX+1}, v{DX+2}
    v_max3_f32 v{mx}, v{mx}, v{DX+3}, v{DM}
    {padd(V0,V0,V0+2)}
    v_max_f32_dpp v{mx}, v{mx}, v{mx} {DPP}
    v_mov_b32 v{tt}, v{mx}
    {padd(V1,V1,V1+2)}
    v_permlane16_swap_b32 v{mx}, v{tt}
    v_max_f32 v{mx}, v{mx}, v{tt}
    v_mov_b32 v{tt}, v{mx}
    v_cvt_pk_bf16_f32 v{VMQ}, v{V0}, v{V0+1}
    v_cvt_pk_bf16_f32 v{VMQ+2}, v{V1}, v{V1+1}
    v_permlane32_swap_b32 v{mx}, v{tt}
    v_max_f32 v{mx}, v{mx}, v{tt}
    v_mul_f32 v{mx}, s{S_C1}, v{mx}
    v_fma_f32 v{E}, v{DX}, s{S_C1}, -v{mx}
    v_fma_f32 v{E+1}, v{DX+1}, s{S_C1}, -v{mx}
    v_exp_f32 v{E}, v{E}
    v_fma_f32 v{E+2}, v{DX+2}, s{S_C1}, -v{mx}
    v_exp_f32 v{E+1}, v{E+1}
    v_fma_f32 v{E+3}, v{DX+3}, s{S_C1}, -v{mx}
    v_exp_f32 v{E+2}, v{E+2}
    v_fma_f32 v{E+4}, v{DM}, s{S_C1}, -v{mx}
    v_exp_f32 v{E+3}, v{E+3}
    v_cvt_pk_bf16_f32 v{PX}, v{E}, v{E+1}
    v_exp_f32 v{E+4}, v{E+4}
    v_cvt_pk_bf16_f32 v{PX+1}, v{E+2}, v{E+3}
    v_mov_b32_dpp v{PX+2}, v{PX} {DPP}
    v_add_f32 v{mx}, v{E}, v{E+1}
    v_mov_b32_dpp v{PX+3}, v{PX+1} {DPP}
    v_mov_b32_dpp v{tt}, v{E+4} {DPP}
    s_waitcnt lgkmcnt(0)
    """)
    stamp(a, opt, 7)
    D0, D1 = V0, V1
    t2 = SB(2)+7
    a(f"""
    v_mfma_f32_16x16x32_bf16 {vr(D0,4)}, {vr(VX,4)}, {vr(PX,4)}, 0
    v_cvt_pk_bf16_f32 v{PMZ}, v{E+4}, v{tt}
    v_add_f32 v{t2}, v{E+2}, v{E+3}
    v_mfma_f32_16x16x32_bf16 {vr(D1,4)}, {vr(VX+4,4)}, {vr(PX,4)}, 0
    v_add_f32 v{mx}, v{mx}, v{t2}
    v_add_f32 v{mx}, v{mx}, v{E+4}
    v_mfma_f32_16x16x16_bf16 {vr(D0,4)}, {vr(VMQ,2)}, {vr(PMZ,2)}, {vr(D0,4)}
    {sr1(AF(0),'o',(0,3),0,0)}
    v_add_f32_dpp v{mx}, v{mx}, v{mx} {DPP}
    v_mfma_f32_16x16x16_bf16 {vr(D1,4)}, {vr(VMQ+2,2)}, {vr(PMZ,2)}, {vr(D1,4)}
    v_mov_b32 v{tt}, v{mx}
    {sr1(AF(0),'o',(0,3),0,1)}
    {sr1(AF(2),'o',(1,3),0,0)}
    v_permlane16_swap_b32 v{mx}, v{tt}
    v_add_f32 v{mx}, v{mx}, v{tt}
    v_mov_b32 v{tt}, v{mx}
    {sr1(AF(2),'o',(1,3),0,1)}
    s_nop 0
    v_permlane32_swap_b32 v{mx}, v{tt}
    v_add_f32 v{mx}, v{mx}, v{tt}
    v_rcp_f32 v{mx}, v{mx}
    s_nop 0
    """)
    OW = SB(1)
    for r in range(4): a(f'v_mul_f32 v{D0+r}, v{D0+r}, v{mx}')
    a(f'v_cvt_pk_bf16_f32 v{OW}, v{D0}, v{D0+1}\n v_cvt_pk_bf16_f32 v{OW+1}, v{D0+2}, v{D0+3}')
    for r in range(4): a(f'v_mul_f32 v{D1+r}, v{D1+r}, v{mx}')
    a(f"""
    v_cvt_pk_bf16_f32 v{OW+2}, v{D1}, v{D1+1}
    v_cvt_pk_bf16_f32 v{OW+3}, v{D1+2}, v{D1+3}
    ds_write_b128 v{vOw}, {vr(OW,4)}
    """)
    accs = [XA[0], XA[1], Q0, Q1, K0, K1, SB(3), SB(3)+4]
    zero(accs[6]); zero(accs[7])
    if opt.get('dmapos',1) == 1: kvdma((1,))
    a('s_waitcnt lgkmcnt(0)\n s_barrier')
    stamp(a, opt, 8)
    OF = SB(0)
    a(f'ds_read_b128 {vr(OF,4)}, v{vOr}\n ds_read_b128 {vr(OF+4,4)}, v{vOr} offset:1024')
    sread(AF(4),'o',(0,3),1); sread(AF(6),'o',(1,3),1)
    OUT = SB(2)
    def wo(kb2, t):
        r = wfrag('o', kb2, t)
        if r: return r
        return {(0,6):vr(AF(0),8),(1,6):vr(AF(2),8),(0,7):vr(AF(4),8),(1,7):vr(AF(6),8)}[(kb2,t)]
    def post(t):
        x = accs[t]
        return [f'v_add_f32 v{x}, v{x}, v{x+2}', f'v_add_f32 v{x+1}, v{x+1}, v{x+3}', f'v_cvt_pk_bf16_f32 v{OUT+t}, v{x}, v{x+1}', f'v_bfi_b32 v{OUT+t}, 1, s{S_PH}, v{OUT+t}']
    a('s_waitcnt lgkmcnt(5)')
    smf(a, accs[0], OF, wo(0,0)); smf(a, accs[1], OF, wo(0,1))
    a('s_waitcnt lgkmcnt(4)')
    smf(a, accs[0], OF+4, wo(1,0)); smf(a, accs[1], OF+4, wo(1,1))
    pend = []
    for t in range(2,8):
        if t == 7: a('s_waitcnt lgkmcnt(0)')
        smf(a, accs[t], OF, wo(0,t))
        if t == 3: pend += post(1)
        if t >= 4: pend += post(t-2)
        n = 3 if t in (3,4) else 2
        a('\n'.join(pend[:n])); pend = pend[n:]
        smf(a, accs[t], OF+4, wo(1,t))
        if t == 2: pend += post(0)
        a('\n'.join(pend[:2])); pend = pend[2:]
        if t == 5:
            assert not pend
            a(f'buffer_store_dwordx4 {vr(OUT,4)}, v{vPst}, {W}, s{S_INO} offen {st}')
    assert not pend
    a(f's_add_u32 s{S_T0}, s{S_INO}, 0x10000')
    a('\n'.join(post(6)))
    a('s_nop 0')
    a('\n'.join(post(7)))
    a(f'buffer_store_dwordx4 {vr(OUT+4,4)}, v{vPst}, {W}, s{S_T0} offen {st}')
    stamp(a, opt, 9)
    if opt.get('dmapos',1) == 0: kvdma()
    R0, R1, RD = AF(0), AF(1), AF(4)
    a('s_nop 7\n'*d1)
    def p1_loads():
        a(f"""buffer_load_dwordx4 {vr(R0,4)}, v{vOr}, {W}, s{S_INL} offen sc1
              buffer_load_dwordx4 {vr(R1,4)}, v{vOr}, {W}, s{S_INL} offen offset:1024 sc1""")
    fill = [f'v_mov_b32 v{RD+4+i}, -1' for i in range(2)]
    for x in [Q0,Q1,V0,V1] + XA + [K0,K1]: fill += zl(x)
    stamp(a,opt,3,4)
    p1_loads()
    pre_sb()
    a('\n'.join(fill))
    a(f's_branch {P1}c')
    a(f"""
    {P1}:
    s_add_u32 s{S_TO}, s{S_TO}, 1
    s_cmp_gt_u32 s{S_TO}, 0x100000
    s_cbranch_scc1 {P1}x
    """)
    p1_loads()
    a(f"""
    s_mov_b64 exec, -1
    {P1}c:
    s_waitcnt vmcnt(1)
    v_mfma_f32_16x16x32_bf16 {vr(RD,4)}, {vr(vSel,4)}, {vr(R0,4)}, 0
    v_bitop3_b32 v{vT}, v{R0}, v{R0+1}, s{S_PH} bitop3:0x7e
    v_bitop3_b32 v{RD+6}, v{R0+2}, v{R0+3}, s{S_PH} bitop3:0x7e
    s_waitcnt vmcnt(0)
    v_mfma_f32_16x16x32_bf16 {vr(RD,4)}, {vr(vSel,4)}, {vr(R1,4)}, {vr(RD,4)}
    v_bitop3_b32 v{RD+7}, v{R1}, v{R1+1}, s{S_PH} bitop3:0x7e
    v_or3_b32 v{vT}, v{vT}, v{RD+6}, v{RD+7}
    v_bitop3_b32 v{RD+6}, v{R1+2}, v{R1+3}, s{S_PH} bitop3:0x7e
    v_bitop3_b32 v{vT}, v{vT}, v{RD+6}, 1 bitop3:0xa8
    v_cmp_ne_u32 vcc, 0, v{vT}
    s_mov_b64 exec, vcc
    s_cbranch_execnz {P1}
    {P1}x:
    s_mov_b64 exec, -1
    """)
    stamp(a, opt, 10)
    a(f"""
    v_add_f32_dpp v{RD}, v{RD}, v{RD} row_ror:8 row_mask:0xf bank_mask:0xf
    v_add_f32_dpp v{RD+1}, v{RD+1}, v{RD+1} row_ror:8 row_mask:0xf bank_mask:0xf
    s_nop 0
    v_add_f32_dpp v{RD}, v{RD}, v{RD} row_ror:4 row_mask:0xf bank_mask:0xf
    v_add_f32_dpp v{RD+1}, v{RD+1}, v{RD+1} row_ror:4 row_mask:0xf bank_mask:0xf
    s_mov_b64 exec, s[{S_MST}:{S_MST+1}]
    v_cvt_pk_bf16_f32 v{vT}, v{RD}, v{RD+1}
    buffer_store_dword v{vT}, v{vMst}, {W}, s{S_MEMN} offen {st}
    """)
    if ring < 64:
        a(f'buffer_store_dword v{RD+4}, v{vMst}, {W}, s{S_MEMO} offen {st}')
    a(f"""
    s_mov_b64 exec, -1
    s_add_u32 s{S_STEP}, s{S_STEP}, 1
    s_mov_b32 s{S_MEMO}, s{S_MEMN}
    s_add_u32 s{S_T0}, s{S_STEP}, 1
    s_and_b32 s{S_T0}, s{S_T0}, {ring-1}
    s_lshl_b32 s{S_T0}, s{S_T0}, 13
    s_add_u32 s{S_MEMN}, s{S_T0}, {WS_MEM}
    s_xor_b32 s{S_PH}, s{S_PH}, 1
    s_add_u32 s{S_KMO}, s{S_KMO}, {opt.get('kms',32*8192)}
    """)
    if opt.get('tpos') == 9: a(f's_sub_u32 s{S_T0}, s{S_KXO}, {32*8192}')
    stamp(a, opt, 11)
    if opt.get('stamps'):
        L = a.label('ns')
        a(f's_waitcnt lgkmcnt(0)\n s_cmp_eq_u32 s{S_STEP}, {opt.get("sstep",43)+1}\n s_cbranch_scc0 {L}')
        for i in range(12): a(f's_mov_b32 s{84+i}, s{S_STAMP+2*i}')
        a(f'{L}:')
    a('s_nop 7\n'*d2)
    p2_loads()
    pre_af()
    a(f's_branch {Ltop}')
    a(f'{Lfin}:')
    a(f"""s_nop 7
    {padd(V0,V0,V0+2)}
    {padd(V1,V1,V1+2)}
    v_cvt_pk_bf16_f32 v{VMQ}, v{V0}, v{V0+1}
    v_cvt_pk_bf16_f32 v{VMQ+2}, v{V1}, v{V1+1}
    """)
    a(f'buffer_store_dwordx4 {vr(VMQ,4)}, v{vOr}, {W}, s{S_VMO} offen sc1')
    a('s_waitcnt vmcnt(0) lgkmcnt(0)\n s_barrier')
    if opt.get('kmflag'): opt['kmflag'](a, last=True)
```

```python
NAME = 'parallel_sum__memory_aug_recurrent_mem_tr__mixer_gmlp__prompt_kernel'

KB = 1024; MB = 1 << 20
WS_FLAGS  = 0
WS_INBOX  = 512*KB
WS_MEM    = WS_INBOX + 512*KB
WS_XN     = 2*MB
WS_KM     = 128*MB
WS_KX     = 16*MB
WS_VX     = 32*MB
WS_QX     = 48*MB
WS_OX     = 64*MB
WS_Z1     = 80*MB
WS_Z2     = 84*MB
WS_Z2N    = 88*MB
WS_GZ     = 92*MB
WS_OB     = 96*MB
WS_PART   = 160*MB
WS_SIZE   = 256*MB

class Asm:
    def __init__(self):
        self.l = []
        self.n = 0
    def __call__(self, s):
        for line in s.split('\n'):
            line = line.strip()
            if line:
                self.l.append(('' if line.endswith(':') else '  ') + line)
    def label(self, base):
        self.n += 1
        return f'L_{base}_{self.n}'
    def text(self):
        return '\n'.join(self.l) + '\n'

def vr(a, n=1):
    return f'v{a}' if n == 1 else f'v[{a}:{a+n-1}]'
def ar(a, n=1):
    return f'a{a}' if n == 1 else f'a[{a}:{a+n-1}]'
def sr(a, n=1):
    return f's{a}' if n == 1 else f's[{a}:{a+n-1}]'

F_KVQ  = 0
F_CH   = 8192
F_Z1   = 10240
F_Z2   = 11264
F_GZ   = 12288
F_FT   = 16640
F_FTQ  = 13312
F_ATT  = 13312
F_OB   = 14336
F_SPL  = 15360
F_Z2N  = 16384
F_DONE = 20480
DN_FT=0; DN_Z1=64; DN_Z2=80; DN_GZ=96; DN_Z2N=112
F_SIZE = 36864
D_ROLE=0; D_TEAM=4; D_INITC=12; D_INIT=128; D_TEAMF=192
PH_OFF=[16,32,20,64,24]
```

```python
from common import *
from worker import *
from chain import S_WAVE, S_B

STF = 'sc1'
NB = 6; BST = 16384; EPA = 0; BR = 65536
ACC = 128
sPK_=12; sPV_=14; sPQ_=20; sPW_=22
sL0=24
sCUR=41; sNXT=43
vB8=vAe; vB3=vAo
vBu=[vAc, vAc+1, vAc+2, vAc+3]
vBb=[24,25,26,27]

def loader_switch(a, ent, TY):
    a(f'''
    s_and_b32 s{sT}, s{ent}, 15
    s_bfe_u32 s{sT+1}, s{ent}, 0x8000c
    s_mov_b32 s{S_B}, s{sPK_}
    s_mov_b32 s{S_B+1}, s{sPK_+1}
    s_cmp_eq_u32 s{sT}, {TY['V']}
    s_cselect_b32 s{S_B}, s{sPV_}, s{S_B}
    s_cselect_b32 s{S_B+1}, s{sPV_+1}, s{S_B+1}
    s_cmp_eq_u32 s{sT}, {TY['Q']}
    s_cselect_b32 s{S_B}, s{sPQ_}, s{S_B}
    s_cselect_b32 s{S_B+1}, s{sPQ_+1}, s{S_B+1}
    s_mov_b32 s{S_B+2}, 0x400000
    s_mov_b32 s{sLDB}, 8192
    s_cmp_eq_u32 s{sT}, {TY['WIN']}
    s_cselect_b32 s{S_B}, s{sPW_}, s{S_B}
    s_cselect_b32 s{S_B+1}, s{sPW_+1}, s{S_B+1}
    s_cselect_b32 s{S_B+2}, {512*3584}, s{S_B+2}
    s_cselect_b32 s{sLDB}, 3584, s{sLDB}
    s_cselect_b64 vcc, -1, 0
    s_mov_b32 s{S_B+3}, 0x20000
    v_cndmask_b32 v{vBs}, v{vB8}, v{vB3}, vcc
    s_lshl_b32 s{sB4}, s{sLDB}, 2
    s_lshl_b32 s{sT+2}, s{sLDB}, 4
    s_mul_i32 s{sT+2}, s{sT+2}, s{S_WAVE}
    s_lshl_b32 s{sBK}, s{sT+1}, 8
    s_add_u32 s{sBK}, s{sBK}, s{sT+2}
    ''')

def bdma():
    out = []
    for i in range(4):
        out.append([f's_add_u32 m0, s{sDST}, {BR+i*1024}',
                    f's_add_u32 s{sY}, s{sY}, s{sB4}' if i else f's_mov_b32 s{sY}, s{sBK}',
                    f'buffer_load_dwordx4 v{vBs}, {SBd}, s{sY} offen lds'])
    out[-1] += [f's_lshl_b32 s{sT}, s{sLDB}, 6', f's_add_u32 s{sBK}, s{sBK}, s{sT}',
                f's_add_u32 s{sDST}, s{sDST}, {BST}', f's_cmp_ge_u32 s{sDST}, {NB*BST}',
                f's_cselect_b32 s{sT}, {NB*BST}, 0', f's_sub_u32 s{sDST}, s{sDST}, s{sT}']
    return out

def g1_start(a, TY):
    a(f'''
    s_load_dwordx4 s[{sT+1}:{sT+4}], s[0:1], 16
    s_load_dwordx2 s[{sT+5}:{sT+6}], s[0:1], 32
    s_load_dwordx2 s[{sT+7}:{sT+8}], s[0:1], 64
    v_lshrrev_b32 v21, 3, v{vLN}
    v_lshlrev_b32 v21, 10, v21
    v_and_b32 v22, 7, v{vLN}
    v_lshrrev_b32 v23, 4, v{vLN}
    v_xor_b32 v22, v22, v23
    v_lshl_add_u32 v28, v22, 4, v21
    v_xor_b32 v29, 64, v28
    s_lshl_b32 s{sAK}, s{sBLK}, 18
    s_lshl_b32 s{sT}, s{S_WAVE}, 16
    s_add_u32 s{sAK}, s{sAK}, s{sT}
    s_add_u32 s{sAK}, s{sAK}, {WS_XN}
    s_lshl_b32 s{sM0}, s{S_WAVE}, 15
    s_lshl_b32 s{sT}, s{sWM}, 13
    s_sub_u32 s{sT}, s{sM0}, s{sT}
    v_add_u32 v{vAc}, s{sT}, v{vAr}
    v_add_u32 v{vAc+1}, s{sT}, v{vAr+1}
    v_add_u32 v{vAc+2}, s{sT}, v{vAr+2}
    v_add_u32 v{vAc+3}, s{sT}, v{vAr+3}
    v_lshrrev_b32 v21, 4, v{vLN}
    v_and_b32 v23, 15, v{vLN}
    v_lshlrev_b32 v22, 2, v21
    v_xor_b32 v23, v23, v22
    v_lshlrev_b32 v23, 4, v23
    v_lshl_add_u32 v{vB8}, v21, 13, v23
    v_mul_u32_u24 v22, 3584, v21
    v_add_u32 v{vB3}, v22, v23
    s_lshl_b32 s{sT}, s{sWN}, 7
    v_xor_b32 v{vBb[0]}, s{sT}, v{vBr}
    v_add_u32 v{vBb[0]}, {BR-16384}, v{vBb[0]}
    v_xor_b32 v{vBb[1]}, 64, v{vBb[0]}
    v_xor_b32 v{vBb[2]}, 128, v{vBb[0]}
    v_xor_b32 v{vBb[3]}, 192, v{vBb[0]}
    s_waitcnt lgkmcnt(0)
    s_mov_b32 s{sPQ_}, s{sT+1}
    s_mov_b32 s{sPQ_+1}, s{sT+2}
    s_mov_b32 s{sPK_}, s{sT+3}
    s_mov_b32 s{sPK_+1}, s{sT+4}
    s_mov_b32 s{sPV_}, s{sT+5}
    s_mov_b32 s{sPV_+1}, s{sT+6}
    s_mov_b32 s{sPW_}, s{sT+7}
    s_mov_b32 s{sPW_+1}, s{sT+8}
    ''')

def g1_load_a(a):
    def issue(c):
        for i in range(8):
            a(f'''s_add_u32 m0, s{sM0}, {(c&3)*8192 + i*1024}
                  s_add_u32 s{sX}, s{sAK}, {c*128 + i*8192}
                  buffer_load_dwordx4 v{29 if i&1 else 28}, {W}, s{sX} offen sc1 lds''')
    for c in range(4): issue(c)
    for c in range(8):
        a(f's_waitcnt vmcnt({8*min(3,7-c)})')
        for ks in range(4):
            for mt in range(2):
                a(f'ds_read_b128 {ar(128*mt + 16*c + 4*ks,4)}, v{vAc+ks} offset:{(c&3)*8192 + mt*4096}')
        if c + 4 < 8:
            a('s_waitcnt lgkmcnt(0)')
            issue(c+4)
    a('s_waitcnt lgkmcnt(0)\n s_barrier')

def g1_tile(a, swapped, tag, TY):
    Fb = FR
    def reads(ks, buf):
        b = Fb + 16*buf
        return [f'ds_read_b64_tr_b16 {vr(b+4*nt+2*rho,2)}, v{vBu[nt]} offset:{ks*4096+rho*1024}' for nt in range(4) for rho in range(2)]
    for j in range(8):
        L = a.label('g1w')
        if j <= 1:
            a(f'''s_cmp_lg_u32 s{sPK}, 0
                  s_cbranch_scc1 {L}
                  s_waitcnt vmcnt(16)
                  {L}:
                  s_waitcnt vmcnt(32)
                  s_barrier''')
        elif j == 2:
            a(f'''s_cmp_eq_u32 s{sPK}, 0
                  s_cbranch_scc1 {L}
                  s_waitcnt vmcnt(8)
                  {L}:
                  s_waitcnt vmcnt(16)
                  s_barrier''')
        else:
            a('s_waitcnt vmcnt(16)\n s_barrier')
        for i in range(4): a(f'v_add_u32 v{vBu[i]}, s{sSTG}, v{vBb[i]}')
        a('\n'.join(reads(0,0)))
        if j == 2: pend2(a)
        if j == 7: pend3(a)
        if j == 3: loader_switch(a, sNXT, TY)
        a(f's_add_u32 s{sSTG}, s{sSTG}, {BST}\n s_cmp_ge_u32 s{sSTG}, {NB*BST}\n s_cselect_b32 s{sT}, {NB*BST}, 0\n s_sub_u32 s{sSTG}, s{sSTG}, s{sT}')
        d = bdma()
        for ks in range(4):
            nxt = reads(ks+1,(ks+1)&1) if ks < 3 else []
            a('\n'.join(nxt))
            a(f's_waitcnt lgkmcnt({len(nxt)})')
            b = Fb + 16*(ks&1)
            for nt in range(4):
                for mt in range(2):
                    acc = vr(ACC + 16*(4*mt+nt),16)
                    A_, B_ = ar(128*mt + 16*j + 4*ks,4), vr(b+4*nt,4)
                    if swapped: A_, B_ = B_, A_
                    c = '0' if (j == 0 and ks == 0) else acc
                    a(f'v_mfma_f32_32x32x16_bf16 {acc}, {A_}, {B_}, {c}')
                if nt == 1: a('\n'.join(d.pop(0)))
    a('s_nop 15')

def pend2(a):
    L = a.label('ps')
    a(f'''s_cmp_eq_u32 s{sPK}, 0
          s_cbranch_scc1 {L}
          s_cmp_eq_u32 s{sPK}, 1
          s_cselect_b32 s{sT}, 255, 3
          s_cmp_eq_u32 s{sPK}, 3
          s_cselect_b32 s{sWC}, s{sAUX}, 0
          s_mov_b32 s{sPK}, 0
          s_cmp_lg_u32 s{S_WAVE}, 0
          s_cbranch_scc1 {L}
          v_mov_b32 v{vNXT}, 1
          v_mul_lo_u32 v22, v{vLN}, s{sDFLG}
          s_mov_b32 exec_lo, s{sT}
          s_mov_b32 exec_hi, 0
          buffer_atomic_add v{vNXT}, v22, {W}, s{sPEND} offen sc0
          s_mov_b64 exec, -1
          {L}:''')

def pend3(a):
    L = a.label('pt')
    a(f'''s_cmp_eq_u32 s{sWC}, 0
          s_mov_b32 s{sT}, s{sWC}
          s_mov_b32 s{sWC}, 0
          s_cbranch_scc1 {L}
          s_cmp_lg_u32 s{S_WAVE}, 0
          s_cbranch_scc1 {L}
          v_lshlrev_b32 v22, 7, v{vLN}
          v_mov_b32 v21, 1
          s_mov_b64 exec, 3
          v_cmp_eq_u32 vcc, 6, v{vNXT}
          s_and_b64 exec, exec, vcc
          s_cbranch_execz {L}x
          buffer_store_dword v21, v22, {W}, s{sT} offen sc1
          {L}x:
          s_mov_b64 exec, -1
          {L}:''')

def stage_base(a):
    a(f's_lshl_b32 s{sT}, s{S_WAVE}, 14\n s_add_u32 s{sT}, s{sT}, {EPA}')

def g1_epi_blocks(a, isv):
    if not isv:
        a(f'''v_bfe_u32 v21, v{vLN}, 4, 1
              v_lshrrev_b32 v22, 5, v{vLN}
              v_and_b32 v23, 15, v{vLN}
              v_lshlrev_b32 v{vE1}, 9, v21
              v_lshl_add_u32 v{vE1}, v22, 8, v{vE1}
              v_lshl_add_u32 v{vE1}, v23, 4, v{vE1}''')
    else:
        a(f'''v_lshrrev_b32 v21, 5, v{vLN}
              v_bfe_u32 v22, v{vLN}, 3, 1
              v_bfe_u32 v23, v{vLN}, 4, 1
              v_and_b32 v30, 7, v{vLN}
              v_lshl_add_u32 v30, v23, 3, v30
              v_lshl_add_u32 v30, v21, 4, v30
              v_lshlrev_b32 v{vE1}, 4, v30
              v_lshl_add_u32 v{vE1}, v22, 10, v{vE1}''')
    stage_base(a)
    a(f'v_add_u32 v{vE1}, s{sT}, v{vE1}\n v_lshlrev_b32 v21, 4, v{vLN}\n v_add_u32 v22, s{sT}, v21')
    n = 0
    for mt in range(2):
        for nt in range(4):
            x = ACC + 16*(4*mt+nt)
            for h in range(2):
                o = 64 + 4*(n&3); n += 1
                if not isv:
                    for c in range(4): a(f'v_cvt_pk_bf16_f32 v{o+c}, v{x+8*h+c}, v{x+8*h+4+c}')
                    a(f'ds_write_b128 v{vE1}, {vr(o,4)} offset:{mt*8192+nt*2048+h*1024}')
                else:
                    src = [x+4*h, x+4*h+2, x+4*h+8, x+4*h+10]
                    for c in range(4): a(f'v_cvt_pk_bf16_f32 v{o+c}, v{src[c]}, v{src[c]+1}')
                    a(f'ds_write_b128 v{vE1}, {vr(o,4)} offset:{mt*8192+nt*2048+h*512}')
    a(f's_lshl_b32 s{sT}, s{S_WAVE}, 19\n s_add_u32 s{sX}, s{sOUT}, s{sT}')
    for i in range(16): a(f'ds_read_b128 {vr(64+4*i,4)}, v22 offset:{i*1024}')
    for i in range(16):
        a(f's_waitcnt lgkmcnt({15-i})\n buffer_store_dwordx4 {vr(64+4*i,4)}, v21, {W}, s{sX} offen offset:{(i&3)*1024} {STF}')
        if i & 3 == 3: a(f's_add_u32 s{sX}, s{sX}, {4096 if i != 7 else 262144-4096}')

def g1_epi_gelu(a):
    a(f'''
    s_mov_b32 s{sC0}, 0x3d372713
    s_mov_b32 s{sC1}, 0xc0135761
    v_and_b32 v21, 31, v{vLN}
    v_lshrrev_b32 v22, 5, v{vLN}
    v_and_b32 v23, 15, v{vLN}
    v_xor_b32 v22, v22, v23
    v_lshlrev_b32 v{vE1}, 8, v21
    v_lshl_add_u32 v{vE1}, v22, 4, v{vE1}''')
    stage_base(a)
    a(f'''v_add_u32 v{vE1}, s{sT}, v{vE1}
    v_lshrrev_b32 v21, 4, v{vLN}
    v_mul_u32_u24 v30, 1792, v21
    v_lshl_add_u32 v30, v23, 4, v30
    v_xor_b32 v22, v23, v21
    v_lshlrev_b32 v31, 8, v21
    v_lshl_add_u32 v31, v22, 4, v31
    v_add_u32 v31, s{sT}, v31''')
    n = 0
    for nt in range(4):
        for ap in range(2):
            a(f'v_xor_b32 v{vE2}, {(4*nt+2*ap)*16}, v{vE1}')
            for mt in range(2):
                x = ACC + 16*(4*mt+nt) + 8*ap
                t = 64 + 8*(n&1); n += 1
                gelu8(a, x, t)
                for c in range(4): a(f'v_cvt_pk_bf16_f32 v{t+c}, v{x+2*c}, v{x+2*c+1}')
                a(f'ds_write_b128 v{vE2}, {vr(t,4)} offset:{mt*8192}')
    a(f's_mul_i32 s{sT}, s{S_WAVE}, {64*1792}\n s_add_u32 s{sX}, s{sOUT}, s{sT}')
    for i in range(16):
        a(f'v_xor_b32 v23, {(i&3)*64}, v31\n ds_read_b128 {vr(64+4*i,4)}, v23 offset:{i*1024}')
    for i in range(16):
        a(f's_waitcnt lgkmcnt({15-i})\n buffer_store_dwordx4 {vr(64+4*i,4)}, v30, {W}, s{sX} offen sc1\n s_add_u32 s{sX}, s{sX}, {4*1792}')

def g1_task(a, TY, opt):
    a(f'''s_lshr_b32 s{sT}, s{sIDX}, 20
          s_lshl_b32 s{sT}, s{sT}, 4
          s_add_u32 s{sT}, s{sT}, {opt['lists']}
          s_load_dwordx4 s[{sL0}:{sL0+3}], s[{sTB}:{sTB+1}], s{sT}''')
    g1_start(a, TY)
    loader_switch(a, sL0, TY)
    a(f's_lshl_b32 s{sDST}, s{S_WAVE}, 12\n s_add_u32 s{sDST}, s{sDST}, {4*BST}\n s_mov_b32 s{sSTG}, {4*BST}\n s_mov_b32 s{sPK}, 0\n s_mov_b32 s{sWC}, 0')
    for st in range(2):
        for g in bdma(): a('\n'.join(g))
    opt['initwait']()
    if opt.get('prof'): a('s_memrealtime s[78:79]')
    g1_load_a(a)
    for st in range(3):
        for g in bdma(): a('\n'.join(g))
    if opt.get('prof'): a(f's_mov_b32 s{sJ}, 0')
    a('L_g1t:')
    if opt.get('prof'): a('s_memrealtime s[84:85]\n s_memtime s[64:65]')
    a(f'''s_mov_b32 s{sCUR}, s{sL0}
          s_mov_b32 s{sNXT}, s{sL0+1}
          s_mov_b32 s{sL0}, s{sL0+1}
          s_mov_b32 s{sL0+1}, s{sL0+2}
          s_mov_b32 s{sL0+2}, s{sL0+3}
          s_mov_b32 s{sL0+3}, {TY['NOP']}
          s_and_b32 s{sEPI}, s{sCUR}, 15
          s_cmp_eq_u32 s{sEPI}, {TY['V']}
          s_cbranch_scc1 L_g1v''')
    g1_tile(a, True, 's', TY)
    if opt.get('prof'): a('s_memrealtime s[86:87]\n s_memtime s[66:67]')
    a(f's_bfe_u32 s{sSPL}, s{sCUR}, 0x8000c\n s_cmp_eq_u32 s{sEPI}, {TY["WIN"]}\n s_cbranch_scc1 L_g1w')
    a(f'''s_lshl_b32 s{sOUT}, s{sBLK}, 8
          s_add_u32 s{sOUT}, s{sOUT}, s{sSPL}
          s_lshl_b32 s{sOUT}, s{sOUT}, 13
          s_add_u32 s{sPEND}, s{sOUT}, {WS_KM+6144}
          s_mov_b32 s{sDFLG}, 262144
          s_mov_b32 s{sPK}, 1
          s_add_u32 s{sOUT}, s{sOUT}, {WS_KX}
          s_cmp_eq_u32 s{sEPI}, {TY['Q']}
          s_cbranch_scc0 L_g1k
          s_add_u32 s{sOUT}, s{sOUT}, {WS_QX-WS_KX}
          s_lshl_b32 s{sPEND}, s{sBLK}, 6
          s_add_u32 s{sPEND}, s{sPEND}, s{sSPL}
          s_lshl_b32 s{sPEND}, s{sPEND}, 4
          s_add_u32 s{sPEND}, s{sPEND}, {WS_FLAGS+F_KVQ}
          s_mov_b32 s{sDFLG}, 512
          s_mov_b32 s{sPK}, 2
          L_g1k:''')
    g1_epi_blocks(a, False)
    a('s_branch L_g1n')
    a('L_g1w:')
    a(f'''s_lshl_b32 s{sT+1}, s{sSPL}, 8
          s_mul_i32 s{sOUT}, s{sBLK}, {256*1792}
          s_add_u32 s{sOUT}, s{sOUT}, s{sT+1}
          s_add_u32 s{sOUT}, s{sOUT}, {WS_Z1}
          s_lshl_b32 s{sPEND}, s{sBLK}, 7
          s_add_u32 s{sPEND}, s{sPEND}, {WS_FLAGS+F_Z1}
          s_cmp_ge_u32 s{sSPL}, 7
          s_cselect_b32 s{sT}, {WS_Z2 - WS_Z1 - 1792}, 0
          s_add_u32 s{sOUT}, s{sOUT}, s{sT}
          s_cmp_ge_u32 s{sSPL}, 7
          s_cselect_b32 s{sT}, {F_Z2-F_Z1}, 0
          s_add_u32 s{sPEND}, s{sPEND}, s{sT}
          s_mov_b32 s{sDFLG}, 64
          s_lshl_b32 s{sAUX}, s{sBLK}, 8
          s_add_u32 s{sAUX}, s{sAUX}, {WS_FLAGS+F_DONE+DN_Z1*128}
          s_cmp_ge_u32 s{sSPL}, 7
          s_cselect_b32 s{sT}, {(DN_Z2-DN_Z1)*128}, 0
          s_add_u32 s{sAUX}, s{sAUX}, s{sT}
          s_mov_b32 s{sPK}, 3''')
    g1_epi_gelu(a)
    a('s_branch L_g1n')
    a('L_g1v:')
    g1_tile(a, False, 'n', TY)
    if opt.get('prof'): a('s_memrealtime s[86:87]\n s_memtime s[66:67]')
    a(f'''s_bfe_u32 s{sSPL}, s{sCUR}, 0x8000c
          s_lshl_b32 s{sOUT}, s{sBLK}, 8
          s_add_u32 s{sOUT}, s{sOUT}, s{sSPL}
          s_lshl_b32 s{sOUT}, s{sOUT}, 13
          s_add_u32 s{sPEND}, s{sOUT}, {WS_KM+6144}
          s_mov_b32 s{sDFLG}, 262144
          s_mov_b32 s{sPK}, 1
          s_add_u32 s{sOUT}, s{sOUT}, {WS_VX}''')
    g1_epi_blocks(a, True)
    a('L_g1n:')
    if opt.get('prof'):
        L = a.label('pf')
        a(f'''s_memrealtime s[80:81]
              s_waitcnt lgkmcnt(0)
              s_sub_u32 s66, s66, s64
              v_mov_b32 v32, s84
              v_mov_b32 v33, s86
              v_mov_b32 v34, s80
              v_mov_b32 v35, s66
              s_lshl_b32 s{sT}, s{sTASK}, 2
              s_add_u32 s{sT}, s{sT}, s{sJ}
              s_lshl_b32 s{sT}, s{sT}, 4
              s_add_u32 s{sT}, s{sT}, {242*MB}
              s_add_u32 s{sJ}, s{sJ}, 1
              s_cmp_lg_u32 s{S_WAVE}, 0
              s_cbranch_scc1 {L}
              s_mov_b64 exec, 1
              buffer_store_dwordx4 v[32:35], v{vZ}, {W}, s{sT} offen
              s_mov_b64 exec, -1
              {L}:''')
    a(f's_and_b32 s{sT}, s{sL0}, 15\n s_cmp_lg_u32 s{sT}, {TY["NOP"]}\n s_cbranch_scc1 L_g1t')
    a('s_waitcnt vmcnt(0)\n s_barrier')
    pend2(a)
    a('s_waitcnt vmcnt(0)')
    pend3(a)
    for s_ in (S_A,S_C,S_D): srd_ws(a, s_)
    a('s_branch L_done')
```

```python
from common import *
from chain import S_WS, S_DBG, S_A, S_B, S_C, S_D, S_XCC, S_WAVE, S_HEAD

W = f's[{S_WS}:{S_WS+3}]'
DBG = f's[{S_DBG}:{S_DBG+3}]'
SA = f's[{S_A}:{S_A+3}]'; SBd = f's[{S_B}:{S_B+3}]'; SC = f's[{S_C}:{S_C+3}]'; SD = f's[{S_D}:{S_D+3}]'
sT = 31
sTASK=40; sIDX=41; sBLK=42; sCT=43; sLDA=44; sLDB=45; sAO=46; sBO=47; sNST=48; sEPI=49
sSTG=50; sDST=51; sM0=52; sI=53; sAK=54; sBK=55; sOUT=56; sOSTR=57; sFLG=58; sWM=59; sWN=60; sSPL=61; sX=62; sY=63
sRET=64
sEX=66
sAUX=68; sAUX2=69; sFIRST=70; sA8=71; sB4=72; sC0=73; sC1=74; sCNT=75
sNT=82; sLS=83; sLT=84; sA0=85; sB0=86; sWC=87; sPEND=88; sDOUT=89; sDFLG=90; sLNM=91; sJ=92; sPK=93; sDA=94; sDB=95; sPH=96; sQ=97; sHOME=98; sTB=100
vTID=0; vLN=1; vAe=2; vAo=3; vBs=4; vAr=5; vBr=9; vAc=11; vBc=15; vNXT=17; vE1=18; vE2=19; vZ=20; vT0=21
FR = 32
TK_LDS = 0
EP = 131072
STG = 32768

T_LN1=0; T_KV=128; T_WIN=T_KV+256; T_Q=T_WIN+64; T_LN2=T_Q+128; T_SP=T_LN2+128; T_OB=T_SP+112; T_TAIL=T_OB+64; T_END=T_TAIL+16*48

def srd(a, s, karg, nbytes):
    a(f'''s_load_dwordx2 s[{sT+1}:{sT+2}], s[0:1], {karg}
          s_waitcnt lgkmcnt(0)
          s_mov_b32 s{s}, s{sT+1}
          s_mov_b32 s{s+1}, s{sT+2}
          s_mov_b32 s{s+2}, {nbytes}
          s_mov_b32 s{s+3}, 0x20000''')
def srd_ws(a, s):
    a(f'''s_mov_b32 s{s}, s{S_WS}
          s_mov_b32 s{s+1}, s{S_WS+1}
          s_mov_b32 s{s+2}, {WS_SIZE}
          s_mov_b32 s{s+3}, 0x20000''')

def wait_flag(a, srd_, off_sgpr, target, sleep=8, bar=True):
    L = a.label('wf'); Lx = a.label('wfx')
    a(f'''s_cmp_lg_u32 s{S_WAVE}, 0
          s_cbranch_scc1 {Lx}
          s_mov_b32 s{sT+1}, 0
          s_mov_b64 exec, 1
          {L}:
          buffer_load_dword v21, v{vZ}, {srd_}, s{off_sgpr} offen sc1
          s_add_u32 s{sT+1}, s{sT+1}, 1
          s_waitcnt vmcnt(0)
          v_readfirstlane_b32 s{sT}, v21
          s_cmp_gt_u32 s{sT+1}, 0x40000
          s_cbranch_scc1 {Lx}
          s_cmp_ge_u32 s{sT}, {target}
          s_cbranch_scc1 {Lx}
          s_sleep {sleep}
          s_branch {L}
          {Lx}:
          s_mov_b64 exec, -1''')
    if bar: a('s_barrier')

def signal2(a, srd_, cnt_sgpr, n, flag_sgpr):
    L = a.label('sg')
    a(f'''s_waitcnt vmcnt(0)
          s_barrier
          s_cmp_lg_u32 s{S_WAVE}, 0
          s_cbranch_scc1 {L}
          v_mov_b32 v21, 1
          s_mov_b64 exec, 1
          buffer_atomic_add v21, v{vZ}, {srd_}, s{cnt_sgpr} offen sc0
          s_waitcnt vmcnt(0)
          v_cmp_eq_u32 vcc, {n-1}, v21
          v_mov_b32 v21, 1
          s_and_b64 exec, exec, vcc
          s_cbranch_execz {L}x
          buffer_store_dword v21, v{vZ}, {srd_}, s{flag_sgpr} offen sc1
          {L}x:
          s_mov_b64 exec, -1
          {L}:''')

def signal(a, srd_, off_sgpr, atomic):
    L = a.label('sg')
    a(f'''s_waitcnt vmcnt(0)
          s_barrier
          s_cmp_lg_u32 s{S_WAVE}, 0
          s_cbranch_scc1 {L}
          v_mov_b32 v21, 1
          s_mov_b64 exec, 1
          {'buffer_atomic_add v21' if atomic else 'buffer_store_dword v21'}, v{vZ}, {srd_}, s{off_sgpr} offen {'' if atomic else 'sc1'}
          s_mov_b64 exec, -1
          {L}:''')

def gemm_setup_consts(a):
    a(f'''
    v_and_b32 v{vLN}, 63, v{vTID}
    v_mov_b32 v{vZ}, 0
    s_lshr_b32 s{sWM}, s{S_WAVE}, 1
    s_and_b32 s{sWN}, s{S_WAVE}, 1
    v_and_b32 v21, 31, v{vLN}
    v_lshrrev_b32 v22, 5, v{vLN}
    v_bfe_u32 v23, v{vLN}, 1, 3
    v_xor_b32 v22, v22, v23
    v_lshlrev_b32 v24, 7, v21
    v_lshl_add_u32 v24, v22, 4, v24
    s_lshl_b32 s{sT}, s{sWM}, 13
    v_add_u32 v{vAr}, s{sT}, v24
    v_xor_b32 v{vAr+1}, 32, v{vAr}
    v_xor_b32 v{vAr+2}, 64, v{vAr}
    v_xor_b32 v{vAr+3}, 96, v{vAr}
    v_bfe_u32 v21, v{vLN}, 4, 1          ; nh
    v_lshrrev_b32 v22, 5, v{vLN}         ; kh
    v_bfe_u32 v23, v{vLN}, 2, 2          ; r
    v_and_b32 v24, 1, v{vLN}
    v_bfe_u32 v25, v{vLN}, 1, 1
    v_lshl_add_u32 v25, v24, 1, v25      ; 2*(c&1) + (c>>1)
    v_lshl_add_u32 v25, v21, 2, v25
    v_lshl_add_u32 v26, v22, 3, v23
    v_lshlrev_b32 v26, 8, v26
    v_lshl_add_u32 v26, v25, 3, v26
    s_lshl_b32 s{sT}, s{sWN}, 1
    v_xor_b32 v27, s{sT}, v23
    v_lshl_add_u32 v{vBr}, v27, 6, v26
    v_add_u32 v{vBr}, 16384, v{vBr}
    v_xor_b32 v{vBr+1}, 64, v{vBr}
    ''')

def gemm_task_addr(a):
    a(f'''
    v_lshrrev_b32 v21, 3, v{vLN}
    v_mul_lo_u32 v21, v21, s{sLDA}
    v_and_b32 v22, 7, v{vLN}
    v_lshrrev_b32 v23, 4, v{vLN}
    v_xor_b32 v22, v22, v23
    v_lshl_add_u32 v{vAe}, v22, 4, v21
    v_xor_b32 v{vAo}, 64, v{vAe}
    v_lshrrev_b32 v21, 4, v{vLN}
    v_mul_lo_u32 v22, v21, s{sLDB}
    v_and_b32 v23, 15, v{vLN}
    v_lshlrev_b32 v21, 2, v21
    v_xor_b32 v23, v23, v21
    v_lshl_add_u32 v{vBs}, v23, 4, v22
    s_lshl_b32 s{sA8}, s{sLDA}, 3
    s_lshl_b32 s{sB4}, s{sLDB}, 2
    s_lshl_b32 s{sT}, s{sLDA}, 5
    s_mul_i32 s{sT}, s{sT}, s{S_WAVE}
    s_add_u32 s{sAK}, s{sAO}, s{sT}
    s_lshl_b32 s{sT}, s{sLDB}, 4
    s_mul_i32 s{sT}, s{sT}, s{S_WAVE}
    s_add_u32 s{sBK}, s{sBO}, s{sT}
    s_lshl_b32 s{sDST}, s{S_WAVE}, 12
    s_mov_b32 s{sSTG}, 0
    s_mov_b32 s{sA0}, s{sAK}
    s_mov_b32 s{sB0}, s{sBK}
    s_mov_b32 s{sLS}, s{sNST}
    s_mul_i32 s{sLT}, s{sNST}, s{sNT}
    s_mov_b32 s{sPK}, 0
    ''')

def dma_list():
    out = []
    for i in range(4):
        out.append([f's_add_u32 m0, s{sDST}, {i*1024}',
                    f's_add_u32 s{sX}, s{sX}, s{sA8}' if i else f's_mov_b32 s{sX}, s{sAK}',
                    f'buffer_load_dwordx4 v{vAo if i&1 else vAe}, {SA}, s{sX} offen sc1 lds'])
    for i in range(4):
        out.append([f's_add_u32 m0, s{sDST}, {16384+i*1024}',
                    f's_add_u32 s{sY}, s{sY}, s{sB4}' if i else f's_mov_b32 s{sY}, s{sBK}',
                    f'buffer_load_dwordx4 v{vBs}, {SBd}, s{sY} offen sc1 lds'])
    out[-1] += [f's_add_u32 s{sAK}, s{sAK}, 128',
                f's_lshl_b32 s{sT}, s{sLDB}, 6', f's_add_u32 s{sBK}, s{sBK}, s{sT}',
                f's_add_u32 s{sDST}, s{sDST}, {STG}', f's_and_b32 s{sDST}, s{sDST}, {4*STG-1}',
                f's_sub_u32 s{sLT}, s{sLT}, 1',
                f's_sub_u32 s{sLS}, s{sLS}, 1', f's_cmp_eq_u32 s{sLS}, 0',
                f's_cselect_b32 s{sT}, s{sDB}, 0', f's_cselect_b32 s{sT+1}, s{sDA}, 0', f's_add_u32 s{sB0}, s{sB0}, s{sT}', f's_add_u32 s{sA0}, s{sA0}, s{sT+1}', f's_cmp_eq_u32 s{sLS}, 0',
                f's_cselect_b32 s{sAK}, s{sA0}, s{sAK}', f's_cselect_b32 s{sBK}, s{sB0}, s{sBK}', f's_cselect_b32 s{sLS}, s{sNST}, s{sLS}']
    return out

def frag_reads(ks, buf):
    b = FR + 16*buf
    r = []
    for mt in range(2):
        r.append(f'ds_read_b128 {vr(b+4*mt,4)}, v{vAc+ks} offset:{mt*4096}')
    for nt in range(2):
        for rho in range(2):
            r.append(f'ds_read_b64_tr_b16 {vr(b+8+4*nt+2*rho,2)}, v{vBc+nt} offset:{ks*4096+rho*1024}')
    return r

def stage(a, swapped, dma):
    for i in range(4): a(f'v_add_u32 v{vAc+i}, s{sSTG}, v{vAr+i}')
    for i in range(2): a(f'v_add_u32 v{vBc+i}, s{sSTG}, v{vBr+i}')
    a('\n'.join(frag_reads(0,0)))
    d = dma_list() if dma else []
    a(f's_add_u32 s{sSTG}, s{sSTG}, {STG}\n s_and_b32 s{sSTG}, s{sSTG}, {4*STG-1}')
    if d: a('\n'.join(d.pop(0)))
    for ks in range(4):
        nxt = frag_reads(ks+1, (ks+1)&1) if ks < 3 else []
        a('\n'.join(nxt))
        a(f's_waitcnt lgkmcnt({len(nxt)})')
        b = FR + 16*(ks&1)
        for mt in range(2):
            for nt in range(2):
                acc = ar(16*(2*mt+nt),16)
                A_, B_ = vr(b+4*mt,4), vr(b+8+4*nt,4)
                if swapped: A_, B_ = B_, A_
                a(f'v_mfma_f32_32x32x16_bf16 {acc}, {A_}, {B_}, {acc}')
                if d and (2*mt+nt) in (0,2): a('\n'.join(d.pop(0)))
    assert not d

def pend_signal(a):
    L = a.label('ps')
    a(f'''s_cmp_eq_u32 s{sPK}, 0
          s_cbranch_scc1 {L}
          s_cmp_eq_u32 s{sPK}, 1
          s_cselect_b32 s{sT}, 15, 1
          s_mov_b32 s{sPK}, 0
          s_cmp_lg_u32 s{S_WAVE}, 0
          s_cbranch_scc1 {L}
          v_mov_b32 v21, 1
          v_lshlrev_b32 v22, 18, v{vLN}
          s_mov_b32 exec_lo, s{sT}
          s_mov_b32 exec_hi, 0
          buffer_atomic_add v21, v22, {W}, s{sPEND} offen
          s_mov_b64 exec, -1
          {L}:''')

def gemm_start(a):
    for st in range(3):
        for g in dma_list(): a('\n'.join(g))

def gemm_tile(a, swapped, tag):
    for i in range(64): a(f'v_accvgpr_write_b32 a{i}, 0')
    a(f's_mov_b32 s{sJ}, 0')
    L = f'L_gl_{tag}'; Ln = f'L_gn_{tag}'; Lx = f'L_gx_{tag}'
    a(f'''{L}:
          s_cmp_eq_u32 s{sLT}, 0
          s_cbranch_scc1 {Ln}
          s_cmp_lt_u32 s{sJ}, 3
          s_cselect_b32 s{sT}, s{sPK}, 0
          s_cmp_lg_u32 s{sT}, 0
          s_cbranch_scc1 {L}a
          s_waitcnt vmcnt(16)
          s_barrier''')
    pend_signal(a)
    a(f'''s_branch {L}b
          {L}a:
          s_waitcnt vmcnt(24)
          s_barrier
          {L}b:''')
    stage(a, swapped, True)
    a(f's_add_u32 s{sJ}, s{sJ}, 1\n s_cmp_lt_u32 s{sJ}, s{sNST}\n s_cbranch_scc1 {L}\n s_branch {Lx}')
    a(f'{Ln}:')
    for vm in (16,8,0):
        a(f's_waitcnt vmcnt({vm})\n s_barrier')
        stage(a, swapped, False)
    a(f'{Lx}:\n s_nop 15')

def acc_read(a, dst, src, n):
    for i in range(n): a(f'v_accvgpr_read_b32 v{dst+i}, a{src+i}')

def gelu8(a, x, t):
    for i in range(0,8,2): a(f'v_cvt_pk_bf16_f32 v{t+i}, v{x+i}, v{x+i+1}')
    for i in range(0,8,2):
        a(f'v_lshlrev_b32 v{x+i}, 16, v{t+i}\n v_and_b32 v{x+i+1}, 0xffff0000, v{t+i}')
    for i in range(8): a(f'v_mul_f32 v{t+i}, v{x+i}, v{x+i}')
    for i in range(8): a(f'v_fma_f32 v{t+i}, v{t+i}, s{sC0}, 1.0')
    for i in range(8): a(f'v_mul_f32 v{t+i}, v{t+i}, v{x+i}')
    for i in range(8): a(f'v_mul_f32 v{t+i}, s{sC1}, v{t+i}')
    for i in range(8): a(f'v_exp_f32 v{t+i}, v{t+i}')
    for i in range(8): a(f'v_add_f32 v{t+i}, 1.0, v{t+i}')
    for i in range(8): a(f'v_rcp_f32 v{t+i}, v{t+i}')
    a('s_nop 0')
    for i in range(8): a(f'v_mul_f32 v{x+i}, v{x+i}, v{t+i}')

def epi_kq(a):
    a(f'''
    v_bfe_u32 v21, v{vLN}, 4, 1
    v_lshrrev_b32 v22, 5, v{vLN}
    v_and_b32 v23, 15, v{vLN}
    v_lshlrev_b32 v{vE1}, 9, v21
    v_lshl_add_u32 v{vE1}, v22, 8, v{vE1}
    v_lshl_add_u32 v{vE1}, v23, 4, v{vE1}
    s_lshl_b32 s{sT}, s{sWM}, 14
    s_lshl_b32 s{sT+1}, s{sWN}, 12
    s_add_u32 s{sT}, s{sT}, s{sT+1}
    s_add_u32 s{sT}, s{sT}, {EP}
    v_add_u32 v{vE1}, s{sT}, v{vE1}
    ''')
    for mt in range(2):
        for nt in range(2):
            for ap in range(2):
                x = 64 + 16*((2*nt+ap)&1); o = x+8
                acc_read(a, x, 16*(2*mt+nt)+8*ap, 8)
                for c in range(4): a(f'v_cvt_pk_bf16_f32 v{o+c}, v{x+c}, v{x+4+c}')
                a(f'ds_write_b128 v{vE1}, {vr(o,4)} offset:{mt*8192+nt*2048+ap*1024}')

def epi_v(a):
    a(f'''
    v_lshrrev_b32 v21, 5, v{vLN}          ; hb
    v_bfe_u32 v22, v{vLN}, 3, 1           ; t = a'&1
    v_bfe_u32 v23, v{vLN}, 4, 1           ; a'>>1
    v_and_b32 v24, 7, v{vLN}              ; 4*hb' + c'
    v_lshl_add_u32 v24, v23, 3, v24       ; i
    v_lshl_add_u32 v24, v21, 4, v24       ; + 16*g (g = hb (+2))
    v_lshlrev_b32 v{vE1}, 4, v24
    v_lshl_add_u32 v{vE1}, v22, 10, v{vE1}
    s_lshl_b32 s{sT}, s{sWM}, 14
    s_lshl_b32 s{sT+1}, s{sWN}, 12
    s_add_u32 s{sT}, s{sT}, s{sT+1}
    s_add_u32 s{sT}, s{sT}, {EP}
    v_add_u32 v{vE1}, s{sT}, v{vE1}
    ''')
    for mt in range(2):
        for nt in range(2):
            for g2 in range(2):
                x = 64 + 16*g2; o = x+8
                acc_read(a, x, 16*(2*mt+nt)+4*g2, 4); acc_read(a, x+4, 16*(2*mt+nt)+4*g2+8, 4)
                for c in range(4): a(f'v_cvt_pk_bf16_f32 v{o+c}, v{x+2*c}, v{x+2*c+1}')
                a(f'ds_write_b128 v{vE1}, {vr(o,4)} offset:{mt*8192+nt*2048+g2*512}')

def epi_row(a, gelu):
    a(f'''
    v_and_b32 v21, 31, v{vLN}
    v_lshrrev_b32 v22, 5, v{vLN}
    v_and_b32 v23, 15, v{vLN}
    s_lshl_b32 s{sT}, s{sWN}, 3
    v_or_b32 v22, s{sT}, v22
    v_xor_b32 v22, v22, v23
    v_lshlrev_b32 v{vE1}, 8, v21
    v_lshl_add_u32 v{vE1}, v22, 4, v{vE1}
    s_lshl_b32 s{sT}, s{sWM}, 14
    s_add_u32 s{sT}, s{sT}, {EP}
    v_add_u32 v{vE1}, s{sT}, v{vE1}
    ''')
    for nt in range(2):
        for ap in range(2):
            if nt or ap: a(f'v_xor_b32 v{vE2}, {(4*nt+2*ap)*16}, v{vE1}')
            adr = vE2 if (nt or ap) else vE1
            for mt in range(2):
                x = 64 + 24*mt; o = x+8
                acc_read(a, x, 16*(2*mt+nt)+8*ap, 8)
                if gelu: gelu8(a, x, x+8)
                for c in range(4): a(f'v_cvt_pk_bf16_f32 v{o+c}, v{x+2*c}, v{x+2*c+1}')
                a(f'ds_write_b128 v{adr}, {vr(o,4)} offset:{mt*8192}')

def copy_blocks(a):
    a(f'''
    s_waitcnt lgkmcnt(0)
    s_barrier
    v_lshlrev_b32 v21, 4, v{vLN}
    s_lshl_b32 s{sT}, s{S_WAVE}, 13
    s_add_u32 s{sT}, s{sT}, {EP}
    v_add_u32 v22, s{sT}, v21
    s_lshl_b32 s{sT}, s{S_WAVE}, 18
    s_add_u32 s{sT}, s{sT}, s{sOUT}
    s_add_u32 s{sT+1}, s{sT}, 4096
    ''')
    for i in range(8): a(f'ds_read_b128 {vr(64+4*i,4)}, v22 offset:{i*1024}')
    for i in range(8):
        a(f's_waitcnt lgkmcnt({7-i})\n buffer_store_dwordx4 {vr(64+4*i,4)}, v21, {W}, s{sT+(i>>2)} offen offset:{(i&3)*1024} sc1')

def unpack(a, d, s):
    a(f'v_lshlrev_b32 v{d}, 16, v{s}\n v_and_b32 v{d+1}, 0xffff0000, v{s}')

def rows_phase(a, mode):
    a(f'''
    v_lshrrev_b32 v21, 4, v{vLN}
    v_and_b32 v22, 15, v{vLN}
    v_mul_lo_u32 v23, v21, s{sOSTR}
    v_lshl_add_u32 v23, v22, 4, v23
    s_lshl_b32 s{sT}, s{S_WAVE}, 5
    s_mul_i32 s{sT+1}, s{sT}, s{sOSTR}
    s_add_u32 s{sX}, s{sOUT}, s{sT+1}
    s_add_u32 s{sY}, s{sAUX}, s{sT+1}
    s_lshl_b32 s{sT+2}, s{sOSTR}, 2
    v_xor_b32 v24, v22, v21
    v_lshlrev_b32 v25, 8, v21
    v_lshl_add_u32 v25, v24, 4, v25
    s_lshl_b32 s{sT+3}, s{S_WAVE}, 13
    s_add_u32 s{sT+3}, s{sT+3}, {EP}
    v_add_u32 v25, s{sT+3}, v25
    v_lshlrev_b32 v26, 1, v21
    s_lshl_b32 s{sT+3}, s{S_WAVE}, 6
    s_add_u32 s{sT+3}, s{sT+3}, s{sAUX2}
    ''')
    if mode != 'plain':
        a(f's_mov_b32 s{sT+4}, s{sY}\n s_mov_b32 s{sT+5}, s{sX}')
        for i in range(8):
            a(f'buffer_load_dwordx4 {vr(96+4*i,4)}, v23, {W}, s{sT+4} offen sc1\n s_add_u32 s{sT+4}, s{sT+4}, s{sT+2}')
            if mode == 'gate':
                a(f'buffer_load_ushort v{128+i}, v26, {SC}, s{sT+3} offen offset:{i*8}')
            else:
                a(f'buffer_load_dwordx4 {vr(128+4*i,4)}, v23, {SC}, s{sT+5} offen\n s_add_u32 s{sT+5}, s{sT+5}, s{sT+2}')
    a('s_waitcnt lgkmcnt(0)\n s_barrier')
    for i in range(8):
        a(f'v_xor_b32 v27, {(i&3)*64}, v25\n ds_read_b128 {vr(64+4*i,4)}, v27 offset:{i*1024}')
    if mode != 'plain': a('s_waitcnt vmcnt(0)')
    for i in range(8):
        r = 64+4*i
        a(f's_waitcnt lgkmcnt({7-i})')
        if mode == 'gate':
            a(f'v_lshlrev_b32 v{128+i}, 16, v{128+i}')
            for d in range(4):
                unpack(a, 28, r+d); unpack(a, 30, 96+4*i+d)
                a(f'''v_add_f32 v28, v28, v{128+i}
                      v_add_f32 v29, v29, v{128+i}
                      v_cvt_pk_bf16_f32 v{r+d}, v28, v29''')
                unpack(a, 28, r+d)
                a(f'''v_mul_f32 v28, v28, v30
                      v_mul_f32 v29, v29, v31
                      v_cvt_pk_bf16_f32 v{r+d}, v28, v29''')
        if mode == 'final':
            for d in range(4):
                unpack(a, 28, r+d); unpack(a, 30, 128+4*i+d)
                a(f'''v_add_f32 v28, v28, v30
                      v_add_f32 v29, v29, v31
                      v_cvt_pk_bf16_f32 v{r+d}, v28, v29''')
                unpack(a, 28, r+d); unpack(a, 30, 96+4*i+d)
                a(f'''v_add_f32 v28, v28, v30
                      v_add_f32 v29, v29, v31
                      v_cvt_pk_bf16_f32 v{r+d}, v28, v29''')
        if mode == 'final':
            a(f'buffer_store_dwordx4 {vr(r,4)}, v23, {SD}, s{sX} offen')
        else:
            a(f'buffer_store_dwordx4 {vr(r,4)}, v23, {W}, s{sX} offen sc1')
        a(f's_add_u32 s{sX}, s{sX}, s{sT+2}')

def ln_task(a, width, src_srd, sc, tag):
    nch = width//8//16
    stride = 2*width
    a(f'''
    v_lshrrev_b32 v21, 4, v{vLN}
    v_and_b32 v22, 15, v{vLN}
    s_lshl_b32 s{sT}, s{S_WAVE}, 2
    v_add_u32 v21, s{sT}, v21
    s_mov_b32 s{sT}, {stride}
    v_mul_lo_u32 v21, v21, s{sT}
    v_lshl_add_u32 v23, v22, 4, v21
    ''')
    for c in range(nch): a(f'buffer_load_dwordx4 {vr(64+4*c,4)}, v23, {src_srd}, s{sAO} offen offset:{c*256} {sc}')
    a('s_waitcnt vmcnt(0)')
    n = nch*8; X = 96
    for d in range(nch*4): unpack(a, X+2*d, 64+d)
    def red(reg):
        for sh in (8,4,2,1):
            a(f's_nop 1\n v_add_f32_dpp v{reg}, v{reg}, v{reg} row_ror:{sh} row_mask:0xf bank_mask:0xf')
    a(f'v_add_f32 v24, v{X}, v{X+1}')
    for i in range(2,n): a(f'v_add_f32 v24, v24, v{X+i}')
    red(24)
    inv = {512:0x3b000000, 896:0x3a924925}[width]
    a(f'v_mul_f32 v24, {inv:#x}, v24')
    a(f'v_sub_f32 v26, v{X}, v24\n v_mul_f32 v25, v26, v26')
    for i in range(1,n): a(f'v_sub_f32 v26, v{X+i}, v24\n v_fmac_f32 v25, v26, v26')
    red(25)
    a(f'''
    v_mul_f32 v25, {inv:#x}, v25
    v_cvt_pk_bf16_f32 v24, v24, v25
    v_and_b32 v25, 0xffff0000, v24
    v_lshlrev_b32 v24, 16, v24
    v_add_f32 v25, 0x3727c5ac, v25          ; + 1e-5
    v_cvt_pk_bf16_f32 v25, v25, v25
    v_and_b32 v25, 0xffff0000, v25
    v_sqrt_f32 v25, v25
    s_nop 0
    v_cvt_pk_bf16_f32 v25, v25, v25
    v_and_b32 v25, 0xffff0000, v25
    v_rcp_f32 v27, v25
    s_nop 0
    ''')
    for d in range(nch*4):
        x = X+2*d
        a(f'''v_sub_f32 v{x}, v{x}, v24
              v_sub_f32 v{x+1}, v{x+1}, v24
              v_cvt_pk_bf16_f32 v26, v{x}, v{x+1}''')
        unpack(a, x, 26)
        a(f'''v_mul_f32 v28, v{x}, v27
              v_mul_f32 v29, v{x+1}, v27
              v_fma_f32 v{x}, -v28, v25, v{x}
              v_fma_f32 v{x+1}, -v29, v25, v{x+1}
              v_fmac_f32 v28, v{x}, v27
              v_fmac_f32 v29, v{x+1}, v27
              v_cvt_pk_bf16_f32 v{64+d}, v28, v29''')
    for c in range(nch): a(f'buffer_store_dwordx4 {vr(64+4*c,4)}, v23, {W}, s{sOUT} offen offset:{c*256} sc1')

def att_task(a):
    KF=64; QF=96; VF=128; KMF=160; VMF=176; SX=192
    a(f'''
    s_lshl_b32 s{sT}, s{sBLK}, 2
    s_add_u32 s{sT}, s{sT}, s{S_WAVE}          ; seg
    s_lshl_b32 s{sT+1}, s{sT}, 5
    s_add_u32 s{sT+1}, s{sT+1}, s{sCT}
    s_lshl_b32 s{sT+1}, s{sT+1}, 13            ; (seg*32+h)*8192
    s_add_u32 s{sT+2}, s{sT+1}, {WS_KX}
    s_add_u32 s{sT+3}, s{sT+1}, {WS_QX}
    s_add_u32 s{sT+4}, s{sT+1}, {WS_VX}
    s_add_u32 s{sT+5}, s{sT+1}, {WS_KM}
    s_add_u32 s{sT+6}, s{sT+2}, 4096
    s_add_u32 s{sT+7}, s{sT+3}, 4096
    s_add_u32 s{sT+8}, s{sT+4}, 4096
    v_lshrrev_b32 v21, 4, v{vLN}               ; g
    v_and_b32 v22, 15, v{vLN}                  ; i
    v_lshrrev_b32 v23, 1, v21
    v_and_b32 v24, 1, v21
    v_lshlrev_b32 v25, 10, v23
    v_lshl_add_u32 v25, v24, 8, v25
    v_lshl_add_u32 v25, v22, 4, v25
    v_lshlrev_b32 v26, 4, v{vLN}
    v_lshrrev_b32 v27, 2, v22
    v_and_b32 v28, 1, v22
    v_lshl_add_u32 v27, v27, 1, v28
    v_lshlrev_b32 v27, 8, v27
    v_lshl_add_u32 v27, v21, 4, v27
    ''')
    for T in range(2):
        for ks in range(4):
            so = sT+2 if ks < 2 else sT+6
            a(f'buffer_load_dwordx4 {vr(KF+16*T+4*ks,4)}, v25, {W}, s{so} offen offset:{(ks&1)*2048+T*512} sc1')
            so = sT+3 if ks < 2 else sT+7
            a(f'buffer_load_dwordx4 {vr(QF+16*T+4*ks,4)}, v25, {W}, s{so} offen offset:{(ks&1)*2048+T*512} sc1')
    for ks in range(4): a(f'buffer_load_dwordx4 {vr(KMF+4*ks,4)}, v27, {W}, s{sT+5} offen offset:{ks*64} sc1')
    for f in range(8):
        so = sT+4 if f < 4 else sT+8
        a(f'buffer_load_dwordx4 {vr(VF+4*f,4)}, v26, {W}, s{so} offen offset:{(f&3)*1024} sc1')
    a(f's_add_u32 s{sT+5}, s{sT+5}, 2048')
    for w in range(4): a(f'buffer_load_dwordx4 {vr(VMF+4*w,4)}, v26, {W}, s{sT+5} offen offset:{w*1024} sc1')
    a(f'''
    v_lshlrev_b32 v29, 13, v22
    v_lshl_add_u32 v29, v21, 4, v29
    s_lshl_b32 s{sX}, s{sT}, 18
    s_lshl_b32 s{sY}, s{sCT}, 8
    s_add_u32 s{sX}, s{sX}, s{sY}
    s_add_u32 s{sX}, s{sX}, {WS_OX}
    s_mov_b32 s{sC0}, 0x3e0293ee
    v_lshlrev_b32 v30, 2, v21                  ; 4g
    v_mov_b32 v31, 0xff800000
    s_waitcnt vmcnt(12)
    ''')
    for qt in range(2):
        S = SX
        tiles = [0,2] if qt == 0 else [0,1,2]
        for T in tiles:
            for ks in range(4):
                A_ = vr(KF+16*T+4*ks,4) if T < 2 else vr(KMF+4*ks,4)
                c = '0' if ks == 0 else vr(S+4*T,4)
                a(f'v_mfma_f32_16x16x32_bf16 {vr(S+4*T,4)}, {A_}, {vr(QF+16*qt+4*ks,4)}, {c}')
        a('s_nop 7')
        for r in range(4):
            a(f'''v_add_u32 v{SX+28}, {r}, v30
                  v_cmp_le_u32 vcc, v{SX+28}, v22
                  s_nop 1
                  v_cndmask_b32 v{S+4*qt+r}, v31, v{S+4*qt+r}, vcc''')
        vals = [S+4*T+r for T in tiles if T < 2 for r in range(4)] + [S+8, S+9]
        mx, tt = SX+28, SX+29
        a(f'v_max_f32 v{mx}, v{vals[0]}, v{vals[1]}')
        for i in range(2,len(vals),2): a(f'v_max3_f32 v{mx}, v{mx}, v{vals[i]}, v{vals[i+1]}')
        for p in (16,32):
            a(f'v_mov_b32 v{tt}, v{mx}\n s_nop 1\n v_permlane{p}_swap_b32 v{mx}, v{tt}\n v_max_f32 v{mx}, v{mx}, v{tt}')
        a(f'v_mul_f32 v{mx}, s{sC0}, v{mx}')
        for v_ in vals: a(f'v_fma_f32 v{v_}, v{v_}, s{sC0}, -v{mx}')
        for v_ in vals: a(f'v_exp_f32 v{v_}, v{v_}')
        a(f's_nop 0\n v_add_f32 v{mx}, v{vals[0]}, v{vals[1]}')
        for v_ in vals[2:]: a(f'v_add_f32 v{mx}, v{mx}, v{v_}')
        for p in (16,32):
            a(f'v_mov_b32 v{tt}, v{mx}\n s_nop 1\n v_permlane{p}_swap_b32 v{mx}, v{tt}\n v_add_f32 v{mx}, v{mx}, v{tt}')
        a(f'v_rcp_f32 v{mx}, v{mx}\n s_nop 0')
        for v_ in vals: a(f'v_mul_f32 v{v_}, v{v_}, v{mx}')
        P = SX+12; PM = SX+16
        a(f'v_cvt_pk_bf16_f32 v{P}, v{S}, v{S+1}\n v_cvt_pk_bf16_f32 v{P+1}, v{S+2}, v{S+3}')
        if qt: a(f'v_cvt_pk_bf16_f32 v{P+2}, v{S+4}, v{S+5}\n v_cvt_pk_bf16_f32 v{P+3}, v{S+6}, v{S+7}')
        else:  a(f'v_mov_b32 v{P+2}, 0\n v_mov_b32 v{P+3}, 0')
        a(f'v_cvt_pk_bf16_f32 v{PM}, v{S+8}, v{S+9}\n v_mov_b32 v{PM+1}, 0')
        if qt == 0: a('s_waitcnt vmcnt(0)')
        a('s_nop 1')
        O = 224
        for f in range(8):
            a(f'v_mfma_f32_16x16x32_bf16 {vr(O+4*f,4)}, {vr(VF+4*f,4)}, {vr(P,4)}, 0')
        for f in range(8):
            a(f'v_mfma_f32_16x16x16_bf16 {vr(O+4*f,4)}, {vr(VMF+4*(f>>1)+2*(f&1),2)}, {vr(PM,2)}, {vr(O+4*f,4)}')
        a('s_nop 7')
        if qt: a(f's_add_u32 s{sX}, s{sX}, {16*8192}')
        for w in range(4):
            o = SX+20 if w&1 else SX+24
            for c in range(4): a(f'v_cvt_pk_bf16_f32 v{o+c}, v{O+8*w+2*c}, v{O+8*w+2*c+1}')
            a(f'buffer_store_dwordx4 {vr(o,4)}, v29, {W}, s{sX} offen offset:{w*64} sc1')
            a('s_nop 1')


FT_A = 131072
def ft_prologue(a):
    a(f'''
    v_lshrrev_b32 v21, 4, v{vLN}
    v_lshlrev_b32 v22, 10, v21
    v_and_b32 v23, 15, v{vLN}
    v_lshlrev_b32 v21, 2, v21
    v_xor_b32 v23, v23, v21
    v_lshl_add_u32 v{vBs}, v23, 4, v22
    s_lshl_b32 s{sY}, s{sCT}, 17
    s_lshl_b32 s{sT}, s{S_WAVE}, 8
    s_add_u32 s{sY}, s{sY}, s{sT}
    s_lshl_b32 s{sDST}, s{S_WAVE}, 15
    ''')
    for i in range(32):
        a(f'''s_add_u32 m0, s{sDST}, {i*1024}
              s_nop 0
              buffer_load_dwordx4 v{vBs}, {SBd}, s{sY} offen lds
              s_add_u32 s{sY}, s{sY}, 4096''')
    a(f'''
    s_lshl_b32 s{sT}, s{sWN}, 7
    v_xor_b32 v{vAc}, s{sT}, v{vBr}
    v_subrev_u32 v{vAc}, 16384, v{vAc}
    v_add_u32 v{vAc}, s{sDST}, v{vAc}
    v_xor_b32 v{vAc+1}, 64, v{vAc}
    v_xor_b32 v{vAc+2}, 128, v{vAc}
    v_xor_b32 v{vAc+3}, 192, v{vAc}
    s_lshl_b32 s{sT}, s{sWM}, 13
    s_sub_u32 s{sT}, {FT_A}, s{sT}
    v_add_u32 v{vBc}, s{sT}, v{vAr}
    v_lshrrev_b32 v21, 4, v{vLN}               ; g
    v_and_b32 v22, 15, v{vLN}                  ; i
    v_lshrrev_b32 v23, 1, v21
    v_and_b32 v24, 1, v21
    v_lshlrev_b32 v25, 10, v23
    v_lshl_add_u32 v25, v24, 8, v25
    v_lshl_add_u32 v25, v22, 4, v25
    v_lshlrev_b32 v26, 4, v{vLN}
    v_lshrrev_b32 v27, 2, v22
    v_and_b32 v28, 1, v22
    v_lshl_add_u32 v27, v27, 1, v28
    v_lshlrev_b32 v27, 8, v27
    v_lshl_add_u32 v27, v21, 4, v27
    s_lshl_b32 s{sT}, s{sWN}, 4
    v_add_u32 v28, s{sT}, v22                  ; token
    v_bfe_u32 v29, v28, 1, 3
    v_xor_b32 v29, v29, v21
    v_lshlrev_b32 v28, 7, v28
    v_lshl_add_u32 v29, v29, 4, v28
    s_lshl_b32 s{sT}, s{sWM}, 12
    s_add_u32 s{sT}, s{sT}, {FT_A}
    v_add_u32 v29, s{sT}, v29
    v_lshlrev_b32 v30, 2, v21                  ; 4g
    v_mov_b32 v31, 0xff800000
    s_mov_b32 s{sC0}, 0x3e0293ee
    s_lshl_b32 s{sT}, s{sWN}, 4
    v_add_u32 v{vE2}, s{sT}, v22
    v_sub_u32 v{vE2}, v{vE2}, v30
    ''')

def ft_loads_x(a):
    KF=64; QF=96; VF=112
    a(f'''
    s_lshl_b32 s{sT+1}, s{sBLK}, 5
    s_add_u32 s{sT+1}, s{sT+1}, s{sCT}
    s_lshl_b32 s{sAO}, s{sT+1}, 13             ; (seg*32+h)*8192
    s_add_u32 s{sT+2}, s{sAO}, {WS_KX}
    s_lshl_b32 s{sT}, s{sWN}, 9
    s_add_u32 s{sT+3}, s{sAO}, s{sT}
    s_add_u32 s{sT+3}, s{sT+3}, {WS_QX}
    s_lshl_b32 s{sT}, s{sWM}, 12
    s_add_u32 s{sT+4}, s{sAO}, s{sT}
    s_add_u32 s{sT+4}, s{sT+4}, {WS_VX}
    s_add_u32 s{sT+6}, s{sT+2}, 4096
    s_add_u32 s{sT+7}, s{sT+3}, 4096
    ''')
    for T in range(2):
        for ks in range(4):
            so = sT+2 if ks < 2 else sT+6
            a(f'buffer_load_dwordx4 {vr(KF+16*T+4*ks,4)}, v25, {W}, s{so} offen offset:{(ks&1)*2048+T*512} sc1')
    for ks in range(4):
        so = sT+3 if ks < 2 else sT+7
        a(f'buffer_load_dwordx4 {vr(QF+4*ks,4)}, v25, {W}, s{so} offen offset:{(ks&1)*2048} sc1')
    for f in range(4):
        a(f'buffer_load_dwordx4 {vr(VF+4*f,4)}, v26, {W}, s{sT+4} offen offset:{f*1024} sc1')

def ft_segment(a):
    KF=64; QF=96; VF=112; KMF=128; VMF=144; SX=152; O=184
    a(f'''
    s_add_u32 s{sT+5}, s{sAO}, {WS_KM}
    s_lshl_b32 s{sT}, s{sWM}, 11
    s_add_u32 s{sT+6}, s{sT+5}, s{sT}
    ''')
    for ks in range(4): a(f'buffer_load_dwordx4 {vr(KMF+4*ks,4)}, v27, {W}, s{sT+5} offen offset:{ks*64} sc1')
    for u in range(2): a(f'buffer_load_dwordx4 {vr(VMF+4*u,4)}, v26, {W}, s{sT+6} offen offset:{2048+u*1024} sc1')
    for i in range(64): a(f'v_accvgpr_write_b32 a{i}, 0')
    a('s_waitcnt vmcnt(6)')
    S = SX
    for T in range(2):
        for ks in range(4):
            c = '0' if ks == 0 else vr(S+4*T,4)
            a(f'v_mfma_f32_16x16x32_bf16 {vr(S+4*T,4)}, {vr(KF+16*T+4*ks,4)}, {vr(QF+4*ks,4)}, {c}')
    a('s_nop 7')
    for T in range(2):
        for r in range(4):
            a(f'''v_cmp_le_i32 vcc, {16*T+r}, v{vE2}
                  s_nop 1
                  v_cndmask_b32 v{S+4*T+r}, v31, v{S+4*T+r}, vcc''')
    a('s_waitcnt vmcnt(2)')
    for ks in range(4):
        c = '0' if ks == 0 else vr(S+8,4)
        a(f'v_mfma_f32_16x16x32_bf16 {vr(S+8,4)}, {vr(KMF+4*ks,4)}, {vr(QF+4*ks,4)}, {c}')
    vals = [S+i for i in range(10)]
    mx, tt = SX+28, SX+29
    a(f'v_max_f32 v{mx}, v{vals[0]}, v{vals[1]}')
    for i in range(2,8,2): a(f'v_max3_f32 v{mx}, v{mx}, v{vals[i]}, v{vals[i+1]}')
    a(f's_nop 4\n v_max3_f32 v{mx}, v{mx}, v{vals[8]}, v{vals[9]}')
    for p in (16,32):
        a(f'v_mov_b32 v{tt}, v{mx}\n s_nop 1\n v_permlane{p}_swap_b32 v{mx}, v{tt}\n v_max_f32 v{mx}, v{mx}, v{tt}')
    a(f'v_mul_f32 v{mx}, s{sC0}, v{mx}')
    for v_ in vals: a(f'v_fma_f32 v{v_}, v{v_}, s{sC0}, -v{mx}')
    for v_ in vals: a(f'v_exp_f32 v{v_}, v{v_}')
    a(f's_nop 0\n v_add_f32 v{mx}, v{vals[0]}, v{vals[1]}')
    for v_ in vals[2:]: a(f'v_add_f32 v{mx}, v{mx}, v{v_}')
    for p in (16,32):
        a(f'v_mov_b32 v{tt}, v{mx}\n s_nop 1\n v_permlane{p}_swap_b32 v{mx}, v{tt}\n v_add_f32 v{mx}, v{mx}, v{tt}')
    a(f'v_rcp_f32 v{mx}, v{mx}\n s_nop 0')
    for v_ in vals: a(f'v_mul_f32 v{v_}, v{v_}, v{mx}')
    P = SX+12; PM = SX+16
    for c in range(4): a(f'v_cvt_pk_bf16_f32 v{P+c}, v{S+2*c}, v{S+2*c+1}')
    a(f'v_cvt_pk_bf16_f32 v{PM}, v{S+8}, v{S+9}\n v_mov_b32 v{PM+1}, 0\n s_waitcnt vmcnt(0)\n s_nop 0')
    for f in range(4):
        a(f'v_mfma_f32_16x16x32_bf16 {vr(O+4*f,4)}, {vr(VF+4*f,4)}, {vr(P,4)}, 0')
    for f in range(4):
        a(f'v_mfma_f32_16x16x16_bf16 {vr(O+4*f,4)}, {vr(VMF+4*(f>>1)+2*(f&1),2)}, {vr(PM,2)}, {vr(O+4*f,4)}')
    a(f's_nop 7\n v_xor_b32 v28, 64, v29')
    for u in range(2):
        o = SX+20+4*u
        for c in range(4): a(f'v_cvt_pk_bf16_f32 v{o+c}, v{O+8*u+2*c}, v{O+8*u+2*c+1}')
        a(f'ds_write_b128 v{28 if u else 29}, {vr(o,4)}')
    a('s_waitcnt lgkmcnt(0)\n s_barrier')

def ft_gemm(a):
    Fb = 200
    def reads(k8, buf):
        kh, ks = k8 >> 2, k8 & 3
        b = Fb + 20*buf
        r = [f'v_xor_b32 v{vBc+1}, {32*ks}, v{vBc}', f'ds_read_b128 {vr(b,4)}, v{vBc+1} offset:{kh*4096}']
        for nt in range(4):
            for rho in range(2):
                r.append(f'ds_read_b64_tr_b16 {vr(b+4+4*nt+2*rho,2)}, v{vAc+nt} offset:{kh*16384+ks*4096+rho*1024}')
        return r
    a('\n'.join(reads(0,0)))
    for k8 in range(8):
        if k8 < 7: a('\n'.join(reads(k8+1,(k8+1)&1)))
        a(f's_waitcnt lgkmcnt({9 if k8 < 7 else 0})')
        b = Fb + 20*(k8&1)
        for nt in range(4):
            a(f'v_mfma_f32_32x32x16_bf16 {ar(16*nt,16)}, {vr(b+4+4*nt,4)}, {vr(b,4)}, {ar(16*nt,16)}')
    a(f'''s_lshl_b32 s{sX}, s{sAO}, 2
          s_lshl_b32 s{sT}, s{S_WAVE}, 13
          s_add_u32 s{sX}, s{sX}, s{sT}
          s_add_u32 s{sX}, s{sX}, {WS_PART}
          s_add_u32 s{sY}, s{sX}, 4096
          s_nop 7''')
    for q in range(8):
        x = 152 + 12*(q&1); o = x+8
        acc_read(a, x, 8*q, 8)
        for c in range(4): a(f'v_cvt_pk_bf16_f32 v{o+c}, v{x+2*c}, v{x+2*c+1}')
        a(f'buffer_store_dwordx4 {vr(o,4)}, v26, {W}, s{sX if q < 4 else sY} offen offset:{(q&3)*1024} sc1')

def red_pre(a):
    a(f'''
    v_lshlrev_b32 v26, 4, v{vLN}
    s_lshl_b32 s{sT}, s{sCT}, 2
    s_add_u32 s{sT}, s{sT}, s{S_WAVE}          ; pi
    s_lshl_b32 s{sX}, s{sBLK}, 20
    s_lshl_b32 s{sT+1}, s{sT}, 10
    s_add_u32 s{sX}, s{sX}, s{sT+1}
    s_add_u32 s{sX}, s{sX}, {WS_PART}
    v_and_b32 v24, 31, v{vLN}
    v_lshrrev_b32 v22, 5, v{vLN}
    v_lshlrev_b32 v23, 10, v24
    v_lshl_add_u32 v23, v22, 4, v23
    s_lshl_b32 s{sOUT}, s{sBLK}, 15
    s_lshl_b32 s{sT+1}, s{sT}, 5
    s_add_u32 s{sOUT}, s{sOUT}, s{sT+1}
    s_add_u32 s{sAUX}, s{sOUT}, {WS_OB}
    buffer_load_dwordx4 v[192:195], v23, {SC}, s{sOUT} offen
    buffer_load_dwordx4 v[196:199], v23, {W}, s{sAUX} offen sc1
    s_mov_b32 s{sC0}, 0x00003f80
    s_mov_b32 s{sC1}, 0x3f800000
    ''')
    for i in range(8): a(f'v_mov_b32 v{32+i}, 0')

def red_task(a):
    for h in range(32):
        a(f'buffer_load_dwordx4 {vr(64+4*h,4)}, v26, {W}, s{sX} offen sc1\n s_add_u32 s{sX}, s{sX}, 32768')
    for h in range(32):
        a(f's_waitcnt vmcnt({31-h})')
        for d in range(4):
            a(f'v_dot2_f32_bf16 v{32+2*d}, v{64+4*h+d}, s{sC0}, v{32+2*d}\n v_dot2_f32_bf16 v{33+2*d}, v{64+4*h+d}, s{sC1}, v{33+2*d}')
    a('s_nop 3')
    for d in range(4):
        a(f'v_cvt_pk_bf16_f32 v{40+d}, v{32+2*d}, v{33+2*d}')
        unpack(a, 28, 40+d); unpack(a, 30, 192+d)
        a(f'v_add_f32 v28, v28, v30\n v_add_f32 v29, v29, v31\n v_cvt_pk_bf16_f32 v{40+d}, v28, v29')
        unpack(a, 28, 40+d); unpack(a, 30, 196+d)
        a(f'v_add_f32 v28, v28, v30\n v_add_f32 v29, v29, v31\n v_cvt_pk_bf16_f32 v{40+d}, v28, v29')
    a(f'buffer_store_dwordx4 v[40:43], v23, {SD}, s{sOUT} offen')
```

```python
import sys
from common import *
import chain as C
from chain import S_WS, S_DBG, S_A, S_B, S_C, S_D, S_XCC, S_WAVE, S_HEAD, SH
from worker import *
import g1a

HDR = open('parallel_sum__memory_aug_recurrent_mem_tr__mixer_gmlp__prompt.s.ref').read().split('; @launch')[0]

def bcast_ticket(a, vsrc, sdst, addr=TK_LDS):
    L = a.label('bt')
    a(f'''s_cmp_lg_u32 s{S_WAVE}, 0
          v_mov_b32 v21, {addr}
          s_cbranch_scc1 {L}
          s_mov_b64 exec, 1
          ds_write_b32 v21, v{vsrc}
          s_mov_b64 exec, -1
          s_waitcnt lgkmcnt(0)
          {L}:
          s_barrier
          ds_read_b32 v22, v21
          s_waitcnt lgkmcnt(0)
          v_readfirstlane_b32 s{sdst}, v22
          s_barrier''')

def atomic_ret(a, vdst, off, val=1, srd_=None, soff='0'):
    L = a.label('ar')
    a(f'''s_cmp_lg_u32 s{S_WAVE}, 0
          s_cbranch_scc1 {L}
          v_mov_b32 v{vdst}, {val}
          v_mov_b32 v21, {off}
          s_mov_b64 exec, 1
          buffer_atomic_add v{vdst}, v21, {srd_ or DBG}, {soff} offen sc0
          s_mov_b64 exec, -1
          {L}:''')

TY_K=0; TY_Q=1; TY_WIN=2; TY_SP=3; TY_OB=4; TY_G3=5; TY_V=6; TY_LN1=7; TY_LN2=8; TY_ATT=9; TY_NOP=10; TY_G1=11
def ent(ty, blk=0, ct=0, nt=1): return ty | (blk << 4) | (ct << 12) | (nt << 20)
def build_tables(opt):
    kvs = [0,5,10,15,20,24,28,32]; qs = [0,4,8,12,16,21,26,32]
    g1 = []; lists = []
    for j in range(7):
        kv = []
        for h in range(kvs[j],kvs[j+1]): kv += [ent(TY_K,0,h), ent(TY_V,0,h)]
        win = [ent(TY_WIN,0,7+j), ent(TY_WIN,0,j)]; qq = [ent(TY_Q,0,h) for h in range(qs[j],qs[j+1])]
        first = []; late = []
        def add(dst, b, l):
            if not l: return
            dst.append(ent(TY_G1,b,0,0) | (len(lists) << 20)); lists.append(l + [ent(TY_NOP)]*(4-len(l)))
        rest = win + qq
        for i,t in enumerate(kv): add(first, 0, [t] + ([rest[i]] if i < len(rest) else []))
        n0 = len(kv); n2 = min(len(rest), n0); n1 = n0 - n2
        nfull = 32 - n0
        per = [nfull//7 + (1 if b < nfull % 7 else 0) for b in range(7)]
        small = [3]*n1 + [2]*n2
        for b in range(1,8):
            tiles = (kv + win + qq) if b == 1 else (win + kv + qq)
            nl = min(per[b-1], 4)
            head, tail_ = tiles[:4*nl], tiles[4*nl:]
            for i in range(nl): add(first, b, head[i::nl])
            while tail_:
                n = small.pop(0) if small else 2
                add(late, b, tail_[:n]); tail_ = tail_[n:]
        g1.append(first + late)
    opt['_lists'] = lists
    sp = [[ent(TY_SP,b,j) for b in range(16)] for j in range(7)]
    ob = [ent(TY_OB,b,c) for b in range(16) for c in range(4)]
    FS = opt.get('fs', 4)
    FE = opt.get('fe', 2)
    ft_early = [ent(TY_ATT,r,h) for r in range(FE) for h in range(32)]
    tail = [ent(TY_ATT,r,h) for r in range(FE,FS) for h in range(32)] + ob + [ent(TY_G3,sg,j) for sg in range(64) for j in range(8)]
    return [([[ent(TY_LN1,i) for i in range(128)]],0), (g1,0), ([[ent(TY_LN2,i) for i in range(128)] + ft_early],0), (sp,0), ([tail],0)]
def table_words(PH, opt=None):
    hdr = []; body = []
    base = 4*len(PH)
    for qs_, pf in PH:
        L = max(len(q) for q in qs_)
        hdr += [len(qs_), L, base + len(body), PH_OFF[len(hdr)//4]]
        for q in qs_: body += q + [ent(TY_NOP)]*(L-len(q))
    w = hdr + body
    w += [0]*(-len(w) % 4)
    if opt is not None:
        opt['lists'] = 4*len(w)
        for l in opt['_lists']: w += l
    return w

def gen(opt={}):
    a = Asm()
    a(f'''
    s_cmp_ge_u32 s2, 256
    s_cbranch_scc1 L_end
    s_load_dwordx4 s[32:35], s[0:1], 104
    s_getreg_b32 s{S_XCC}, hwreg(HW_REG_XCC_ID)
    s_and_b32 s{S_XCC}, s{S_XCC}, 15
    v_lshrrev_b32 v1, 6, v0
    v_mov_b32 v{vNXT}, 0
    v_readfirstlane_b32 s{S_WAVE}, v1
    s_waitcnt lgkmcnt(0)
    s_mov_b32 s{S_DBG}, s32
    s_mov_b32 s{S_DBG+1}, s33
    s_mov_b32 s{S_DBG+2}, 256
    s_mov_b32 s{S_DBG+3}, 0x20000
    s_mov_b32 s{S_WS}, s34
    s_mov_b32 s{S_WS+1}, s35
    s_mov_b32 s{S_WS+2}, {WS_SIZE}
    s_mov_b32 s{S_WS+3}, 0x20000
    s_cmp_lg_u32 s{S_XCC}, {opt.get('team_xcc',0)}
    s_cbranch_scc1 L_worker
    L_tryrole:
    ''')
    atomic_ret(a, vNXT, D_ROLE)
    a('s_waitcnt vmcnt(0)')
    bcast_ticket(a, vNXT, S_HEAD)
    a(f'''
    s_cmp_lt_u32 s{S_HEAD}, 32
    s_cbranch_scc1 L_chain
    s_branch L_worker_noq
    ''')
    a('L_worker:')
    a(f's_mov_b32 s{sFIRST}, 1\n s_branch L_winit')
    a('L_worker_noq:')
    a(f's_mov_b32 s{sFIRST}, 0')
    a('L_winit:')
    for s in (S_A,S_B,S_C,S_D): srd_ws(a, s)
    gemm_setup_consts(a)
    opt = dict(opt)
    PH = build_tables(opt)
    words = table_words(PH, opt)
    a(f'''s_mov_b32 s{sCNT}, 0
          s_getpc_b64 s[{sTB}:{sTB+1}]
          L_pc:
          s_add_u32 s{sTB}, s{sTB}, task_table-L_pc
          s_addc_u32 s{sTB+1}, s{sTB+1}, 0
          s_add_u32 s{sHOME}, s{S_XCC}, 6
          s_cmp_ge_u32 s{sHOME}, 7
          s_cselect_b32 s{sT}, 7, 0
          s_sub_u32 s{sHOME}, s{sHOME}, s{sT}
          s_min_u32 s{sHOME}, s{sHOME}, 6
          s_mov_b32 s{sPH}, 0
          s_mov_b32 s{sQ}, 0''')
    a('L_claim:')
    a(f'''s_lshl_b32 s{sT}, s{sPH}, 4
          s_load_dwordx4 s[36:39], s[{sTB}:{sTB+1}], s{sT}
          s_lshl_b32 s{sT+1}, s{sQ}, 2
          s_waitcnt lgkmcnt(0)
          s_add_u32 s{sFLG}, s{sT+1}, s39''')
    atomic_ret(a, vNXT, 0, 1, DBG, f's{sFLG}')
    a('s_waitcnt vmcnt(0)')
    bcast_ticket(a, vNXT, sTASK)
    a(f'''s_cmp_lt_u32 s{sTASK}, s37
          s_cbranch_scc1 L_got
          s_cmp_eq_u32 s36, 1
          s_cbranch_scc1 L_nextph
          v_lshlrev_b32 v21, 2, v{vLN}
          v_and_b32 v21, 31, v21
          buffer_load_dword v22, v21, {DBG}, s39 offen sc1
          s_waitcnt vmcnt(0)
          v_cmp_gt_u32 vcc, s37, v22
          s_lshl_b32 s{sT}, 1, s36
          s_sub_u32 s{sT}, s{sT}, 1
          s_and_b32 s{sT}, s{sT}, vcc_lo
          v_mov_b32 v24, s{sT}''')
    bcast_ticket(a, 24, sT+1)
    a(f'''s_cmp_eq_u32 s{sT+1}, 0
          s_cbranch_scc1 L_nextph
          s_lshr_b32 s{sT}, s{sT+1}, s{sQ}
          s_lshl_b32 s{sT}, s{sT}, s{sQ}
          s_cmp_lg_u32 s{sT}, 0
          s_cselect_b32 s{sT}, s{sT}, s{sT+1}
          s_ff1_i32_b32 s{sQ}, s{sT}
          s_branch L_claim
          L_nextph:
          s_add_u32 s{sPH}, s{sPH}, 1
          s_cmp_ge_u32 s{sPH}, {len(PH)}
          s_cbranch_scc1 L_wdone
          s_bitcmp1_b32 s{sPH}, 0
          s_cselect_b32 s{sQ}, s{sHOME}, 0
          s_cmp_lg_u32 s{sPH}, 2
          s_cbranch_scc1 L_claim
          s_cmp_eq_u32 s{sFIRST}, 1
          s_cbranch_scc1 L_chk
          s_branch L_claim
          L_got:
          s_mul_i32 s{sT}, s{sQ}, s37
          s_add_u32 s{sT}, s{sT}, s38
          s_add_u32 s{sTASK}, s{sTASK}, s{sT}
          s_lshl_b32 s{sT}, s{sTASK}, 2
          s_load_dword s{sIDX}, s[{sTB}:{sTB+1}], s{sT}
          ''')
    a('L_nopf:')
    if opt.get('prof'): a('s_memrealtime s[76:77]\n s_memrealtime s[78:79]')
    a(f'''s_waitcnt lgkmcnt(0)
          s_and_b32 s{sEPI}, s{sIDX}, 15          ; type
          s_bfe_u32 s{sBLK}, s{sIDX}, 0x80004
          s_bfe_u32 s{sCT}, s{sIDX}, 0x8000c
          s_bfe_u32 s{sNT}, s{sIDX}, 0x40014
          s_mov_b32 s{sDA}, 0
          s_mov_b32 s{sDB}, 256
          s_cmp_eq_u32 s{sEPI}, {TY_NOP}
          s_cbranch_scc1 L_done
          s_cmp_eq_u32 s{sEPI}, {TY_LN1}
          s_cbranch_scc1 L_ln1''')
    def initwait():
        L = a.label('iw')
        a(f's_cmp_eq_u32 s{sCNT}, 1\n s_cbranch_scc1 {L}\n s_mov_b32 s{sFLG}, {D_INIT}')
        wait_flag(a, DBG, sFLG, 1, sleep=2)
        a(f's_mov_b32 s{sCNT}, 1\n {L}:')
    opt['initwait'] = initwait
    a(f's_cmp_eq_u32 s{sEPI}, {TY_G1}\n s_cbranch_scc1 L_g1')
    initwait()
    for ty, L in ((TY_LN2,'L_ln2'),(TY_SP,'L_sp'),(TY_OB,'L_ob'),(TY_ATT,'L_att')):
        a(f's_cmp_eq_u32 s{sEPI}, {ty}\n s_cbranch_scc1 {L}')
    a('s_branch L_g3')
    def wait_ln():
        pass
    def a_xn():
        srd_ws(a, S_A)
        a(f's_lshl_b32 s{sAO}, s{sBLK}, 17\n s_add_u32 s{sAO}, s{sAO}, {WS_XN}\n s_mov_b32 s{sLDA}, 1024\n s_mov_b32 s{sNST}, 8')
    a('L_ln1:')
    a(f'''s_cmp_lg_u32 s{S_WAVE}, 0
          s_cbranch_scc1 L_ln1b
          v_mov_b32 v24, 0
          v_mov_b32 v25, 0
          v_mov_b32 v26, 0
          v_mov_b32 v27, 0
          v_lshlrev_b32 v21, 4, v{vLN}
          v_lshlrev_b32 v22, 13, v{vLN}
          s_mul_i32 s{sT}, s{sBLK}, {F_SIZE//128}
          s_add_u32 s{sT}, s{sT}, {WS_FLAGS}
          s_lshl_b32 s{sT+1}, s{sBLK}, 17
          s_add_u32 s{sT+1}, s{sT+1}, {WS_KM + 6144}
          s_mov_b64 exec, 0x3ffff
          buffer_store_dwordx4 v[24:27], v21, {W}, s{sT} offen sc1
          s_mov_b64 exec, 0xffff
          buffer_store_dword v24, v22, {W}, s{sT+1} offen sc1
          s_mov_b64 exec, -1
          L_ln1b:''')
    srd(a, S_A, 0, 2*MB)
    a(f's_lshl_b32 s{sAO}, s{sBLK}, 14\n s_add_u32 s{sOUT}, s{sAO}, {WS_XN}')
    ln_task(a, 512, SA, '', 'a')
    a(f's_mov_b32 s{sFLG}, {D_INITC}\n s_mov_b32 s{sAUX}, {D_INIT}')
    signal2(a, DBG, sFLG, 128, sAUX)
    a('s_branch L_done')
    a('L_ln2:')
    a(f'''s_mov_b32 s{sIDX}, s{sBLK}
          s_lshr_b32 s{sFLG}, s{sIDX}, 3
          s_lshl_b32 s{sFLG}, s{sFLG}, 7
          s_add_u32 s{sFLG}, s{sFLG}, {WS_FLAGS+F_DONE+DN_Z2*128}''')
    wait_flag(a, W, sFLG, 1)
    a(f'''s_mul_i32 s{sAO}, s{sIDX}, {16*1792}
          s_add_u32 s{sOUT}, s{sAO}, {WS_Z2N}
          s_add_u32 s{sAO}, s{sAO}, {WS_Z2}''')
    ln_task(a, 896, W, 'sc1', 'b')
    a(f's_mov_b32 s{sFLG}, {WS_FLAGS+F_Z2N}\n s_mov_b32 s{sAUX}, {WS_FLAGS+F_DONE+DN_Z2N*128}')
    signal2(a, W, sFLG, 128, sAUX)
    a('s_branch L_done')
    a('L_g1:')
    g1a.g1_task(a, dict(K=TY_K,V=TY_V,Q=TY_Q,WIN=TY_WIN,NOP=TY_NOP), opt)
    def next_tile(kind, Lt):
        a(f'''s_mov_b32 s{sPEND}, s{sSPL}
              s_mov_b32 s{sPK}, {kind}
              s_branch L_drain''')
    a('L_sp:')
    a(f'''s_mov_b32 s{sFLG}, {WS_FLAGS+F_DONE+DN_Z2N*128}''')
    wait_flag(a, W, sFLG, 1, bar=False)
    a(f's_lshl_b32 s{sFLG}, s{sBLK}, 6\n s_add_u32 s{sSPL}, s{sFLG}, {WS_FLAGS+F_GZ}\n s_lshl_b32 s{sFLG}, s{sBLK}, 7\n s_add_u32 s{sWC}, s{sFLG}, {WS_FLAGS+F_DONE+DN_GZ*128}\n s_add_u32 s{sFLG}, s{sFLG}, {WS_FLAGS+F_DONE+DN_Z1*128}')
    wait_flag(a, W, sFLG, 1)
    srd(a, S_A, 72, 8*MB); srd_ws(a, S_B); srd(a, S_C, 80, 4096)
    a(f'''s_lshl_b32 s{sAO}, s{sBLK}, 19
          s_mov_b32 s{sLDA}, 4096
          s_lshl_b32 s{sT}, s{sCT}, 8
          s_add_u32 s{sBO}, s{sT}, {WS_Z2N}
          s_mov_b32 s{sLDB}, 1792
          s_mov_b32 s{sNST}, 32
          s_mul_i32 s{sOUT}, s{sBLK}, {128*1792}
          s_add_u32 s{sOUT}, s{sOUT}, s{sT}
          s_add_u32 s{sAUX}, s{sOUT}, {WS_Z1}
          s_add_u32 s{sOUT}, s{sOUT}, {WS_GZ}
          s_lshl_b32 s{sAUX2}, s{sBLK}, 8
          s_mov_b32 s{sOSTR}, 1792
          s_mov_b32 s{sEPI}, 3
          s_branch L_gs''')
    a('L_ob:')
    a(f'''s_lshl_b32 s{sIDX}, s{sBLK}, 2
          s_add_u32 s{sIDX}, s{sIDX}, s{sCT}
          s_lshl_b32 s{sFLG}, s{sBLK}, 7
          s_add_u32 s{sFLG}, s{sFLG}, {WS_FLAGS+F_DONE+DN_GZ*128}''')
    wait_flag(a, W, sFLG, 1)
    srd_ws(a, S_A); srd(a, S_B, 88, 896*1024)
    a(f'''s_mul_i32 s{sAO}, s{sBLK}, {128*1792}
          s_add_u32 s{sAO}, s{sAO}, {WS_GZ}
          s_mov_b32 s{sLDA}, 1792
          s_lshl_b32 s{sBO}, s{sCT}, 8
          s_mov_b32 s{sLDB}, 1024
          s_mov_b32 s{sNST}, 14
          s_lshl_b32 s{sOUT}, s{sBLK}, 17
          s_add_u32 s{sOUT}, s{sOUT}, s{sBO}
          s_add_u32 s{sOUT}, s{sOUT}, {WS_OB}
          s_mov_b32 s{sOSTR}, 1024
          s_lshl_b32 s{sSPL}, s{sIDX}, 4
          s_add_u32 s{sSPL}, s{sSPL}, {WS_FLAGS+F_OB}
          s_mov_b32 s{sEPI}, 4
          s_branch L_gs''')
    a('L_att:')
    FS = opt.get('fs', 4)
    srd(a, S_B, 40, 4*MB)
    ft_prologue(a)
    Lw = a.label('fw'); Lwx = a.label('fwx')
    a(f'''s_lshl_b32 s{sSPL}, s{sCT}, 5
          s_add_u32 s{sSPL}, s{sSPL}, {WS_FLAGS+F_FTQ}
          s_mov_b32 s{sAUX2}, 0
          s_cmp_lg_u32 s{S_WAVE}, 0
          s_cbranch_scc1 {Lwx}
          v_and_b32 v21, 15, v{vLN}
          v_lshlrev_b32 v22, 9, v21
          s_lshl_b32 s{sT}, s{sCT}, 4
          s_add_u32 s{sT}, s{sT}, {WS_FLAGS+F_KVQ}
          v_add_u32 v22, s{sT}, v22
          v_lshlrev_b32 v23, 20, v21
          s_lshl_b32 s{sT}, s{sCT}, 13
          s_add_u32 s{sT}, s{sT}, {WS_KM+6144}
          v_add_u32 v23, s{sT}, v23
          v_bfe_u32 v24, v{vLN}, 4, 1
          v_cmp_eq_u32 vcc, 1, v24
          v_add_u32 v24, 1, v24
          s_mov_b32 s{sT+1}, 0
          v_cndmask_b32 v22, v22, v23, vcc
          s_mov_b32 exec_hi, 0
          {Lw}:
          buffer_load_dword v21, v22, {W}, 0 offen sc1
          s_add_u32 s{sT+1}, s{sT+1}, 1
          s_waitcnt vmcnt(0)
          v_cmp_lt_u32 vcc, v21, v24
          s_cmp_gt_u32 s{sT+1}, 0x40000
          s_cbranch_scc1 {Lwx}
          s_cbranch_vccz {Lwx}
          s_sleep 16
          s_branch {Lw}
          {Lwx}:
          s_mov_b64 exec, -1''')
    TKF = FT_A + 8192
    a('L_ftc:')
    atomic_ret(a, vNXT, 0, 1, W, f's{sSPL}')
    a('L_ftl:')
    a('s_waitcnt vmcnt(0)')
    bcast_ticket(a, vNXT, sBLK, TKF)
    a(f's_cmp_ge_u32 s{sBLK}, 64\n s_cbranch_scc1 L_done')
    ft_loads_x(a)
    a(f's_add_u32 s{sT}, s{sBLK}, 6\n s_cmp_gt_u32 s{sAUX2}, s{sT}\n s_cselect_b32 s{sNT}, 1, 0\n s_cbranch_scc0 L_ftnp')
    atomic_ret(a, vNXT, 0, 1, W, f's{sSPL}')
    a('L_ftnp:')
    a(f'''s_cmp_gt_u32 s{sAUX2}, s{sBLK}
          s_cbranch_scc1 L_ftgo
          s_lshl_b32 s{sFLG}, s{sCT}, 6
          s_add_u32 s{sFLG}, s{sFLG}, {WS_FLAGS+F_CH}
          s_add_u32 s{sAUX}, s{sBLK}, 1''')
    wait_flag(a, W, sFLG, f's{sAUX}', sleep=2, bar=False)
    a('v_mov_b32 v24, v21')
    bcast_ticket(a, 24, sAUX2, TKF)
    a('L_ftgo:')
    if opt.get('prof'): a('s_memrealtime s[78:79]')
    ft_segment(a)
    if opt.get('prof'): a('s_memrealtime s[84:85]')
    ft_gemm(a)
    if opt.get('prof'): a('s_memrealtime s[86:87]')
    a(f's_lshl_b32 s{sFLG}, s{sBLK}, 5\n s_add_u32 s{sFLG}, s{sFLG}, {WS_FLAGS+F_FT}\n s_lshl_b32 s{sAUX}, s{sBLK}, 7\n s_add_u32 s{sAUX}, s{sAUX}, {WS_FLAGS+F_DONE+DN_FT*128}')
    signal2(a, W, sFLG, 32, sAUX)
    if opt.get('prof'):
        a(f'''s_memrealtime s[80:81]
              s_waitcnt lgkmcnt(0)
              v_mov_b32 v32, s78
              v_mov_b32 v33, s84
              v_mov_b32 v34, s86
              v_mov_b32 v35, s80
              s_lshr_b32 s{sT}, s{sAO}, 9
              s_add_u32 s{sT}, s{sT}, {241*MB}
              s_mov_b64 exec, 1
              buffer_store_dwordx4 v[32:35], v{vZ}, {W}, s{sT} offen
              s_mov_b64 exec, -1''')
    a(f's_cmp_eq_u32 s{sNT}, 1\n s_cbranch_scc1 L_ftl\n s_branch L_ftc')
    a('L_g3:')
    srd(a, S_C, 0, 2*MB); srd(a, S_D, 96, 2*MB)
    a(f'''s_and_b32 s{sFLG}, s{sBLK}, 0xfc
          s_lshr_b32 s{sT}, s{sCT}, 1
          s_add_u32 s{sFLG}, s{sFLG}, s{sT}
          s_lshl_b32 s{sFLG}, s{sFLG}, 4
          s_add_u32 s{sFLG}, s{sFLG}, {WS_FLAGS+F_OB}''')
    wait_flag(a, W, sFLG, 1)
    red_pre(a)
    a(f's_lshl_b32 s{sFLG}, s{sBLK}, 7\n s_add_u32 s{sFLG}, s{sFLG}, {WS_FLAGS+F_DONE+DN_FT*128}')
    wait_flag(a, W, sFLG, 1, sleep=2)
    if opt.get('prof'): a('s_memrealtime s[78:79]')
    red_task(a)
    a('s_branch L_done')
    a('L_gs:')
    if opt.get('prof'): a('s_memrealtime s[78:79]')
    gemm_task_addr(a)
    gemm_start(a)
    a('L_st:')
    gemm_tile(a, True, 's')
    epi_row(a, False)
    a(f's_cmp_eq_u32 s{sEPI}, 4\n s_cbranch_scc0 L_gate')
    rows_phase(a, 'plain')
    a('L_nt2:')
    next_tile(2, 'L_st')
    a('L_gate:')
    rows_phase(a, 'gate')
    signal2(a, W, sSPL, 7, sWC)
    a('s_branch L_done')
    a('L_drain:')
    a('s_waitcnt vmcnt(0)\n s_barrier')
    pend_signal(a)
    a('s_branch L_done')
    a('L_done:')
    if opt.get('prof'):
        a(f'''s_memrealtime s[80:81]
              s_waitcnt lgkmcnt(0)
              v_mov_b32 v24, s76
              v_mov_b32 v25, s78
              v_mov_b32 v26, s80
              v_mov_b32 v27, s{S_XCC}
              s_lshl_b32 s{sT}, s{sTASK}, 4
              s_add_u32 s{sT}, s{sT}, {240*MB}
              s_mov_b64 exec, 1
              buffer_store_dwordx4 v[24:27], v{vZ}, {W}, s{sT} offen
              s_mov_b64 exec, -1''')
    a('s_branch L_claim\n L_chk:')
    a(f'''s_mov_b32 s{sFIRST}, 0
          buffer_load_dword v21, v{vZ}, {DBG}, 0 offen sc1
          s_waitcnt vmcnt(0)''')
    a(f'v_mov_b32 v24, v21')
    bcast_ticket(a, 24, sT+8)
    a(f's_cmp_lt_u32 s{sT+8}, 32\n s_cbranch_scc1 L_tryrole')
    a(f's_cmp_lt_u32 s{sPH}, {len(PH)}\n s_cbranch_scc1 L_claim\n s_branch L_end')
    a('L_wdone:')
    a('s_branch L_end')

    a('L_chain:')
    copt = dict(opt)
    Wc = W
    def kvwait(a, first):
        if first:
            L = a.label('kw')
            a(f'''s_lshl_b32 s{C.S_T0}, s{S_HEAD}, 13
                  s_add_u32 s{C.S_T0}, s{C.S_T0}, {WS_KM+6144}
                  s_mov_b32 s{C.S_T0+1}, {D_INIT}
                  s_mov_b32 s{C.S_T0+3}, 0
                  {L}:
                  s_add_u32 s{C.S_T0+3}, s{C.S_T0+3}, 1
                  s_cmp_gt_u32 s{C.S_T0+3}, 0x40000
                  s_cbranch_scc1 L_end
                  buffer_load_dword v16, v{C.PMZ+1}, {DBG}, s{C.S_T0+1} offen sc1
                  s_waitcnt vmcnt(0)
                  buffer_load_dword v17, v{C.PMZ+1}, {Wc}, s{C.S_T0} offen sc1
                  s_waitcnt vmcnt(0)
                  v_lshlrev_b32 v16, 1, v16
                  v_min_u32 v16, v16, v17
                  s_nop 0
                  v_readfirstlane_b32 s{C.S_T0+2}, v16
                  s_nop 3
                  s_cmp_lg_u32 s{C.S_T0+2}, 2
                  s_cbranch_scc1 {L}
                  v_mov_b32 v{C.vT+1}, 2''')
        else:
            L = a.label('kw'); Lx = a.label('kwx')
            a(f'''v_readlane_b32 s{C.S_T0}, v{C.vT+1}, 32
                  s_cmp_ge_u32 s{C.S_STEP}, 62
                  s_cbranch_scc1 {Lx}
                  s_cmp_eq_u32 s{C.S_T0}, 2
                  s_cbranch_scc1 {Lx}
                  s_sub_u32 s{C.S_T0+1}, s{C.S_KXO}, {32*8192}
                  s_mov_b32 exec_lo, 0
                  {L}:
                  s_add_u32 s{C.S_TO}, s{C.S_TO}, 16
                  s_cmp_gt_u32 s{C.S_TO}, 0x400000
                  s_cbranch_scc1 L_end
                  buffer_load_dword v{C.vT+1}, v{C.vTch}, {Wc}, s{C.S_T0+1} offen sc1
                  s_waitcnt vmcnt(0)
                  v_readlane_b32 s{C.S_T0}, v{C.vT+1}, 32
                  s_nop 3
                  s_cmp_lg_u32 s{C.S_T0}, 2
                  s_cbranch_scc1 {L}
                  s_mov_b64 exec, -1
                  {Lx}:''')
    def kmflag(a, last):
        L = a.label('kf')
        if last:
            a(f's_mov_b32 s{C.S_T0}, 64\n s_cmp_lg_u32 s{S_WAVE}, 0\n s_cbranch_scc1 {L}')
        else:
            a(f'''s_max_u32 s{C.S_T0}, s{C.S_STEP}, 1
                  s_sub_u32 s{C.S_T0}, s{C.S_T0}, 1
                  s_cmp_lg_u32 s{S_WAVE}, 0
                  s_cbranch_scc1 {L}''')
        a(f'''s_lshl_b32 s{C.S_T0+1}, s{S_HEAD}, 6
              s_add_u32 s{C.S_T0+1}, s{C.S_T0+1}, {WS_FLAGS+F_CH}
              v_mov_b32 v{C.vT}, s{C.S_T0}
              s_mov_b64 exec, 1
              buffer_store_dword v{C.vT}, v{C.PMZ+1}, {Wc}, s{C.S_T0+1} offen sc1
              s_mov_b64 exec, -1
              {L}:''')
    copt['kvwait'] = kvwait; copt['kmflag'] = kmflag
    C.chain_setup(a, copt)
    a(f'''
    s_barrier
    s_cmp_eq_u32 s{S_XCC}, {opt.get('team_xcc',0)}
    s_cselect_b32 s{C.S_T0}, 1, 0x10001
    v_mov_b32 v16, s{C.S_T0}
    v_mov_b32 v17, {D_TEAM}
    v_mov_b32 v18, {D_TEAMF}
    s_mov_b32 s{C.S_T0+3}, 0
    s_cmp_lg_u32 s{S_WAVE}, 0
    s_cbranch_scc1 L_cspin
    s_mov_b64 exec, 1
    buffer_atomic_add v16, v17, {DBG}, 0 offen sc0
    s_waitcnt vmcnt(0)
    v_add_u32 v16, s{C.S_T0}, v16
    v_and_b32 v19, 0xffff, v16
    v_cmp_eq_u32 vcc, 32, v19
    s_and_b64 exec, exec, vcc
    s_cbranch_execz L_cnl
    buffer_store_dword v16, v18, {DBG}, 0 offen sc1
    L_cnl:
    s_mov_b64 exec, -1
    L_cspin:
    s_add_u32 s{C.S_T0+3}, s{C.S_T0+3}, 1
    s_cmp_gt_u32 s{C.S_T0+3}, 0x100000
    s_cbranch_scc1 L_end
    buffer_load_dword v16, v18, {DBG}, 0 offen sc1
    s_waitcnt vmcnt(0)
    v_readfirstlane_b32 s{C.S_T0}, v16
    s_nop 3
    s_cmp_eq_u32 s{C.S_T0}, 0
    s_cbranch_scc1 L_cspin
    s_mov_b32 s59, s{C.S_T0}
    ''')
    C.chain_masks(a)
    a(f'''buffer_load_dwordx4 v[16:19], v{C.vOr}, {W}, s{C.S_INL} offen sc1
          buffer_load_dwordx4 v[20:23], v{C.vOr}, {W}, s{C.S_INL} offen offset:1024 sc1''')
    for s in range(1, C.RING):
        a(f'''s_mov_b32 s{C.S_T0}, {WS_MEM + s*8192}
              buffer_load_dwordx4 v[16:19], v{C.vMld}, {W}, s{C.S_T0} offen sc1
              buffer_load_dwordx4 v[20:23], v{C.vMld}, {W}, s{C.S_T0} offen offset:1024 sc1''')
    a(f's_waitcnt vmcnt(0)\n s_cmp_gt_u32 s59, 0xffff\n s_cbranch_scc1 L_slow')
    C.chain_loop(a, copt, '', 'f')
    a('s_branch L_end\n L_slow:')
    C.chain_loop(a, copt, 'sc1', 's')
    a('L_end:\n s_endpgm')
    a('.p2align 4\n.type task_table,@object\ntask_table:')
    for i in range(0, len(words), 8): a('.long ' + ', '.join(hex(x) for x in words[i:i+8]))
    a(f'.size task_table, {4*len(words)}')
    head = HDR + f'''; @launch grid=(256,1,1) block=(256,1,1) lds=163840
.amdgcn_target "amdgcn-amd-amdhsa--gfx950"
.text
.globl {NAME}
.p2align 8
.type {NAME},@function
{NAME}:
'''
    tail = f'''.section .rodata,"a"
.p2align 6
.amdhsa_kernel {NAME}
  .amdhsa_next_free_vgpr 512
  .amdhsa_next_free_sgpr 102
  .amdhsa_accum_offset 256
  .amdhsa_group_segment_fixed_size 0
  .amdhsa_kernarg_size 120
  .amdhsa_user_sgpr_count 2
  .amdhsa_user_sgpr_kernarg_segment_ptr 1
  .amdhsa_system_sgpr_workgroup_id_x 1
.end_amdhsa_kernel
'''
    return head + a.text() + tail

if __name__ == '__main__':
    out = sys.argv[1] if len(sys.argv) > 1 else 'parallel_sum__memory_aug_recurrent_mem_tr__mixer_gmlp__prompt.s'
    open(out,'w').write(gen({}))
```

```python
from common import *

S_WS   = 4
S_DBG  = 8
S_A    = 12
S_B    = 16
S_C    = 20
S_D    = 24
S_XCC  = 28
S_WAVE = 29
S_HEAD = 30
S_T0   = 31
S_STEP = 40
S_MEMO = 41
S_MEMN = 42
S_INO  = 43
S_KXO  = 44
S_VXO  = 45
S_KVL  = 46
S_INL  = 47
S_VMO  = 51
S_KMO  = 48
S_TO   = 49
S_C1   = 50
S_MT0  = 52
S_MT1  = 54
S_MST  = 56
S_PH   = 58
S_STAMP= 60

WREG = 36864
SH = 4*WREG
L_KV = 32768
PS = SH + 8192

vLANE=1; vL=2; vM=[3,4,5,6]; vN=[7,8,9,10]; vQTw=11; vQr=12; vKr=13; vOw=14; vOr=15
AF = lambda s: 16+4*s
ACC = [48,52,56,60]
SB = lambda i: 64+8*i
vIdx=96; vPst=97; vMld=98; vMst=99; vSel=100
VMQ=104; vKVr=108; vT=109; vKMst=111
PMZ=0
RESV=144
KXR=128; VXR=136
V0=112; V1=116; XA=[120,124]
vTch = vKVr
RING = 4

def wfrag(mat, s, t):
    if mat == 'v': return ar(8*(2*s+t), 8)
    if mat == 'o':
        tp = t >> 1
        if tp == 3: return None
        return ar(128 + 8*(2*(2*tp+s) + (t&1)), 8)
    if mat == 'k':
        if s in (2,3): return ar(224 + 8*(2*(s-2)+t), 8)
        if s in (4,5): return vr(RESV + 8*(2*(s-4)+t), 8)
        return None
    if mat == 'q':
        if s < 2 or s == 7: return None
        return vr(RESV + 32 + 8*(2*(s-2)+t), 8)
STREAMED = [('q',0),('k',0),('q',1),('k',1),('k',6),('k',7),('o',(0,3)),('o',(1,3)),('q',7)]
def home(mat, key, t):
    return STREAMED.index((mat,key))*4096 + t*2048

def padd(d, x, y):
    return f'v_add_f32 v{d}, v{x}, v{y}\n v_add_f32 v{d+1}, v{x+1}, v{y+1}'
def smf(a, acc, A, B):
    a(f'v_smfmac_f32_16x16x64_bf16 {vr(acc,4)}, {vr(A,4)}, {B}, {vr(vIdx)}')

def chain_setup(a, opt):
    a(f'''
    s_load_dwordx4 s[{S_T0+1}:{S_T0+4}], s[0:1], 16
    s_load_dwordx4 s[{S_T0+5}:{S_T0+8}], s[0:1], 32
    v_and_b32 v{vLANE}, 63, v0
    s_waitcnt lgkmcnt(0)
    s_mov_b32 s{S_A}, s{S_T0+1}
    s_mov_b32 s{S_A+1}, s{S_T0+2}
    s_mov_b32 s{S_A+2}, 0x400000
    s_mov_b32 s{S_A+3}, 0x20000
    s_mov_b32 s{S_B}, s{S_T0+3}
    s_mov_b32 s{S_B+1}, s{S_T0+4}
    s_mov_b32 s{S_B+2}, 0x400000
    s_mov_b32 s{S_B+3}, 0x20000
    s_mov_b32 s{S_C}, s{S_T0+5}
    s_mov_b32 s{S_C+1}, s{S_T0+6}
    s_mov_b32 s{S_C+2}, 0x400000
    s_mov_b32 s{S_C+3}, 0x20000
    s_mov_b32 s{S_D}, s{S_T0+7}
    s_mov_b32 s{S_D+1}, s{S_T0+8}
    s_mov_b32 s{S_D+2}, 0x400000
    s_mov_b32 s{S_D+3}, 0x20000
    ''')
    sq, so_, aq, ao = 100, 101, 102, 110
    a(f'''
    v_lshrrev_b32 v20, 4, v{vLANE}
    v_and_b32 v21, 15, v{vLANE}
    v_lshlrev_b32 v{sq}, 13, v20
    v_lshl_add_u32 v{sq}, v21, 4, v{sq}
    s_lshl_b32 s{S_T0}, s{S_HEAD}, 8
    s_lshl_b32 s{S_T0+1}, s{S_WAVE}, 20
    s_add_u32 s{S_T0}, s{S_T0}, s{S_T0+1}
    v_add_u32 v{sq}, s{S_T0}, v{sq}
    v_lshlrev_b32 v{so_}, 10, v20
    v_lshl_add_u32 v{so_}, v21, 4, v{so_}
    s_lshl_b32 s{S_T0}, s{S_HEAD}, 17
    s_lshl_b32 s{S_T0+1}, s{S_WAVE}, 8
    s_add_u32 s{S_T0}, s{S_T0}, s{S_T0+1}
    v_add_u32 v{so_}, s{S_T0}, v{so_}
    s_mul_i32 s{S_T0+2}, s{S_WAVE}, {WREG}
    s_lshl_b32 s{S_T0+3}, s{S_WAVE}, 14
    ''')
    batches = opt.get('border', [('o',0),('o',1),('v',0),('v',1),('k',0),('k',1),('q',0),('q',1)])
    def issue(n):
        mat, p = batches[n]
        buf = (n & 1)*65536
        for i in range(16):
            if mat == 'o':
                a(f'''s_add_u32 m0, s{S_T0+3}, {buf + i*1024}
                      s_mov_b32 s{S_STEP}, {p*65536 + i*4096}
                      buffer_load_dwordx4 v{so_}, s[{S_D}:{S_D+3}], s{S_STEP} offen lds''')
            else:
                srd = {'q':S_A,'k':S_B,'v':S_C}[mat]
                a(f'''s_add_u32 m0, s{S_T0+3}, {buf + i*1024}
                      s_mov_b32 s{S_STEP}, {p*524288 + i*32768}
                      buffer_load_dwordx4 v{sq}, s[{srd}:{srd+3}], s{S_STEP} offen lds''')
    issue(0); issue(1)
    a(f'''
    v_lshrrev_b32 v22, 4, v{vLANE}            ; g
    v_and_b32 v23, 15, v{vLANE}               ; j / i
    v_bfe_u32 v24, v{vLANE}, 2, 2
    v_and_b32 v25, 3, v{vLANE}                ; c
    v_lshrrev_b32 v26, 1, v22                 ; g>>1
    v_and_b32 v27, 1, v22                     ; g&1
    v_lshrrev_b32 v28, 1, v24                 ; r>>1
    v_and_b32 v29, 1, v24                     ; r&1
    v_lshl_add_u32 v18, v26, 2, v27
    v_lshl_add_u32 v18, v28, 1, v18
    v_lshl_add_u32 v18, v29, 4, v18
    v_lshlrev_b32 v18, 8, v18
    v_lshl_add_u32 v18, v25, 4, v18
    s_lshl_b32 s{S_T0+4}, s{S_WAVE}, 6
    s_add_u32 s{S_T0+4}, s{S_T0+4}, s{S_T0+3}
    v_add_u32 v{aq}, s{S_T0+4}, v18
    v_xor_b32 v{aq+1}, 0x4000, v{aq}
    v_xor_b32 v{aq+2}, 0x8000, v{aq}
    v_xor_b32 v{aq+3}, 0xc000, v{aq}
    v_add_u32 v{aq+4}, 0x10000, v{aq}
    v_add_u32 v{aq+5}, 0x10000, v{aq+1}
    v_add_u32 v{aq+6}, 0x10000, v{aq+2}
    v_add_u32 v{aq+7}, 0x10000, v{aq+3}
    v_lshl_add_u32 v19, v26, 4, v29
    v_lshl_add_u32 v19, v27, 2, v19
    v_lshl_add_u32 v19, v28, 3, v19
    v_lshlrev_b32 v19, 8, v19
    v_lshl_add_u32 v19, v25, 3, v19
    v_add_u32 v{ao}, s{S_T0+3}, v19
    ; vL
    v_lshlrev_b32 v30, 4, v{vLANE}            ; lane*16
    v_add_u32 v{vL}, s{S_T0+2}, v30
    v_lshlrev_b32 v31, 2, v{vLANE}            ; lane*4
    ''')
    for p in range(4):
        a(f'''s_xor_b32 s{S_T0+4}, s{S_WAVE}, {p}
              s_lshl_b32 s{S_T0+4}, s{S_T0+4}, 11
              s_add_u32 s{S_T0+5}, s{S_T0+4}, {SH}
              v_add_u32 v{vM[p]}, s{S_T0+5}, v30
              s_add_u32 s{S_T0+5}, s{S_T0+4}, {PS+1024}
              v_add_u32 v{vN[p]}, s{S_T0+5}, v31''')
    a(f'''
    s_lshl_b32 s{S_T0+4}, s{S_WAVE}, 11
    s_add_u32 s{S_T0+4}, s{S_T0+4}, {PS}
    v_lshlrev_b32 v{vQTw}, 7, v22
    v_lshl_add_u32 v{vQTw}, v23, 2, v{vQTw}
    v_add_u32 v{vQTw}, s{S_T0+4}, v{vQTw}
    v_and_b32 v32, 7, v23                     ; m
    v_lshrrev_b32 v33, 3, v23                 ; T
    v_lshlrev_b32 v{vQr}, 6, v32
    v_lshl_add_u32 v{vQr}, v27, 4, v{vQr}
    v_mov_b32 v34, 1280
    v_cmp_eq_u32 vcc, v26, v33
    s_nop 1
    v_cndmask_b32 v{vQr}, v34, v{vQr}, vcc
    v_add_u32 v{vQr}, s{S_T0+4}, v{vQr}
    v_lshl_add_u32 v35, v24, 1, v26           ; key
    v_lshlrev_b32 v{vKr}, 6, v35
    v_lshl_add_u32 v{vKr}, v27, 4, v{vKr}
    v_add_u32 v{vKr}, s{S_T0+4}, v{vKr}
    v_add_u32 v{vKr}, 512, v{vKr}
    v_and_b32 v36, 1, v{vLANE}
    v_lshl_add_u32 v{vKr}, v36, 5, v{vKr}
    v_lshlrev_b32 v{vKMst}, 8, v35
    v_lshl_add_u32 v{vKMst}, v27, 4, v{vKMst}
    v_lshl_add_u32 v{vKMst}, v36, 5, v{vKMst}
    s_lshl_b32 s{S_T0+5}, s{S_WAVE}, 6
    v_add_u32 v{vKMst}, s{S_T0+5}, v{vKMst}
    v_cmp_eq_u32 s[{S_MT0}:{S_MT0+1}], 0, v33
    v_cmp_eq_u32 s[{S_MT1}:{S_MT1+1}], 1, v33
    v_lshrrev_b32 v36, 1, v32                 ; m>>1
    v_and_b32 v37, 1, v32                     ; m&1
    v_lshl_add_u32 v{vOw}, v26, 4, v37
    v_lshl_add_u32 v{vOw}, v36, 2, v{vOw}
    v_lshl_add_u32 v{vOw}, v27, 1, v{vOw}
    v_lshlrev_b32 v{vOw}, 4, v{vOw}
    s_lshl_b32 s{S_T0+5}, s{S_WAVE}, 9         ; (w>>1)*1024 + (w&1)*512 = w*512
    s_add_u32 s{S_T0+5}, s{S_T0+5}, {SH}
    v_add_u32 v{vOw}, s{S_T0+5}, v{vOw}
    v_lshlrev_b32 v36, 4, v32
    v_lshl_add_u32 v36, v22, 7, v36
    v_add_u32 v36, s{S_T0+4}, v36
    v_add_u32 v36, 1536, v36
    v_cndmask_b32 v{vOw}, v{vOw}, v36, s[{S_MT1}:{S_MT1+1}]
    v_add_u32 v{vOr}, {SH}, v30
    v_bfe_u32 v38, v{vLANE}, 1, 1
    v_mov_b32 v{vIdx}, 0x4444
    v_mov_b32 v39, 0xeeee
    v_cmp_eq_u32 vcc, 1, v38
    s_nop 1
    v_cndmask_b32 v{vIdx}, v{vIdx}, v39, vcc
    s_lshl_b32 s{S_T0+5}, s{S_WAVE}, 3
    v_add_u32 v{vPst}, s{S_T0+5}, v22
    v_lshlrev_b32 v{vPst}, 14, v{vPst}
    v_lshl_add_u32 v{vPst}, v24, 11, v{vPst}
    v_lshl_add_u32 v{vPst}, v25, 4, v{vPst}
    s_lshl_b32 s{S_T0+5}, s{S_HEAD}, 6
    v_add_u32 v{vPst}, s{S_T0+5}, v{vPst}
    s_lshl_b32 s{S_T0+5}, s{S_HEAD}, 14
    s_lshl_b32 s{S_T0+6}, s{S_WAVE}, 11
    s_add_u32 s{S_T0+5}, s{S_T0+5}, s{S_T0+6}
    s_add_u32 s{S_INL}, s{S_T0+5}, {WS_INBOX - SH}
    v_lshlrev_b32 v{vMst}, 7, v26
    v_lshl_add_u32 v{vMst}, v25, 3, v{vMst}
    v_lshl_add_u32 v{vMst}, v27, 2, v{vMst}
    s_lshl_b32 s{S_T0+5}, s{S_HEAD}, 8
    s_lshl_b32 s{S_T0+6}, s{S_WAVE}, 5
    s_add_u32 s{S_T0+5}, s{S_T0+5}, s{S_T0+6}
    v_add_u32 v{vMst}, s{S_T0+5}, v{vMst}
    s_mov_b32 s{S_MST}, 0x000f000f
    s_mov_b32 s{S_MST+1}, 0x000f000f
    v_and_b32 v40, 1, v{vLANE}
    v_lshlrev_b32 v{vMld}, 8, v24
    v_lshl_add_u32 v{vMld}, v40, 7, v{vMld}
    v_lshl_add_u32 v{vMld}, v22, 5, v{vMld}
    v_lshl_add_u32 v{vMld}, v38, 4, v{vMld}
    s_lshl_b32 s{S_T0+5}, s{S_WAVE}, 11
    v_add_u32 v{vMld}, s{S_T0+5}, v{vMld}
    s_mov_b32 s{S_C1}, 0x3e0293ee      ; 128^-0.5 * log2(e)
    ''')
    ring = opt.get('ring', RING)
    a(f'''
    v_mov_b32 v44, -1
    v_mov_b32 v45, -1
    v_mov_b32 v46, -1
    v_mov_b32 v47, -1
    buffer_store_dwordx4 v[44:47], v{vOr}, s[{S_WS}:{S_WS+3}], s{S_INL} offen sc1
    buffer_store_dwordx4 v[44:47], v{vOr}, s[{S_WS}:{S_WS+3}], s{S_INL} offen offset:1024 sc1
    s_add_u32 s{S_T0+5}, s{S_INL}, 8192
    buffer_store_dwordx4 v[44:47], v{vOr}, s[{S_WS}:{S_WS+3}], s{S_T0+5} offen sc1
    buffer_store_dwordx4 v[44:47], v{vOr}, s[{S_WS}:{S_WS+3}], s{S_T0+5} offen offset:1024 sc1
    s_load_dwordx2 s[{S_T0+5}:{S_T0+6}], s[0:1], 8
    s_mov_b64 exec, s[{S_MST}:{S_MST+1}]
    ''')
    for s in range(1, ring):
        a(f'''s_mov_b32 s{S_T0+7}, {WS_MEM + s*8192}
              buffer_store_dword v44, v{vMst}, s[{S_WS}:{S_WS+3}], s{S_T0+7} offen sc1''')
    a(f'''
    s_mov_b64 exec, -1
    s_and_b32 s{S_T0+7}, s{S_HEAD}, 3
    s_lshl_b32 s{S_T0+7}, s{S_T0+7}, 11
    s_lshr_b32 s{S_T0+8}, s{S_HEAD}, 2
    s_lshl_b32 s{S_T0+8}, s{S_T0+8}, 7
    s_add_u32 s{S_T0+7}, s{S_T0+7}, s{S_T0+8}
    s_lshl_b32 s{S_T0+8}, s{S_WAVE}, 3
    s_add_u32 s{S_T0+7}, s{S_T0+7}, s{S_T0+8}
    v_lshlrev_b32 v41, 10, v26
    v_lshl_add_u32 v41, v25, 1, v41
    v_lshl_add_u32 v41, v27, 6, v41
    v_add_u32 v41, s{S_T0+7}, v41
    s_waitcnt lgkmcnt(0)
    global_load_ushort v48, v41, s[{S_T0+5}:{S_T0+6}]
    global_load_ushort v49, v41, s[{S_T0+5}:{S_T0+6}] offset:32
    ''')
    temps = [16+8*i for i in range(10)] + [112+8*i for i in range(4)]
    tmap = {}
    PARK = 131072
    for n,(mat,p) in enumerate(batches):
        buf = n & 1
        a(f's_waitcnt vmcnt({16 if n < 7 else 0})')
        if n == 2:
            a(f'''    v_lshl_or_b32 v48, v49, 16, v48
    v_min_u32 v48, -2, v48
    s_mov_b32 s{S_T0+7}, {WS_MEM}
    s_mov_b64 exec, s[{S_MST}:{S_MST+1}]
    buffer_store_dword v48, v{vMst}, s[{S_WS}:{S_WS+3}], s{S_T0+7} offen sc1
    s_mov_b64 exec, -1
''')
        if mat != 'o': a('s_barrier')
        if opt.get('hook'): opt['hook'](a, n)
        if mat == 'o':
            if buf: a(f'v_add_u32 v{ao}, 0x10000, v{ao}')
            for t in range(8):
                dst = wfrag('o', p, t)
                for rho in range(4):
                    if dst is None: d = vr(16 + 8*(t&1) + 2*rho, 2)
                    else:
                        f, base = dst[0], int(dst[2:dst.index(':')]); d = f'{f}[{base+2*rho}:{base+2*rho+1}]'
                    a(f'ds_read_b64_tr_b16 {d}, v{ao} offset:{(32*(rho>>1) + 2*(rho&1))*256 + 32*t}')
            if buf: a(f'v_subrev_u32 v{ao}, 0x10000, v{ao}')
            a('s_waitcnt lgkmcnt(0)')
            for t in range(2):
                for hf in range(2):
                    off = PARK + (2*p+t)*8192 + hf*1024 - SH
                    a(f'v_add_u32 v32, {off & 0xffffffff}, v{vM[0]}\n ds_write_b128 v32, {vr(16+8*t+4*hf,4)}')
        else:
            for pi in range(4):
                sg = 2*pi + p
                for t in range(2):
                    dst = wfrag(mat, sg, t)
                    if dst is None:
                        tmap[(mat,sg,t)] = temps.pop(0); dst = vr(tmap[(mat,sg,t)], 8)
                    f, base = dst[0], int(dst[2:dst.index(':')])
                    for rho in range(4):
                        a(f'ds_read_b64_tr_b16 {f}[{base+2*rho}:{base+2*rho+1}], v{aq+4*buf+pi} offset:{(32*(rho&1) + 8*(rho>>1))*256 + 8*t}')
        a('s_waitcnt lgkmcnt(0)\n s_barrier')
        if n + 2 < 8: issue(n+2)
    for (mat,sg,t),r in list(tmap.items())[:4]:
        pass
    items = list(tmap.items())
    low = [it for it in items if home(it[0][0],it[0][1],it[0][2]) + 2048 <= PARK - 3*WREG][:4]
    assert len(low) == 4
    def wr(key, r, k2=None):
        off = home(*key)
        a(f'ds_write_b128 v{vL}, {vr(r,4)} offset:{off}\n ds_write_b128 v{vL}, {vr(r+4,4)} offset:{off+1024}')
    for key,r in low: wr(key, r)
    a('s_waitcnt lgkmcnt(0)')
    for i,(key,r) in enumerate(low):
        for hf in range(2):
            off = PARK + i*8192 + hf*1024 - SH
            a(f'v_add_u32 v{ao}, {off & 0xffffffff}, v{vM[0]}\n ds_read_b128 {vr(r+4*hf,4)}, v{ao}')
    a('s_waitcnt lgkmcnt(0)\n s_barrier')
    for key,r in items:
        if (key,r) not in low: wr(key, r)
    for i,(key,r) in enumerate(low): wr(('o',(i>>1,3),i&1), r)
    a(f'''
    s_waitcnt lgkmcnt(0)
    v_lshrrev_b32 v22, 4, v{vLANE}
    v_and_b32 v23, 15, v{vLANE}
    v_bfe_u32 v24, v{vLANE}, 2, 2
    v_and_b32 v25, 3, v{vLANE}
    v_and_b32 v27, 1, v22
    v_lshrrev_b32 v28, 1, v24
    v_and_b32 v29, 1, v24
    v_mov_b32 v39, 0x3f80
    v_mov_b32 v40, 0x3f800000
    v_cmp_eq_u32 vcc, 1, v28
    s_nop 1
    v_cndmask_b32 v39, v39, v40, vcc
    v_cmp_gt_u32 vcc, 2, v25
    s_nop 1
    v_cndmask_b32 v39, 0, v39, vcc
    v_lshl_add_u32 v40, v29, 1, v25
    ''')
    for d in range(4):
        a(f'''v_cmp_eq_u32 vcc, {d}, v40
              s_nop 1
              v_cndmask_b32 v{vSel+d}, 0, v39, vcc''')
    a(f'''
    v_lshlrev_b32 v{vTch}, 7, v23
    v_lshl_add_u32 v{vTch}, v27, 24, v{vTch}
    v_add_u32 v{vTch}, {SH + 32*8192}, v{vTch}
    s_lshl_b32 s{S_T0+5}, s{S_WAVE}, 11
    s_sub_u32 s{S_T0+6}, {WS_KM + 6144 - WS_KX + SH + 2*32*8192}, s{S_T0+5}
    v_mov_b32 v40, s{S_T0+6}
    v_cmp_lt_u32 vcc, 31, v{vLANE}
    s_nop 1
    v_cndmask_b32 v{vTch}, v{vTch}, v40, vcc
    v_mov_b32 v42, 0
    ds_write_b32 v{vN[0]}, v42 offset:256
    s_waitcnt vmcnt(0) lgkmcnt(0)
    ''')

def chain_masks(a):
    a(f'''
    v_mov_b32 v{PMZ}, 0
    v_mov_b32 v{PMZ+1}, 0
    v_mov_b32 v{VMQ}, 0
    v_mov_b32 v{VMQ+1}, 0
    v_mov_b32 v{VMQ+2}, 0
    v_mov_b32 v{VMQ+3}, 0
    ''')

def stamp(a, opt, i, mode=1):
    if opt.get('stamps') == 3:
        if mode == 1 and i in (1,2,5,8,9,10,11): a(f's_memrealtime s[{S_STAMP+2*i}:{S_STAMP+2*i+1}]')
    elif opt.get('stamps') == 4:
        if (mode == 4) or (mode == 1 and i in (0,1,2,8,9,10,11)): a(f's_memtime s[{S_STAMP+2*i}:{S_STAMP+2*i+1}]')
    elif opt.get('stamps') == mode:
        a(f's_memtime s[{S_STAMP+2*i}:{S_STAMP+2*i+1}]')

def chain_loop(a, opt, st, tag):
    ring = opt.get('ring', RING)
    d1 = opt.get('d1', 4); d2 = opt.get('d2', 6)
    W = f's[{S_WS}:{S_WS+3}]'
    Q0,Q1,K0,K1 = ACC
    Ltop = f'L_step_{tag}'; P1 = f'L_p1_{tag}'; P2 = f'L_p2_{tag}'; Lfin = f'L_fin_{tag}'
    TO = lambda out: a(f's_add_u32 s{S_TO}, s{S_TO}, 1\n s_cmp_gt_u32 s{S_TO}, 0x100000\n s_cbranch_scc1 {out}')
    def zl(acc): return [f'v_mov_b32 v{acc+i}, 0' for i in range(4)]
    def zero(acc): a('\n'.join(zl(acc)))
    def sread(dst, mat, key, t):
        off = home(mat, key, t)
        a(f'ds_read_b128 {vr(dst,4)}, v{vL} offset:{off}\n ds_read_b128 {vr(dst+4,4)}, v{vL} offset:{off+1024}')
    a(f"""
    s_mov_b32 s{S_STEP}, 0
    s_mov_b32 s{S_MEMO}, {WS_MEM}
    s_mov_b32 s{S_MEMN}, {WS_MEM + 8192}
    s_mov_b32 s{S_INO}, {WS_INBOX}
    s_lshl_b32 s{S_T0}, s{S_HEAD}, 13
    s_lshl_b32 s{S_T0+1}, s{S_WAVE}, 11
    s_add_u32 s{S_KMO}, s{S_T0}, {WS_KM}
    s_add_u32 s{S_T0}, s{S_T0}, s{S_T0+1}
    s_add_u32 s{S_KXO}, s{S_T0}, {WS_KX - SH}
    s_add_u32 s{S_VXO}, s{S_T0}, {WS_VX - SH}
    s_mul_i32 s{S_KVL}, s{S_WAVE}, {WREG}
    s_add_u32 s{S_KVL}, s{S_KVL}, {L_KV}
    s_lshl_b32 s{S_T0+1}, s{S_WAVE}, 10
    s_add_u32 s{S_VMO}, s{S_KMO}, s{S_T0+1}
    s_add_u32 s{S_VMO}, s{S_VMO}, {2048 - SH - 32*8192}
    s_mov_b32 s{S_TO}, 0
    s_mov_b32 s{S_PH}, 0
    """)
    def kvload():
        return [f'buffer_load_dwordx4 {vr(KXR,4)}, v{vOr}, {W}, s{S_KXO} offen sc1',
                f'buffer_load_dwordx4 {vr(KXR+4,4)}, v{vOr}, {W}, s{S_KXO} offen offset:1024 sc1',
                f'buffer_load_dwordx4 {vr(VXR,4)}, v{vOr}, {W}, s{S_VXO} offen sc1',
                f'buffer_load_dwordx4 {vr(VXR+4,4)}, v{vOr}, {W}, s{S_VXO} offen offset:1024 sc1']
    def pre_sb():
        sread(SB(0),'k',0,1); sread(SB(1),'q',1,0); sread(SB(2),'q',1,1); sread(SB(3),'k',1,0)
    def pre_af():
        sread(AF(2),'q',0,0); sread(AF(4),'q',0,1); sread(AF(6),'k',0,0)
    def p2_loads():
        a(f"""buffer_load_dwordx4 {vr(AF(0),4)}, v{vMld}, {W}, s{S_MEMO} offen sc1
              buffer_load_dwordx4 {vr(AF(1),4)}, v{vMld}, {W}, s{S_MEMO} offen offset:1024 sc1""")
    if opt.get('kvwait'): opt['kvwait'](a, first=True)
    pre_sb(); pre_af()
    for x in ACC + [V0,V1] + XA: zero(x)
    D1p = opt.get('D1', 1); D2p = opt.get('D2', 1)
    chk2 = f"""
    v_max3_u32 v{vT}, v{AF(0)}, v{AF(0)+1}, v{AF(0)+2}
    v_max3_u32 v{vT}, v{vT}, v{AF(0)+3}, v{AF(1)}
    v_max3_u32 v{vT}, v{vT}, v{AF(1)+1}, v{AF(1)+2}
    v_max_u32 v{vT}, v{vT}, v{AF(1)+3}
    v_cmp_eq_u32 vcc, -1, v{vT}
    s_and_b64 exec, vcc, exec
    s_cbranch_execz {P2}x
    """
    p2_loads()
    a(f'{Ltop}:')
    stamp(a, opt, 0)
    a('s_waitcnt vmcnt(0)')
    if opt.get('stamps') == 4: a(f's_mov_b32 s{S_STAMP+14}, 0')
    a(chk2)
    if opt.get('stamps') == 4: a(f's_bcnt1_i32_b64 s{S_STAMP+14}, exec')
    for i in range(D2p-1):
        p2_loads(); a('s_nop 7\n'*opt.get('g2',2))
    a(f'{P2}:')
    p2_loads()
    a(f's_waitcnt vmcnt({2*(D2p-1)})')
    a(chk2)
    a(f"""
    s_add_u32 s{S_TO}, s{S_TO}, 1
    s_cmp_gt_u32 s{S_TO}, 0x100000
    s_cbranch_scc0 {P2}
    {P2}x:
    s_mov_b64 exec, -1
    ds_write_b128 v{vM[0]}, {vr(AF(0),4)}
    ds_write_b128 v{vM[0]}, {vr(AF(1),4)} offset:1024
    s_waitcnt lgkmcnt(2)
    """)
    stamp(a, opt, 1)
    kl = kvload()
    smf(a,Q0,AF(0),vr(AF(2),8)); a(kl[0])
    smf(a,Q1,AF(0),vr(AF(4),8)); a(kl[1])
    smf(a,K0,AF(0),vr(AF(6),8)); a(kl[2])
    smf(a,K1,AF(0),vr(SB(0),8)); a(kl[3])
    a('s_waitcnt lgkmcnt(0)\n s_barrier')
    stamp(a, opt, 2)
    if opt.get('log'):
        a(f'''{'s_memrealtime' if opt.get('prof') else 's_memtime'} s[{S_STAMP}:{S_STAMP+1}]
              s_lshl_b32 s{S_STAMP+2}, s{S_HEAD}, 10
              s_lshl_b32 s{S_STAMP+3}, s{S_WAVE}, 8
              s_add_u32 s{S_STAMP+2}, s{S_STAMP+2}, s{S_STAMP+3}
              s_lshl_b32 s{S_STAMP+3}, s{S_STEP}, 2
              s_add_u32 s{S_STAMP+2}, s{S_STAMP+2}, s{S_STAMP+3}
              s_add_u32 s{S_STAMP+2}, s{S_STAMP+2}, {65536}
              s_waitcnt lgkmcnt(0)
              v_mov_b32 v{vT}, s{S_STAMP}
              s_mov_b64 exec, 1
              buffer_store_dword v{vT}, v{PMZ+1}, {W}, s{S_STAMP+2} offen
              s_mov_b64 exec, -1''')
    vseq = [(s,t) for s in range(8) for t in range(2)]
    def vm(n, fill=()):
        fill = list(fill)
        for _ in range(n):
            if not vseq: break
            s,t = vseq.pop(0)
            smf(a, V0 if t == 0 else V1, AF(s), wfrag('v',s,t))
            a('\n'.join(fill[:2])); fill = fill[2:]
        a('\n'.join(fill))
    rd = []
    for p in (1,2,3):
        rd += [f'ds_read_b128 {vr(AF(2*p),4)}, v{vM[p]}', f'ds_read_b128 {vr(AF(2*p+1),4)}, v{vM[p]} offset:1024']
    a(rd[0]); a(rd[1])
    if opt.get('kvwait'): opt['kvwait'](a, first=False)
    a(f'buffer_load_dword v{vT+1}, v{vTch}, {W}, s{S_KXO} offen sc1')
    smf(a,Q0,AF(1),vr(SB(1),8)); a(rd[2]); a(rd[3])
    smf(a,Q1,AF(1),vr(SB(2),8)); a(rd[4]); a(rd[5])
    smf(a,K0,AF(1),vr(SB(3),8))
    a(f's_add_u32 s{S_KXO}, s{S_KXO}, {32*8192}\n s_add_u32 s{S_VXO}, s{S_VXO}, {32*8192}')
    vm(2)
    vm(opt.get('v0',0))
    def sr1(dst, mat, key, t, half):
        return f'ds_read_b128 {vr(dst+4*half,4)}, v{vL} offset:{home(mat,key,t)+1024*half}'
    late = [(SB(0),'q',7,0),(SB(1),'q',7,1),(SB(2),'k',1,1),(SB(3),'k',6,0)]
    for s in range(2,7):
        a(f's_waitcnt lgkmcnt({7-s + (0 if s<=2 else 2*min(s-2,4))})')
        smf(a,Q0,AF(s),wfrag('q',s,0))
        if s < 6: a(sr1(*late[s-2],0))
        smf(a,Q1,AF(s),wfrag('q',s,1))
        if s < 6: a(sr1(*late[s-2],1))
        if s == opt.get('vmpos',6) and opt.get('nokm') not in (1,3): a(f'buffer_store_dwordx4 {vr(VMQ,4)}, v{vOr}, {W}, s{S_VMO} offen sc1\n s_add_u32 s{S_VMO}, s{S_VMO}, {32*8192}')
    a('s_waitcnt lgkmcnt(2)')
    smf(a,Q0,AF(7),vr(SB(0),8)); smf(a,Q1,AF(7),vr(SB(1),8))
    stamp(a, opt, 3)
    smf(a,K1,AF(1),vr(SB(2),8))
    more = [sr1(SB(0),'k',6,1,0), sr1(SB(0),'k',6,1,1), sr1(SB(1),'k',7,0,0), sr1(SB(1),'k',7,0,1), sr1(SB(2),'k',7,1,0), sr1(SB(2),'k',7,1,1)]
    a(more.pop(0))
    for s in (2,3,4,5):
        smf(a,K0,AF(s),wfrag('k',s,0))
        if more: a(more.pop(0))
        if s == 3: a(padd(Q0,Q0,Q0+2))
        if s == 4: a(f'v_cvt_pk_bf16_f32 v{vT}, v{Q0}, v{Q1}\n v_cvt_pk_bf16_f32 v{PMZ}, v{Q0+1}, v{Q1+1}')
        if s == 5: a('\n'.join(zl(Q0)[:2]))
        smf(a,K1,AF(s),wfrag('k',s,1))
        if more: a(more.pop(0))
        if s == 3: a(padd(Q1,Q1,Q1+2))
        if s == 4: a(f'ds_write2_b32 v{vQTw}, v{vT}, v{PMZ} offset0:0 offset1:16')
        if s == 5: a('\n'.join(zl(Q0)[2:]))
    a('s_waitcnt lgkmcnt(1)')
    QB, KX, KM, DX, DM = SB(3), KXR, SB(0), SB(1), SB(1)+4
    smf(a,K0,AF(6),vr(SB(3),8)); a('\n'.join(zl(Q1)[:2]))
    smf(a,K1,AF(6),vr(SB(0),8)); a('\n'.join(zl(Q1)[2:]))
    smf(a,K0,AF(7),vr(SB(1),8))
    a(f'ds_read_b128 {vr(QB,4)}, v{vQr}')
    smf(a,K1,AF(7),vr(SB(2),8))
    a(f'ds_read_b128 {vr(QB+4,4)}, v{vQr} offset:32')
    stamp(a, opt, 4)
    vm(2)
    a(f"""
    s_nop 0
    {padd(K0,K0,K0+2)}
    {padd(K1,K1,K1+2)}
    v_cvt_pk_bf16_f32 v{vT}, v{K0}, v{K1}
    v_cvt_pk_bf16_f32 v{PMZ}, v{K0+1}, v{K1+1}
    ds_write2_b32 v{vQTw}, v{vT}, v{PMZ} offset0:128 offset1:144
    ds_read_b128 {vr(KM,4)}, v{vKr}
    ds_read_b128 {vr(KM+4,4)}, v{vKr} offset:32
    s_waitcnt lgkmcnt(3) vmcnt({opt.get('kvcnt',2)})
    v_mfma_f32_16x16x32_bf16 {vr(DX,4)}, {vr(KX,4)}, {vr(QB,4)}, 0
    v_mfma_f32_16x16x32_bf16 {vr(DX,4)}, {vr(KX+4,4)}, {vr(QB+4,4)}, {vr(DX,4)}
    """)
    vm(opt.get('va',3), zl(K0)+zl(K1)[:2])
    if opt.get('kmflag'): opt['kmflag'](a, last=False)
    a(f"""
    s_waitcnt lgkmcnt(0)
    v_mfma_f32_16x16x32_bf16 {vr(DM,4)}, {vr(KM,4)}, {vr(QB,4)}, 0
    v_mfma_f32_16x16x32_bf16 {vr(DM,4)}, {vr(KM+4,4)}, {vr(QB+4,4)}, {vr(DM,4)}
    ds_write_b128 v{vM[0]}, {vr(DX,4)} offset:8192
    """)
    vm(2, zl(K1)[2:])
    a(f"""
    s_nop 0
    ds_write_b32 v{vN[0]}, v{DM}
    """)
    vm(opt.get('vb',3), [] if opt.get('nokm') in (1,2) else [f'buffer_store_dwordx4 {vr(KM,4)}, v{vKMst}, {W}, s{S_KMO} offen sc1'])
    a('s_waitcnt lgkmcnt(0)\n s_barrier')
    stamp(a, opt, 5)
    X1, X2, X3, MM = SB(3), SB(3)+4, SB(2), SB(2)+4
    VX = VXR
    a(f"""
    ds_read_b128 {vr(X1,4)}, v{vM[1]} offset:8192
    ds_read_b32 v{MM}, v{vN[1]}
    """)
    vm(16, [f'ds_read_b128 {vr(X2,4)}, v{vM[2]} offset:8192', f'ds_read_b32 v{MM+1}, v{vN[2]}',
            f'ds_read_b128 {vr(X3,4)}, v{vM[3]} offset:8192', f'ds_read_b32 v{MM+2}, v{vN[3]}'])
    a(f's_cmp_eq_u32 s{S_STEP}, 63\n s_cbranch_scc1 {Lfin}')
    a(f"""
    s_waitcnt lgkmcnt(4)
    {padd(DX,DX,X1)}
    {padd(DX+2,DX+2,X1+2)}
    v_add_f32 v{DM}, v{DM}, v{MM}
    s_waitcnt lgkmcnt(2)
    {padd(DX,DX,X2)}
    {padd(DX+2,DX+2,X2+2)}
    v_add_f32 v{DM}, v{DM}, v{MM+1}
    s_waitcnt lgkmcnt(0)
    {padd(DX,DX,X3)}
    {padd(DX+2,DX+2,X3+2)}
    v_add_f32 v{DM}, v{DM}, v{MM+2}
    """)
    stamp(a, opt, 6)
    PX = SB(3)
    mx, tt, E = SB(2), SB(2)+1, SB(2)+2
    DPP = 'row_ror:8 row_mask:0xf bank_mask:0xf'
    a(f"""
    v_max3_f32 v{mx}, v{DX}, v{DX+1}, v{DX+2}
    v_max3_f32 v{mx}, v{mx}, v{DX+3}, v{DM}
    {padd(V0,V0,V0+2)}
    v_max_f32_dpp v{mx}, v{mx}, v{mx} {DPP}
    v_mov_b32 v{tt}, v{mx}
    {padd(V1,V1,V1+2)}
    v_permlane16_swap_b32 v{mx}, v{tt}
    v_max_f32 v{mx}, v{mx}, v{tt}
    v_mov_b32 v{tt}, v{mx}
    v_cvt_pk_bf16_f32 v{VMQ}, v{V0}, v{V0+1}
    v_cvt_pk_bf16_f32 v{VMQ+2}, v{V1}, v{V1+1}
    v_permlane32_swap_b32 v{mx}, v{tt}
    v_max_f32 v{mx}, v{mx}, v{tt}
    v_mul_f32 v{mx}, s{S_C1}, v{mx}
    v_fma_f32 v{E}, v{DX}, s{S_C1}, -v{mx}
    v_fma_f32 v{E+1}, v{DX+1}, s{S_C1}, -v{mx}
    v_exp_f32 v{E}, v{E}
    v_fma_f32 v{E+2}, v{DX+2}, s{S_C1}, -v{mx}
    v_exp_f32 v{E+1}, v{E+1}
    v_fma_f32 v{E+3}, v{DX+3}, s{S_C1}, -v{mx}
    v_exp_f32 v{E+2}, v{E+2}
    v_fma_f32 v{E+4}, v{DM}, s{S_C1}, -v{mx}
    v_exp_f32 v{E+3}, v{E+3}
    v_cvt_pk_bf16_f32 v{PX}, v{E}, v{E+1}
    v_exp_f32 v{E+4}, v{E+4}
    v_cvt_pk_bf16_f32 v{PX+1}, v{E+2}, v{E+3}
    v_mov_b32_dpp v{PX+2}, v{PX} {DPP}
    v_add_f32 v{mx}, v{E}, v{E+1}
    v_mov_b32_dpp v{PX+3}, v{PX+1} {DPP}
    v_mov_b32_dpp v{tt}, v{E+4} {DPP}
    s_nop 0
    """)
    stamp(a, opt, 7)
    D0, D1 = V0, V1
    t2 = SB(2)+7
    a(f"""
    v_mfma_f32_16x16x32_bf16 {vr(D0,4)}, {vr(VX,4)}, {vr(PX,4)}, 0
    v_cvt_pk_bf16_f32 v{PMZ}, v{E+4}, v{tt}
    v_add_f32 v{t2}, v{E+2}, v{E+3}
    v_mfma_f32_16x16x32_bf16 {vr(D1,4)}, {vr(VX+4,4)}, {vr(PX,4)}, 0
    v_add_f32 v{mx}, v{mx}, v{t2}
    v_add_f32 v{mx}, v{mx}, v{E+4}
    v_mfma_f32_16x16x16_bf16 {vr(D0,4)}, {vr(VMQ,2)}, {vr(PMZ,2)}, {vr(D0,4)}
    {sr1(AF(0),'o',(0,3),0,0)}
    v_add_f32_dpp v{mx}, v{mx}, v{mx} {DPP}
    v_mfma_f32_16x16x16_bf16 {vr(D1,4)}, {vr(VMQ+2,2)}, {vr(PMZ,2)}, {vr(D1,4)}
    v_mov_b32 v{tt}, v{mx}
    {sr1(AF(0),'o',(0,3),0,1)}
    {sr1(AF(2),'o',(1,3),0,0)}
    v_permlane16_swap_b32 v{mx}, v{tt}
    v_add_f32 v{mx}, v{mx}, v{tt}
    v_mov_b32 v{tt}, v{mx}
    {sr1(AF(2),'o',(1,3),0,1)}
    s_nop 0
    v_permlane32_swap_b32 v{mx}, v{tt}
    v_add_f32 v{mx}, v{mx}, v{tt}
    v_rcp_f32 v{mx}, v{mx}
    s_nop 0
    """)
    OW = SB(3)
    for r in range(4): a(f'v_mul_f32 v{D0+r}, v{D0+r}, v{mx}')
    a(f'v_cvt_pk_bf16_f32 v{OW}, v{D0}, v{D0+1}\n v_cvt_pk_bf16_f32 v{OW+1}, v{D0+2}, v{D0+3}')
    for r in range(4): a(f'v_mul_f32 v{D1+r}, v{D1+r}, v{mx}')
    a(f"""
    v_cvt_pk_bf16_f32 v{OW+2}, v{D1}, v{D1+1}
    v_cvt_pk_bf16_f32 v{OW+3}, v{D1+2}, v{D1+3}
    ds_write_b128 v{vOw}, {vr(OW,4)}
    """)
    accs = [XA[0], XA[1], Q0, Q1, K0, K1, SB(1), SB(1)+4]
    zero(accs[6]); zero(accs[7])
    a('s_waitcnt lgkmcnt(0)\n s_barrier')
    stamp(a, opt, 8)
    OF = SB(0)
    a(f'ds_read_b128 {vr(OF,4)}, v{vOr}\n ds_read_b128 {vr(OF+4,4)}, v{vOr} offset:1024')
    OUT = SB(2)
    def wo(kb2, t):
        r = wfrag('o', kb2, t)
        if r: return r
        return {(0,6):vr(AF(0),8),(1,6):vr(AF(2),8),(0,7):vr(AF(4),8),(1,7):vr(AF(6),8)}[(kb2,t)]
    def post(t):
        x = accs[t]
        return [f'v_add_f32 v{x}, v{x}, v{x+2}', f'v_add_f32 v{x+1}, v{x+1}, v{x+3}', f'v_cvt_pk_bf16_f32 v{OUT+t}, v{x}, v{x+1}', f'v_bfi_b32 v{OUT+t}, 1, s{S_PH}, v{OUT+t}']
    a('s_waitcnt lgkmcnt(1)')
    smf(a, accs[0], OF, wo(0,0)); smf(a, accs[1], OF, wo(0,1))
    a('s_waitcnt lgkmcnt(0)')
    smf(a, accs[0], OF+4, wo(1,0)); sread(AF(4),'o',(0,3),1)
    smf(a, accs[1], OF+4, wo(1,1)); sread(AF(6),'o',(1,3),1)
    pend = []
    for t in range(2,8):
        if t == 7: a('s_waitcnt lgkmcnt(0)')
        smf(a, accs[t], OF, wo(0,t))
        if t == 3: pend += post(1)
        if t >= 4: pend += post(t-2)
        n = 3 if t in (3,4) else 2
        a('\n'.join(pend[:n])); pend = pend[n:]
        smf(a, accs[t], OF+4, wo(1,t))
        if t == 2: pend += post(0)
        a('\n'.join(pend[:2])); pend = pend[2:]
        if t == 5:
            assert not pend
            a(f'buffer_store_dwordx4 {vr(OUT,4)}, v{vPst}, {W}, s{S_INO} offen {st}')
    assert not pend
    a(f's_add_u32 s{S_T0}, s{S_INO}, 0x10000')
    a('\n'.join(post(6)))
    a('s_nop 0')
    a('\n'.join(post(7)))
    a(f'buffer_store_dwordx4 {vr(OUT+4,4)}, v{vPst}, {W}, s{S_T0} offen {st}')
    stamp(a, opt, 9)
    R0, R1, RD = AF(0), AF(1), AF(4)
    Ld = a.label('d1')
    d1e = opt.get('d1e', d1)
    a('s_nop 7\n'*d1e)
    if d1e != d1:
        a(f's_bitcmp0_b32 s{S_HEAD}, 2\n s_cbranch_scc1 {Ld}')
        a('s_nop 7\n'*(d1-d1e))
        a(f'{Ld}:')
    def p1_loads():
        a(f"""buffer_load_dwordx4 {vr(R0,4)}, v{vOr}, {W}, s{S_INL} offen sc1
              buffer_load_dwordx4 {vr(R1,4)}, v{vOr}, {W}, s{S_INL} offen offset:1024 sc1""")
    fill = [f'v_mov_b32 v{RD+4+i}, -1' for i in range(2)]
    for x in [Q0,Q1,V0,V1] + XA + [K0,K1]: fill += zl(x)
    stamp(a,opt,3,4)
    p1_loads()
    pre_sb()
    a('\n'.join(fill))
    a(f's_branch {P1}c')
    a(f"""
    {P1}:
    s_add_u32 s{S_TO}, s{S_TO}, 1
    s_cmp_gt_u32 s{S_TO}, 0x100000
    s_cbranch_scc1 {P1}x
    """)
    p1_loads()
    a(f"""
    s_mov_b64 exec, -1
    {P1}c:
    s_waitcnt vmcnt(1)
    v_mfma_f32_16x16x32_bf16 {vr(RD,4)}, {vr(vSel,4)}, {vr(R0,4)}, 0
    v_bitop3_b32 v{vT}, v{R0}, v{R0+1}, s{S_PH} bitop3:0x7e
    v_bitop3_b32 v{RD+6}, v{R0+2}, v{R0+3}, s{S_PH} bitop3:0x7e
    s_waitcnt vmcnt(0)
    v_mfma_f32_16x16x32_bf16 {vr(RD,4)}, {vr(vSel,4)}, {vr(R1,4)}, {vr(RD,4)}
    v_bitop3_b32 v{RD+7}, v{R1}, v{R1+1}, s{S_PH} bitop3:0x7e
    v_or3_b32 v{vT}, v{vT}, v{RD+6}, v{RD+7}
    v_bitop3_b32 v{RD+6}, v{R1+2}, v{R1+3}, s{S_PH} bitop3:0x7e
    v_bitop3_b32 v{vT}, v{vT}, v{RD+6}, 1 bitop3:0xa8
    v_cmp_ne_u32 vcc, 0, v{vT}
    s_mov_b64 exec, vcc
    s_cbranch_execnz {P1}
    {P1}x:
    s_mov_b64 exec, -1
    """)
    stamp(a, opt, 10)
    a(f"""
    v_add_f32_dpp v{RD}, v{RD}, v{RD} row_ror:8 row_mask:0xf bank_mask:0xf
    v_add_f32_dpp v{RD+1}, v{RD+1}, v{RD+1} row_ror:8 row_mask:0xf bank_mask:0xf
    s_nop 0
    v_add_f32_dpp v{RD}, v{RD}, v{RD} row_ror:4 row_mask:0xf bank_mask:0xf
    v_add_f32_dpp v{RD+1}, v{RD+1}, v{RD+1} row_ror:4 row_mask:0xf bank_mask:0xf
    s_mov_b64 exec, s[{S_MST}:{S_MST+1}]
    v_cvt_pk_bf16_f32 v{vT}, v{RD}, v{RD+1}
    buffer_store_dword v{vT}, v{vMst}, {W}, s{S_MEMN} offen {st}
    """)
    if ring < 64:
        a(f'buffer_store_dword v{RD+4}, v{vMst}, {W}, s{S_MEMO} offen {st}')
    a(f"""
    s_mov_b64 exec, -1
    s_add_u32 s{S_STEP}, s{S_STEP}, 1
    s_mov_b32 s{S_MEMO}, s{S_MEMN}
    s_add_u32 s{S_T0}, s{S_STEP}, 1
    s_and_b32 s{S_T0}, s{S_T0}, {ring-1}
    s_lshl_b32 s{S_T0}, s{S_T0}, 13
    s_add_u32 s{S_MEMN}, s{S_T0}, {WS_MEM}
    s_xor_b32 s{S_PH}, s{S_PH}, 1
    s_add_u32 s{S_KMO}, s{S_KMO}, {opt.get('kms',32*8192)}
    """)
    stamp(a, opt, 11)
    if opt.get('stamps'):
        L = a.label('ns')
        a(f's_waitcnt lgkmcnt(0)\n s_cmp_eq_u32 s{S_STEP}, {opt.get("sstep",43)+1}\n s_cbranch_scc0 {L}')
        for i in range(12): a(f's_mov_b32 s{84+i}, s{S_STAMP+2*i}')
        a(f'{L}:')
    a('s_nop 7\n'*d2)
    p2_loads()
    pre_af()
    a(f's_branch {Ltop}')
    a(f'{Lfin}:')
    a(f"""s_nop 7
    {padd(V0,V0,V0+2)}
    {padd(V1,V1,V1+2)}
    v_cvt_pk_bf16_f32 v{VMQ}, v{V0}, v{V0+1}
    v_cvt_pk_bf16_f32 v{VMQ+2}, v{V1}, v{V1+1}
    """)
    a(f'buffer_store_dwordx4 {vr(VMQ,4)}, v{vOr}, {W}, s{S_VMO} offen sc1')
    a('s_waitcnt vmcnt(0) lgkmcnt(0)\n s_barrier')
    if opt.get('kmflag'): opt['kmflag'](a, last=True)
```

```python
NAME = 'parallel_sum__memory_aug_recurrent_mem_tr__mixer_gmlp__prompt_kernel'

KB = 1024; MB = 1 << 20
WS_FLAGS  = 0
WS_INBOX  = 512*KB
WS_MEM    = WS_INBOX + 512*KB
WS_XN     = 2*MB
WS_KM     = 128*MB
WS_KX     = 16*MB
WS_VX     = 32*MB
WS_QX     = 48*MB
WS_OX     = 64*MB
WS_Z1     = 80*MB
WS_Z2     = 84*MB
WS_Z2N    = 88*MB
WS_GZ     = 92*MB
WS_OB     = 96*MB
WS_PART   = 160*MB
WS_SIZE   = 256*MB

class Asm:
    def __init__(self):
        self.l = []
        self.n = 0
    def __call__(self, s):
        for line in s.split('\n'):
            line = line.strip()
            if line:
                self.l.append(('' if line.endswith(':') else '  ') + line)
    def label(self, base):
        self.n += 1
        return f'L_{base}_{self.n}'
    def text(self):
        return '\n'.join(self.l) + '\n'

def vr(a, n=1):
    return f'v{a}' if n == 1 else f'v[{a}:{a+n-1}]'
def ar(a, n=1):
    return f'a{a}' if n == 1 else f'a[{a}:{a+n-1}]'
def sr(a, n=1):
    return f's{a}' if n == 1 else f's[{a}:{a+n-1}]'

F_KVQ  = 0
F_CH   = 8192
F_Z1   = 10240
F_Z2   = 11264
F_GZ   = 12288
F_FT   = 16640
F_FTQ  = 13312
F_ATT  = 13312
F_OB   = 14336
F_SPL  = 15360
F_Z2N  = 16384
F_DONE = 20480
DN_FT=0; DN_Z1=64; DN_Z2=80; DN_GZ=96; DN_Z2N=112; DN_HD=113; DN_Q=145; DN_EX=160
F_SIZE = 43008
D_ROLE=0; D_TEAM=4; D_INITC=12; D_INIT=128; D_TEAMF=192; D_LNC=96; D_LNF=132
PH_OFF=[16, 32, WS_FLAGS+F_DONE+DN_Q*128, WS_FLAGS+F_DONE+(DN_Q+1)*128, WS_FLAGS+F_DONE+(DN_Q+8)*128]
```

```python
from common import *
from worker import *
from chain import S_WAVE, S_B

STF = 'sc1'
NB = 6; BST = 16384; EPA = 0; BR = 65536
ACC = 128
sPK_=12; sPV_=14; sPQ_=20; sPW_=22
sL0=24
sCUR=41; sNXT=43
vB8=vAe; vB3=vAo
vBu=[vAc, vAc+1, vAc+2, vAc+3]
vBb=[24,25,26,27]

def loader_switch(a, ent, TY):
    a(f'''
    s_and_b32 s{sT}, s{ent}, 15
    s_bfe_u32 s{sT+1}, s{ent}, 0x8000c
    s_mov_b32 s{S_B}, s{sPK_}
    s_mov_b32 s{S_B+1}, s{sPK_+1}
    s_cmp_eq_u32 s{sT}, {TY['V']}
    s_cselect_b32 s{S_B}, s{sPV_}, s{S_B}
    s_cselect_b32 s{S_B+1}, s{sPV_+1}, s{S_B+1}
    s_cmp_eq_u32 s{sT}, {TY['Q']}
    s_cselect_b32 s{S_B}, s{sPQ_}, s{S_B}
    s_cselect_b32 s{S_B+1}, s{sPQ_+1}, s{S_B+1}
    s_mov_b32 s{S_B+2}, 0x400000
    s_mov_b32 s{sLDB}, 8192
    s_cmp_eq_u32 s{sT}, {TY['WIN']}
    s_cselect_b32 s{S_B}, s{sPW_}, s{S_B}
    s_cselect_b32 s{S_B+1}, s{sPW_+1}, s{S_B+1}
    s_cselect_b32 s{S_B+2}, {512*3584}, s{S_B+2}
    s_cselect_b32 s{sLDB}, 3584, s{sLDB}
    s_cselect_b64 vcc, -1, 0
    s_mov_b32 s{S_B+3}, 0x20000
    v_cndmask_b32 v{vBs}, v{vB8}, v{vB3}, vcc
    s_lshl_b32 s{sB4}, s{sLDB}, 2
    s_lshl_b32 s{sT+2}, s{sLDB}, 4
    s_mul_i32 s{sT+2}, s{sT+2}, s{S_WAVE}
    s_lshl_b32 s{sBK}, s{sT+1}, 8
    s_add_u32 s{sBK}, s{sBK}, s{sT+2}
    ''')

def bdma():
    out = []
    for i in range(4):
        out.append([f's_add_u32 m0, s{sDST}, {BR+i*1024}',
                    f's_add_u32 s{sY}, s{sY}, s{sB4}' if i else f's_mov_b32 s{sY}, s{sBK}',
                    f'buffer_load_dwordx4 v{vBs}, {SBd}, s{sY} offen lds'])
    out[-1] += [f's_lshl_b32 s{sT}, s{sLDB}, 6', f's_add_u32 s{sBK}, s{sBK}, s{sT}',
                f's_add_u32 s{sDST}, s{sDST}, {BST}', f's_cmp_ge_u32 s{sDST}, {NB*BST}',
                f's_cselect_b32 s{sT}, {NB*BST}, 0', f's_sub_u32 s{sDST}, s{sDST}, s{sT}']
    return out

def g1_start(a, TY):
    a(f'''
    s_load_dwordx4 s[{sT+1}:{sT+4}], s[0:1], 16
    s_load_dwordx2 s[{sT+5}:{sT+6}], s[0:1], 32
    s_load_dwordx2 s[{sT+7}:{sT+8}], s[0:1], 64
    v_lshrrev_b32 v21, 3, v{vLN}
    v_lshlrev_b32 v21, 10, v21
    v_and_b32 v22, 7, v{vLN}
    v_lshrrev_b32 v23, 4, v{vLN}
    v_xor_b32 v22, v22, v23
    v_lshl_add_u32 v28, v22, 4, v21
    v_xor_b32 v29, 64, v28
    s_lshl_b32 s{sAK}, s{sBLK}, 18
    s_lshl_b32 s{sT}, s{S_WAVE}, 16
    s_add_u32 s{sAK}, s{sAK}, s{sT}
    s_add_u32 s{sAK}, s{sAK}, {WS_XN}
    s_lshl_b32 s{sM0}, s{S_WAVE}, 15
    s_lshl_b32 s{sT}, s{sWM}, 13
    s_sub_u32 s{sT}, s{sM0}, s{sT}
    v_add_u32 v{vAc}, s{sT}, v{vAr}
    v_add_u32 v{vAc+1}, s{sT}, v{vAr+1}
    v_add_u32 v{vAc+2}, s{sT}, v{vAr+2}
    v_add_u32 v{vAc+3}, s{sT}, v{vAr+3}
    v_lshrrev_b32 v21, 4, v{vLN}
    v_and_b32 v23, 15, v{vLN}
    v_lshlrev_b32 v22, 2, v21
    v_xor_b32 v23, v23, v22
    v_lshlrev_b32 v23, 4, v23
    v_lshl_add_u32 v{vB8}, v21, 13, v23
    v_mul_u32_u24 v22, 3584, v21
    v_add_u32 v{vB3}, v22, v23
    s_lshl_b32 s{sT}, s{sWN}, 7
    v_xor_b32 v{vBb[0]}, s{sT}, v{vBr}
    v_add_u32 v{vBb[0]}, {BR-16384}, v{vBb[0]}
    v_xor_b32 v{vBb[1]}, 64, v{vBb[0]}
    v_xor_b32 v{vBb[2]}, 128, v{vBb[0]}
    v_xor_b32 v{vBb[3]}, 192, v{vBb[0]}
    s_waitcnt lgkmcnt(0)
    s_mov_b32 s{sPQ_}, s{sT+1}
    s_mov_b32 s{sPQ_+1}, s{sT+2}
    s_mov_b32 s{sPK_}, s{sT+3}
    s_mov_b32 s{sPK_+1}, s{sT+4}
    s_mov_b32 s{sPV_}, s{sT+5}
    s_mov_b32 s{sPV_+1}, s{sT+6}
    s_mov_b32 s{sPW_}, s{sT+7}
    s_mov_b32 s{sPW_+1}, s{sT+8}
    ''')

def g1_load_a(a):
    def issue(c):
        for i in range(8):
            a(f'''s_add_u32 m0, s{sM0}, {(c&3)*8192 + i*1024}
                  s_add_u32 s{sX}, s{sAK}, {c*128 + i*8192}
                  buffer_load_dwordx4 v{29 if i&1 else 28}, {W}, s{sX} offen sc1 lds''')
    for c in range(4): issue(c)
    for c in range(8):
        a(f's_waitcnt vmcnt({8*min(3,7-c)})')
        for ks in range(4):
            for mt in range(2):
                a(f'ds_read_b128 {ar(128*mt + 16*c + 4*ks,4)}, v{vAc+ks} offset:{(c&3)*8192 + mt*4096}')
        if c + 4 < 8:
            a('s_waitcnt lgkmcnt(0)')
            issue(c+4)
    a('s_waitcnt lgkmcnt(0)\n s_barrier')

def g1_tile(a, swapped, tag, TY):
    Fb = FR
    def reads(ks, buf):
        b = Fb + 16*buf
        return [f'ds_read_b64_tr_b16 {vr(b+4*nt+2*rho,2)}, v{vBu[nt]} offset:{ks*4096+rho*1024}' for nt in range(4) for rho in range(2)]
    for j in range(8):
        L = a.label('g1w')
        if j <= 1:
            a(f'''s_cmp_lg_u32 s{sPK}, 0
                  s_cbranch_scc1 {L}
                  s_waitcnt vmcnt(16)
                  {L}:
                  s_waitcnt vmcnt(32)
                  s_barrier''')
        elif j == 2:
            a(f'''s_cmp_eq_u32 s{sPK}, 0
                  s_cbranch_scc1 {L}
                  s_waitcnt vmcnt(8)
                  {L}:
                  s_waitcnt vmcnt(16)
                  s_barrier''')
        else:
            a('s_waitcnt vmcnt(16)\n s_barrier')
        for i in range(4): a(f'v_add_u32 v{vBu[i]}, s{sSTG}, v{vBb[i]}')
        a('\n'.join(reads(0,0)))
        if j == 2: pend2(a)
        if j == 7: pend3(a)
        if j == 3: loader_switch(a, sNXT, TY)
        a(f's_add_u32 s{sSTG}, s{sSTG}, {BST}\n s_cmp_ge_u32 s{sSTG}, {NB*BST}\n s_cselect_b32 s{sT}, {NB*BST}, 0\n s_sub_u32 s{sSTG}, s{sSTG}, s{sT}')
        d = bdma()
        for ks in range(4):
            nxt = reads(ks+1,(ks+1)&1) if ks < 3 else []
            a('\n'.join(nxt))
            a(f's_waitcnt lgkmcnt({len(nxt)})')
            b = Fb + 16*(ks&1)
            for nt in range(4):
                for mt in range(2):
                    acc = vr(ACC + 16*(4*mt+nt),16)
                    A_, B_ = ar(128*mt + 16*j + 4*ks,4), vr(b+4*nt,4)
                    if swapped: A_, B_ = B_, A_
                    c = '0' if (j == 0 and ks == 0) else acc
                    a(f'v_mfma_f32_32x32x16_bf16 {acc}, {A_}, {B_}, {c}')
                if nt == 1: a('\n'.join(d.pop(0)))
    a('s_nop 15')

def pend2(a):
    L = a.label('ps')
    a(f'''s_cmp_eq_u32 s{sPK}, 0
          s_cbranch_scc1 {L}
          s_mov_b32 s{sT}, s{sPK}
          s_mov_b32 s{sWC}, s{sAUX}
          s_mov_b32 s{sLS}, s{sB0}
          s_mov_b32 s{sPK}, 0
          s_cmp_lg_u32 s{S_WAVE}, 0
          s_cbranch_scc1 {L}
          v_mov_b32 v{vNXT}, 1
          v_mul_lo_u32 v22, v{vLN}, s{sDFLG}
          v_add_u32 v22, s{sPEND}, v22
          v_writelane_b32 v22, s{sA0}, 0
          s_mov_b32 exec_lo, s{sT}
          s_mov_b32 exec_hi, 0
          buffer_atomic_add v{vNXT}, v22, {W}, 0 offen sc0
          s_mov_b64 exec, -1
          {L}:''')

def pend3(a):
    L = a.label('pt')
    a(f'''s_cmp_eq_u32 s{sWC}, 0
          s_mov_b32 s{sT}, s{sWC}
          s_mov_b32 s{sWC}, 0
          s_cbranch_scc1 {L}
          s_cmp_lg_u32 s{S_WAVE}, 0
          s_cbranch_scc1 {L}
          v_lshlrev_b32 v22, 7, v{vLN}
          v_mov_b32 v21, 1
          s_and_b32 s{sT+1}, s{sLS}, 255
          s_lshr_b32 exec_lo, s{sLS}, 8
          s_mov_b32 exec_hi, 0
          v_cmp_eq_u32 vcc, s{sT+1}, v{vNXT}
          s_and_b64 exec, exec, vcc
          s_cbranch_execz {L}x
          buffer_store_dword v21, v22, {W}, s{sT} offen sc1
          {L}x:
          s_mov_b64 exec, -1
          {L}:''')

def kvq_sig(mask):
    return f'''s_add_u32 s{sPEND}, s{sOUT}, {WS_KM+6144-262144}
          s_mov_b32 s{sDFLG}, 262144
          s_lshl_b32 s{sA0}, s{sSPL}, 6
          s_add_u32 s{sA0}, s{sA0}, {WS_FLAGS+F_KVQ}
          s_lshl_b32 s{sAUX}, s{sSPL}, 7
          s_add_u32 s{sAUX}, s{sAUX}, {WS_FLAGS+F_DONE+DN_HD*128}
          s_mov_b32 s{sB0}, {(1<<8)|23}
          s_mov_b32 s{sPK}, {mask}'''

def stage_base(a):
    a(f's_lshl_b32 s{sT}, s{S_WAVE}, 14\n s_add_u32 s{sT}, s{sT}, {EPA}')

def g1_epi_blocks(a, isv):
    if not isv:
        a(f'''v_bfe_u32 v21, v{vLN}, 4, 1
              v_lshrrev_b32 v22, 5, v{vLN}
              v_and_b32 v23, 15, v{vLN}
              v_lshlrev_b32 v{vE1}, 9, v21
              v_lshl_add_u32 v{vE1}, v22, 8, v{vE1}
              v_lshl_add_u32 v{vE1}, v23, 4, v{vE1}''')
    else:
        a(f'''v_lshrrev_b32 v21, 5, v{vLN}
              v_bfe_u32 v22, v{vLN}, 3, 1
              v_bfe_u32 v23, v{vLN}, 4, 1
              v_and_b32 v30, 7, v{vLN}
              v_lshl_add_u32 v30, v23, 3, v30
              v_lshl_add_u32 v30, v21, 4, v30
              v_lshlrev_b32 v{vE1}, 4, v30
              v_lshl_add_u32 v{vE1}, v22, 10, v{vE1}''')
    stage_base(a)
    a(f'v_add_u32 v{vE1}, s{sT}, v{vE1}\n v_lshlrev_b32 v21, 4, v{vLN}\n v_add_u32 v22, s{sT}, v21')
    n = 0
    for mt in range(2):
        for nt in range(4):
            x = ACC + 16*(4*mt+nt)
            for h in range(2):
                o = 64 + 4*(n&3); n += 1
                if not isv:
                    for c in range(4): a(f'v_cvt_pk_bf16_f32 v{o+c}, v{x+8*h+c}, v{x+8*h+4+c}')
                    a(f'ds_write_b128 v{vE1}, {vr(o,4)} offset:{mt*8192+nt*2048+h*1024}')
                else:
                    src = [x+4*h, x+4*h+2, x+4*h+8, x+4*h+10]
                    for c in range(4): a(f'v_cvt_pk_bf16_f32 v{o+c}, v{src[c]}, v{src[c]+1}')
                    a(f'ds_write_b128 v{vE1}, {vr(o,4)} offset:{mt*8192+nt*2048+h*512}')
    a(f's_lshl_b32 s{sT}, s{S_WAVE}, 19\n s_add_u32 s{sX}, s{sOUT}, s{sT}')
    for i in range(16): a(f'ds_read_b128 {vr(64+4*i,4)}, v22 offset:{i*1024}')
    for i in range(16):
        a(f's_waitcnt lgkmcnt({15-i})\n buffer_store_dwordx4 {vr(64+4*i,4)}, v21, {W}, s{sX} offen offset:{(i&3)*1024} {STF}')
        if i & 3 == 3: a(f's_add_u32 s{sX}, s{sX}, {4096 if i != 7 else 262144-4096}')

def g1_epi_gelu(a):
    a(f'''
    s_mov_b32 s{sC0}, 0x3d372713
    s_mov_b32 s{sC1}, 0xc0135761
    v_and_b32 v21, 31, v{vLN}
    v_lshrrev_b32 v22, 5, v{vLN}
    v_and_b32 v23, 15, v{vLN}
    v_xor_b32 v22, v22, v23
    v_lshlrev_b32 v{vE1}, 8, v21
    v_lshl_add_u32 v{vE1}, v22, 4, v{vE1}''')
    stage_base(a)
    a(f'''v_add_u32 v{vE1}, s{sT}, v{vE1}
    v_lshrrev_b32 v21, 4, v{vLN}
    v_mul_u32_u24 v30, 1792, v21
    v_lshl_add_u32 v30, v23, 4, v30
    v_xor_b32 v22, v23, v21
    v_lshlrev_b32 v31, 8, v21
    v_lshl_add_u32 v31, v22, 4, v31
    v_add_u32 v31, s{sT}, v31''')
    n = 0
    for nt in range(4):
        for ap in range(2):
            a(f'v_xor_b32 v{vE2}, {(4*nt+2*ap)*16}, v{vE1}')
            for mt in range(2):
                x = ACC + 16*(4*mt+nt) + 8*ap
                t = 64 + 8*(n&1); n += 1
                gelu8(a, x, t)
                for c in range(4): a(f'v_cvt_pk_bf16_f32 v{t+c}, v{x+2*c}, v{x+2*c+1}')
                a(f'ds_write_b128 v{vE2}, {vr(t,4)} offset:{mt*8192}')
    a(f's_mul_i32 s{sT}, s{S_WAVE}, {64*1792}\n s_add_u32 s{sX}, s{sOUT}, s{sT}')
    for i in range(16):
        a(f'v_xor_b32 v23, {(i&3)*64}, v31\n ds_read_b128 {vr(64+4*i,4)}, v23 offset:{i*1024}')
    for i in range(16):
        a(f's_waitcnt lgkmcnt({15-i})\n buffer_store_dwordx4 {vr(64+4*i,4)}, v30, {W}, s{sX} offen sc1\n s_add_u32 s{sX}, s{sX}, {4*1792}')

def g1_task(a, TY, opt):
    a(f'''s_lshr_b32 s{sT}, s{sIDX}, 20
          s_lshl_b32 s{sT}, s{sT}, 4
          s_add_u32 s{sT}, s{sT}, {opt['lists']}
          s_load_dwordx4 s[{sL0}:{sL0+3}], s[{sTB}:{sTB+1}], s{sT}''')
    g1_start(a, TY)
    loader_switch(a, sL0, TY)
    a(f's_lshl_b32 s{sDST}, s{S_WAVE}, 12\n s_add_u32 s{sDST}, s{sDST}, {4*BST}\n s_mov_b32 s{sSTG}, {4*BST}\n s_mov_b32 s{sPK}, 0\n s_mov_b32 s{sWC}, 0')
    for st in range(2):
        for g in bdma(): a('\n'.join(g))
    opt['lnwait']()
    if opt.get('prof'): a('s_memrealtime s[78:79]')
    g1_load_a(a)
    opt['initwait']()
    for st in range(3):
        for g in bdma(): a('\n'.join(g))
    if opt.get('prof'): a(f's_mov_b32 s{sJ}, 0')
    a('L_g1t:')
    if opt.get('prof'): a('s_memrealtime s[46:47]\n s_memtime s[64:65]')
    a(f'''s_mov_b32 s{sCUR}, s{sL0}
          s_mov_b32 s{sNXT}, s{sL0+1}
          s_mov_b32 s{sL0}, s{sL0+1}
          s_mov_b32 s{sL0+1}, s{sL0+2}
          s_mov_b32 s{sL0+2}, s{sL0+3}
          s_mov_b32 s{sL0+3}, {TY['NOP']}
          s_and_b32 s{sEPI}, s{sCUR}, 15
          s_cmp_eq_u32 s{sEPI}, {TY['V']}
          s_cbranch_scc1 L_g1v''')
    g1_tile(a, True, 's', TY)
    if opt.get('prof'): a('s_memrealtime s[94:95]\n s_memtime s[66:67]')
    a(f's_bfe_u32 s{sSPL}, s{sCUR}, 0x8000c\n s_cmp_eq_u32 s{sEPI}, {TY["WIN"]}\n s_cbranch_scc1 L_g1w')
    a(f'''s_lshl_b32 s{sOUT}, s{sBLK}, 8
          s_add_u32 s{sOUT}, s{sOUT}, s{sSPL}
          s_lshl_b32 s{sOUT}, s{sOUT}, 13
          {kvq_sig(0x1ff)}
          s_add_u32 s{sOUT}, s{sOUT}, {WS_KX}
          s_cmp_eq_u32 s{sEPI}, {TY['Q']}
          s_cbranch_scc0 L_g1k
          s_add_u32 s{sOUT}, s{sOUT}, {WS_QX-WS_KX}
          s_mov_b32 s{sPK}, 1
          L_g1k:''')
    g1_epi_blocks(a, False)
    a('s_branch L_g1n')
    a('L_g1w:')
    a(f'''s_lshl_b32 s{sT+1}, s{sSPL}, 8
          s_mul_i32 s{sOUT}, s{sBLK}, {256*1792}
          s_add_u32 s{sOUT}, s{sOUT}, s{sT+1}
          s_add_u32 s{sOUT}, s{sOUT}, {WS_Z1}
          s_lshl_b32 s{sPEND}, s{sBLK}, 7
          s_add_u32 s{sPEND}, s{sPEND}, {WS_FLAGS+F_Z1}
          s_cmp_ge_u32 s{sSPL}, 7
          s_cselect_b32 s{sT}, {WS_Z2 - WS_Z1 - 1792}, 0
          s_add_u32 s{sOUT}, s{sOUT}, s{sT}
          s_cmp_ge_u32 s{sSPL}, 7
          s_cselect_b32 s{sT}, {F_Z2-F_Z1}, 0
          s_add_u32 s{sPEND}, s{sPEND}, s{sT}
          s_mov_b32 s{sDFLG}, 64
          s_lshl_b32 s{sAUX}, s{sBLK}, 8
          s_add_u32 s{sAUX}, s{sAUX}, {WS_FLAGS+F_DONE+DN_Z1*128}
          s_cmp_ge_u32 s{sSPL}, 7
          s_cselect_b32 s{sT}, {(DN_Z2-DN_Z1)*128}, 0
          s_add_u32 s{sAUX}, s{sAUX}, s{sT}
          s_mov_b32 s{sA0}, s{sPEND}
          s_mov_b32 s{sB0}, {(3<<8)|6}
          s_mov_b32 s{sPK}, 3''')
    g1_epi_gelu(a)
    a('s_branch L_g1n')
    a('L_g1v:')
    g1_tile(a, False, 'n', TY)
    if opt.get('prof'): a('s_memrealtime s[94:95]\n s_memtime s[66:67]')
    a(f'''s_bfe_u32 s{sSPL}, s{sCUR}, 0x8000c
          s_lshl_b32 s{sOUT}, s{sBLK}, 8
          s_add_u32 s{sOUT}, s{sOUT}, s{sSPL}
          s_lshl_b32 s{sOUT}, s{sOUT}, 13
          {kvq_sig(0x1ff)}
          s_add_u32 s{sOUT}, s{sOUT}, {WS_VX}''')
    g1_epi_blocks(a, True)
    a('L_g1n:')
    if opt.get('prof'):
        L = a.label('pf')
        a(f'''s_memrealtime s[80:81]
              s_waitcnt lgkmcnt(0)
              s_sub_u32 s66, s66, s64
              v_mov_b32 v32, s46
              v_mov_b32 v33, s94
              v_mov_b32 v34, s80
              v_mov_b32 v35, s66
              s_lshl_b32 s{sT}, s{sTASK}, 2
              s_add_u32 s{sT}, s{sT}, s{sJ}
              s_lshl_b32 s{sT}, s{sT}, 4
              s_add_u32 s{sT}, s{sT}, {242*MB}
              s_add_u32 s{sJ}, s{sJ}, 1
              s_cmp_lg_u32 s{S_WAVE}, 0
              s_cbranch_scc1 {L}
              s_mov_b64 exec, 1
              buffer_store_dwordx4 v[32:35], v{vZ}, {W}, s{sT} offen
              s_mov_b64 exec, -1
              {L}:''')
    a(f's_and_b32 s{sT}, s{sL0}, 15\n s_cmp_lg_u32 s{sT}, {TY["NOP"]}\n s_cbranch_scc1 L_g1t')
    a('s_waitcnt vmcnt(0)\n s_barrier')
    pend2(a)
    a('s_waitcnt vmcnt(0)')
    pend3(a)
    for s_ in (S_A,S_C,S_D): srd_ws(a, s_)
    a('s_branch L_done')
```

```python
import sys
from common import *
import chain as C
from chain import S_WS, S_DBG, S_A, S_B, S_C, S_D, S_XCC, S_WAVE, S_HEAD, SH
from worker import *
import g1a

HDR = open('parallel_sum__memory_aug_recurrent_mem_tr__mixer_gmlp__prompt.s.ref').read().split('; @launch')[0]

def bcast_ticket(a, vsrc, sdst, addr=TK_LDS):
    L = a.label('bt')
    a(f'''s_cmp_lg_u32 s{S_WAVE}, 0
          v_mov_b32 v21, {addr}
          s_cbranch_scc1 {L}
          s_mov_b64 exec, 1
          ds_write_b32 v21, v{vsrc}
          s_mov_b64 exec, -1
          s_waitcnt lgkmcnt(0)
          {L}:
          s_barrier
          ds_read_b32 v22, v21
          s_waitcnt lgkmcnt(0)
          v_readfirstlane_b32 s{sdst}, v22
          s_barrier''')

def atomic_ret(a, vdst, off, val=1, srd_=None, soff='0'):
    L = a.label('ar')
    a(f'''s_cmp_lg_u32 s{S_WAVE}, 0
          s_cbranch_scc1 {L}
          v_mov_b32 v{vdst}, {val}
          v_mov_b32 v21, {off}
          s_mov_b64 exec, 1
          buffer_atomic_add v{vdst}, v21, {srd_ or DBG}, {soff} offen sc0
          s_mov_b64 exec, -1
          {L}:''')

TY_K=0; TY_Q=1; TY_WIN=2; TY_SP=3; TY_OB=4; TY_G3=5; TY_V=6; TY_LN1=7; TY_LN2=8; TY_ATT=9; TY_NOP=10; TY_G1=11
def ent(ty, blk=0, ct=0, nt=1): return ty | (blk << 4) | (ct << 12) | (nt << 20)
def build_tables(opt):
    kvs = [0,5,10,15,20,24,28,32]; qs = [0,4,8,12,16,21,26,32]
    g1 = []; lists = []
    for j in range(7):
        kv = []
        for h in range(kvs[j],kvs[j+1]): kv += [ent(TY_K,0,h), ent(TY_V,0,h)]
        win = [ent(TY_WIN,0,7+j), ent(TY_WIN,0,j)]; qq = [ent(TY_Q,0,h) for h in range(qs[j],qs[j+1])]
        first = []; late = []
        def add(dst, b, l):
            if not l: return
            dst.append(ent(TY_G1,b,0,0) | (len(lists) << 20)); lists.append(l + [ent(TY_NOP)]*(4-len(l)))
        rest = win + qq
        for i,t in enumerate(kv): add(first, 0, [t] + ([rest[i]] if i < len(rest) else []))
        n0 = len(kv); n2 = min(len(rest), n0); n1 = n0 - n2
        nfull = 32 - n0
        per = [nfull//7 + (1 if b < nfull % 7 else 0) for b in range(7)]
        small = [3]*n1 + [2]*n2
        for b in range(1,8):
            tiles = (kv + win + qq) if b == 1 else (win + kv + qq)
            nl = min(per[b-1], 4)
            head, tail_ = tiles[:4*nl], tiles[4*nl:]
            for i in range(nl): add(first, b, head[i::nl])
            while tail_:
                n = small.pop(0) if small else 2
                add(late, b, tail_[:n]); tail_ = tail_[n:]
        g1.append(first + late)
    opt['_lists'] = lists
    sp = [[ent(TY_SP,b,j) for b in range(16)] for j in range(7)]
    ob = [ent(TY_OB,b,c) for b in range(16) for c in range(4)]
    FS = opt.get('fs', 4)
    FE = opt.get('fe', 2); RB = opt.get('rb', 52)
    ft_early = [ent(TY_ATT,r,h) for r in range(FE) for h in range(32)]
    tail = [ent(TY_ATT,r,h) for r in range(FE,FS) for h in range(32)] + ob + [ent(TY_G3,sg,j,2) for sg in range(RB) for j in range(0,8,2)] + [ent(TY_G3,sg,j,1) for sg in range(RB,64) for j in range(8)]
    return [([[ent(TY_LN1,i) for i in range(128)]],0), (g1,0), ([[ent(TY_LN2,i) for i in range(128)] + ft_early],0), (sp,0), ([tail],0)]
def table_words(PH, opt=None):
    hdr = []; body = []
    base = 4*len(PH)
    for qs_, pf in PH:
        L = max(len(q) for q in qs_)
        hdr += [len(qs_), L, base + len(body), PH_OFF[len(hdr)//4]]
        for q in qs_: body += q + [ent(TY_NOP)]*(L-len(q))
    w = hdr + body
    w += [0]*(-len(w) % 4)
    if opt is not None:
        opt['lists'] = 4*len(w)
        for l in opt['_lists']: w += l
    return w

def gen(opt={}):
    a = Asm()
    a(f'''
    s_cmp_ge_u32 s2, 256
    s_cbranch_scc1 L_end
    s_load_dwordx4 s[32:35], s[0:1], 104
    {'s_memrealtime s[90:91]' if opt.get('prof') else ''}
    s_getreg_b32 s{S_XCC}, hwreg(HW_REG_XCC_ID)
    s_and_b32 s{S_XCC}, s{S_XCC}, 15
    v_lshrrev_b32 v1, 6, v0
    v_mov_b32 v{vNXT}, 0
    v_readfirstlane_b32 s{S_WAVE}, v1
    s_waitcnt lgkmcnt(0)
    {'s_mov_b32 s99, s90' if opt.get('prof') else ''}
    s_mov_b32 s{S_DBG}, s32
    s_mov_b32 s{S_DBG+1}, s33
    s_mov_b32 s{S_DBG+2}, 256
    s_mov_b32 s{S_DBG+3}, 0x20000
    s_mov_b32 s{S_WS}, s34
    s_mov_b32 s{S_WS+1}, s35
    s_mov_b32 s{S_WS+2}, {WS_SIZE}
    s_mov_b32 s{S_WS+3}, 0x20000
    s_cmp_lg_u32 s{S_XCC}, {opt.get('team_xcc',0)}
    s_cbranch_scc1 L_worker
    L_tryrole:
    ''')
    atomic_ret(a, vNXT, D_ROLE)
    a('s_waitcnt vmcnt(0)')
    bcast_ticket(a, vNXT, S_HEAD)
    a(f'''
    s_cmp_lt_u32 s{S_HEAD}, 32
    s_cbranch_scc1 L_chain
    s_branch L_worker_noq
    ''')
    a('L_worker:')
    if opt.get('warm',0):
        a(f'''s_lshr_b32 s31, s2, 6
              s_lshl_b32 s31, s31, 3
              s_add_u32 s31, s31, 16
              s_load_dwordx2 s[32:33], s[0:1], s31
              s_and_b32 s34, s2, 63
              s_lshl_b32 s34, s34, 16
              v_lshlrev_b32 v21, 7, v0
              s_waitcnt lgkmcnt(0)
              s_mov_b32 s{S_A}, s32
              s_mov_b32 s{S_A+1}, s33
              s_mov_b32 s{S_A+2}, 0x400000
              s_mov_b32 s{S_A+3}, 0x20000
              s_add_u32 s35, s34, 32768
              buffer_load_dword v22, v21, {SA}, s34 offen
              buffer_load_dword v23, v21, {SA}, s35 offen''')
    a(f's_mov_b32 s{sFIRST}, 1\n s_branch L_winit')
    a('L_worker_noq:')
    a(f's_mov_b32 s{sFIRST}, 0')
    a('L_winit:')
    for s in (S_A,S_B,S_C,S_D): srd_ws(a, s)
    gemm_setup_consts(a)
    opt = dict(opt)
    PH = build_tables(opt)
    words = table_words(PH, opt)
    a(f'''s_mov_b32 s{sCNT}, 0
          s_getpc_b64 s[{sTB}:{sTB+1}]
          L_pc:
          s_add_u32 s{sTB}, s{sTB}, task_table-L_pc
          s_addc_u32 s{sTB+1}, s{sTB+1}, 0
          s_add_u32 s{sHOME}, s{S_XCC}, 6
          s_cmp_ge_u32 s{sHOME}, 7
          s_cselect_b32 s{sT}, 7, 0
          s_sub_u32 s{sHOME}, s{sHOME}, s{sT}
          s_min_u32 s{sHOME}, s{sHOME}, 6
          s_mov_b32 s{sPH}, 1
          s_mov_b32 s{sLNM}, 0
          s_mov_b32 s{sI}, 0
          s_mov_b32 s{sOSTR}, -1
          s_mov_b32 s{sQ}, s{sHOME}''')
    def initwait():
        L = a.label('iw')
        a(f's_cmp_eq_u32 s{sCNT}, 1\n s_cbranch_scc1 {L}\n s_mov_b32 s{sFLG}, {D_INIT}')
        wait_flag(a, DBG, sFLG, 1, sleep=2)
        a(f's_mov_b32 s{sCNT}, 1\n {L}:')
    a('L_claim:')
    a(f'''s_lshl_b32 s{sT}, s{sPH}, 4
          s_load_dwordx4 s[36:39], s[{sTB}:{sTB+1}], s{sT}
          s_cmp_ge_u32 s{sPH}, 2
          s_cbranch_scc1 L_claimw
          s_lshl_b32 s{sT+1}, s{sQ}, 2
          s_waitcnt lgkmcnt(0)
          s_add_u32 s{sFLG}, s{sT+1}, s39''')
    atomic_ret(a, vNXT, 0, 1, DBG, f's{sFLG}')
    a(f'''s_branch L_claimx
          L_claimw:
          s_lshl_b32 s{sT+1}, s{sQ}, 7
          s_waitcnt lgkmcnt(0)
          s_add_u32 s{sFLG}, s{sT+1}, s39''')
    atomic_ret(a, vNXT, 0, 1, W, f's{sFLG}')
    a('L_claimx:\n s_waitcnt vmcnt(0)')
    bcast_ticket(a, vNXT, sTASK)
    a(f'''s_cmp_lt_u32 s{sTASK}, s37
          s_cbranch_scc1 L_got
          s_cmp_eq_u32 s{sPH}, 0
          s_cbranch_scc1 L_lndone
          s_cmp_eq_u32 s{sI}, 0
          s_cbranch_scc1 L_toln''')
    initwait()
    a(f'''s_cmp_eq_u32 s36, 1
          s_cbranch_scc1 L_nextph
          s_lshl_b32 s{sT}, s{sPH}, 7
          s_add_u32 s{sT}, s{sT}, {WS_FLAGS+F_DONE+DN_EX*128}
          v_lshlrev_b32 v21, 2, v{vLN}
          v_and_b32 v21, 31, v21
          buffer_load_dword v22, v21, {W}, s{sT} offen sc1
          s_waitcnt vmcnt(0)
          v_cmp_eq_u32 vcc, 0, v22
          s_lshl_b32 s{sT}, 1, s36
          s_sub_u32 s{sT}, s{sT}, 1
          s_lshl_b32 s{sT+1}, 1, s{sQ}
          s_or_b32 s{sLNM}, s{sLNM}, s{sT+1}
          s_andn2_b32 s{sT}, s{sT}, s{sLNM}
          s_and_b32 s{sT}, s{sT}, vcc_lo
          v_mov_b32 v24, s{sT}''')
    bcast_ticket(a, 24, sT+1)
    a(f'''s_cmp_eq_u32 s{sT+1}, 0
          s_cbranch_scc1 L_nextph
          s_lshr_b32 s{sT}, s{sT+1}, s{sQ}
          s_lshl_b32 s{sT}, s{sT}, s{sQ}
          s_cmp_lg_u32 s{sT}, 0
          s_cselect_b32 s{sT}, s{sT}, s{sT+1}
          s_ff1_i32_b32 s{sQ}, s{sT}
          s_branch L_claim
          L_nextph:
          s_mov_b32 s{sLNM}, 0
          s_add_u32 s{sPH}, s{sPH}, 1
          s_cmp_ge_u32 s{sPH}, {len(PH)}
          s_cbranch_scc1 L_wdone
          s_bitcmp1_b32 s{sPH}, 0
          s_cselect_b32 s{sQ}, s{sHOME}, 0
          s_cmp_lg_u32 s{sPH}, 2
          s_cbranch_scc1 L_claim
          s_cmp_eq_u32 s{sFIRST}, 1
          s_cbranch_scc1 L_chk
          s_branch L_claim
          L_got:
          s_add_u32 s{sT}, s{sTASK}, 1
          s_cmp_lg_u32 s{sT}, s37
          s_cbranch_scc1 L_got2
          s_cmp_eq_u32 s36, 1
          s_cbranch_scc1 L_got2''')
    initwait()
    a(f'''s_lshl_b32 s{sT}, s{sPH}, 7
          s_lshl_b32 s{sT+1}, s{sQ}, 2
          s_add_u32 s{sT}, s{sT}, s{sT+1}
          s_add_u32 s{sT}, s{sT}, {WS_FLAGS+F_DONE+DN_EX*128}
          v_mov_b32 v21, 1
          s_mov_b64 exec, 1
          buffer_store_dword v21, v{vZ}, {W}, s{sT} offen sc1
          s_mov_b64 exec, -1
          L_got2:
          s_mul_i32 s{sT}, s{sQ}, s37
          s_add_u32 s{sT}, s{sT}, s38
          s_add_u32 s{sTASK}, s{sTASK}, s{sT}
          L_got3:
          s_lshl_b32 s{sT}, s{sTASK}, 2
          s_load_dword s{sIDX}, s[{sTB}:{sTB+1}], s{sT}
          ''')
    a('L_nopf:')
    if opt.get('prof'): a('s_memrealtime s[76:77]\n s_memrealtime s[78:79]')
    a(f'''s_waitcnt lgkmcnt(0)
          s_and_b32 s{sEPI}, s{sIDX}, 15          ; type
          s_bfe_u32 s{sBLK}, s{sIDX}, 0x80004
          s_bfe_u32 s{sCT}, s{sIDX}, 0x8000c
          s_bfe_u32 s{sNT}, s{sIDX}, 0x40014
          s_mov_b32 s{sDA}, 0
          s_mov_b32 s{sDB}, 256
          s_cmp_eq_u32 s{sI}, 1
          s_cbranch_scc1 L_disp
          s_cmp_lg_u32 s{sPH}, 1
          s_cbranch_scc1 L_disp
          s_and_b32 s{sT}, s{sIDX}, 0xfff
          s_cmp_eq_u32 s{sT}, {TY_G1}
          s_cbranch_scc1 L_disp
          s_mov_b32 s{sOSTR}, s{sTASK}
          L_toln:
          s_mov_b32 s{sNST}, s{sQ}
          s_mov_b32 s{sPH}, 0
          s_mov_b32 s{sQ}, 0
          s_branch L_claim
          L_lndone:
          s_mov_b32 s{sI}, 1
          s_mov_b32 s{sPH}, 1
          s_mov_b32 s{sQ}, s{sNST}
          s_cmp_eq_u32 s{sOSTR}, -1
          s_cbranch_scc1 L_claim
          s_mov_b32 s{sTASK}, s{sOSTR}
          s_branch L_got3
          L_disp:
          s_cmp_eq_u32 s{sEPI}, {TY_NOP}
          s_cbranch_scc1 L_done
          s_cmp_eq_u32 s{sEPI}, {TY_LN1}
          s_cbranch_scc1 L_ln1''')
    def lnwait():
        L = a.label('lw')
        a(f's_cmp_eq_u32 s{sCNT}, 1\n s_cbranch_scc1 {L}\n s_lshl_b32 s{sFLG}, s{sBLK}, 2\n s_add_u32 s{sFLG}, s{sFLG}, {D_LNF}')
        wait_flag(a, DBG, sFLG, 1, sleep=2)
        a(f'{L}:')
    opt['initwait'] = initwait; opt['lnwait'] = lnwait
    a(f's_cmp_eq_u32 s{sEPI}, {TY_G1}\n s_cbranch_scc1 L_g1')
    initwait()
    for ty, L in ((TY_LN2,'L_ln2'),(TY_SP,'L_sp'),(TY_OB,'L_ob'),(TY_ATT,'L_att')):
        a(f's_cmp_eq_u32 s{sEPI}, {ty}\n s_cbranch_scc1 {L}')
    a('s_branch L_g3')
    def wait_ln():
        pass
    def a_xn():
        srd_ws(a, S_A)
        a(f's_lshl_b32 s{sAO}, s{sBLK}, 17\n s_add_u32 s{sAO}, s{sAO}, {WS_XN}\n s_mov_b32 s{sLDA}, 1024\n s_mov_b32 s{sNST}, 8')
    a('L_ln1:')
    a(f'''s_cmp_lg_u32 s{S_WAVE}, 0
          s_cbranch_scc1 L_ln1b
          v_mov_b32 v24, 0
          v_mov_b32 v25, 0
          v_mov_b32 v26, 0
          v_mov_b32 v27, 0
          v_lshlrev_b32 v21, 4, v{vLN}
          v_lshlrev_b32 v22, 13, v{vLN}
          s_mul_i32 s{sT}, s{sBLK}, {F_SIZE//128}
          s_add_u32 s{sT}, s{sT}, {WS_FLAGS}
          s_lshl_b32 s{sT+1}, s{sBLK}, 17
          s_add_u32 s{sT+1}, s{sT+1}, {WS_KM + 6144}
          s_mov_b64 exec, 0x1fffff
          buffer_store_dwordx4 v[24:27], v21, {W}, s{sT} offen sc1
          s_mov_b64 exec, 0xffff
          buffer_store_dword v24, v22, {W}, s{sT+1} offen sc1
          s_mov_b64 exec, -1
          L_ln1b:''')
    srd(a, S_A, 0, 2*MB)
    a(f's_lshl_b32 s{sAO}, s{sBLK}, 14\n s_add_u32 s{sOUT}, s{sAO}, {WS_XN}')
    ln_task(a, 512, SA, '', 'a')
    L = a.label('ls')
    a(f'''s_waitcnt vmcnt(0)
          s_barrier
          s_cmp_lg_u32 s{S_WAVE}, 0
          s_cbranch_scc1 {L}
          s_lshr_b32 s{sT}, s{sBLK}, 4
          s_lshl_b32 s{sT}, s{sT}, 2
          s_add_u32 s{sT+1}, s{sT}, {D_LNC}
          s_add_u32 s{sT+2}, s{sT}, {D_LNF}
          v_mov_b32 v21, 1
          v_mov_b32 v22, {D_INITC}
          v_mov_b32 v23, {D_INIT}
          v_mov_b32 v24, 127
          v_mov_b32 v25, 1
          v_writelane_b32 v22, s{sT+1}, 1
          v_writelane_b32 v23, s{sT+2}, 1
          v_writelane_b32 v24, 15, 1
          s_mov_b64 exec, 3
          buffer_atomic_add v21, v22, {DBG}, 0 offen sc0
          s_waitcnt vmcnt(0)
          v_cmp_eq_u32 vcc, v24, v21
          s_and_b64 exec, exec, vcc
          s_cbranch_execz {L}x
          buffer_store_dword v25, v23, {DBG}, 0 offen sc1
          {L}x:
          s_mov_b64 exec, -1
          {L}:''')
    a('s_branch L_done')
    a('L_ln2:')
    srd(a, S_A, 72, 8*MB)
    a(f'''s_lshl_b32 s{sT+2}, s{sBLK}, 16
          s_add_u32 s{sT+3}, s{sT+2}, 32768
          v_lshlrev_b32 v252, 7, v0
          buffer_load_dword v250, v252, {SA}, s{sT+2} offen
          buffer_load_dword v251, v252, {SA}, s{sT+3} offen''')
    a(f'''s_mov_b32 s{sIDX}, s{sBLK}
          s_lshr_b32 s{sFLG}, s{sIDX}, 3
          s_lshl_b32 s{sFLG}, s{sFLG}, 7
          s_add_u32 s{sFLG}, s{sFLG}, {WS_FLAGS+F_DONE+DN_Z2*128}''')
    wait_flag(a, W, sFLG, 1)
    a(f'''s_mul_i32 s{sAO}, s{sIDX}, {16*1792}
          s_add_u32 s{sOUT}, s{sAO}, {WS_Z2N}
          s_add_u32 s{sAO}, s{sAO}, {WS_Z2}''')
    ln_task(a, 896, W, 'sc1', 'b')
    a(f's_mov_b32 s{sFLG}, {WS_FLAGS+F_Z2N}\n s_mov_b32 s{sAUX}, {WS_FLAGS+F_DONE+DN_Z2N*128}')
    signal2(a, W, sFLG, 128, sAUX)
    a('s_branch L_done')
    a('L_g1:')
    g1a.g1_task(a, dict(K=TY_K,V=TY_V,Q=TY_Q,WIN=TY_WIN,NOP=TY_NOP), opt)
    def next_tile(kind, Lt):
        a(f'''s_mov_b32 s{sPEND}, s{sSPL}
              s_mov_b32 s{sPK}, {kind}
              s_branch L_drain''')
    a('L_sp:')
    a(f'''s_mov_b32 s{sFLG}, {WS_FLAGS+F_DONE+DN_Z2N*128}''')
    wait_flag(a, W, sFLG, 1, bar=False)
    a(f's_lshl_b32 s{sFLG}, s{sBLK}, 6\n s_add_u32 s{sSPL}, s{sFLG}, {WS_FLAGS+F_GZ}\n s_lshl_b32 s{sFLG}, s{sBLK}, 7\n s_add_u32 s{sWC}, s{sFLG}, {WS_FLAGS+F_DONE+DN_GZ*128}\n s_add_u32 s{sFLG}, s{sFLG}, {WS_FLAGS+F_DONE+DN_Z1*128}')
    wait_flag(a, W, sFLG, 1)
    srd(a, S_A, 72, 8*MB); srd_ws(a, S_B); srd(a, S_C, 80, 4096)
    a(f'''s_lshl_b32 s{sAO}, s{sBLK}, 19
          s_mov_b32 s{sLDA}, 4096
          s_lshl_b32 s{sT}, s{sCT}, 8
          s_add_u32 s{sBO}, s{sT}, {WS_Z2N}
          s_mov_b32 s{sLDB}, 1792
          s_mov_b32 s{sNST}, 32
          s_mul_i32 s{sOUT}, s{sBLK}, {128*1792}
          s_add_u32 s{sOUT}, s{sOUT}, s{sT}
          s_add_u32 s{sAUX}, s{sOUT}, {WS_Z1}
          s_add_u32 s{sOUT}, s{sOUT}, {WS_GZ}
          s_lshl_b32 s{sAUX2}, s{sBLK}, 8
          s_mov_b32 s{sOSTR}, 1792
          s_mov_b32 s{sEPI}, 3
          s_branch L_gs''')
    a('L_ob:')
    a(f'''s_lshl_b32 s{sIDX}, s{sBLK}, 2
          s_add_u32 s{sIDX}, s{sIDX}, s{sCT}
          s_lshl_b32 s{sFLG}, s{sBLK}, 7
          s_add_u32 s{sFLG}, s{sFLG}, {WS_FLAGS+F_DONE+DN_GZ*128}''')
    wait_flag(a, W, sFLG, 1)
    srd_ws(a, S_A); srd(a, S_B, 88, 896*1024)
    a(f'''s_mul_i32 s{sAO}, s{sBLK}, {128*1792}
          s_add_u32 s{sAO}, s{sAO}, {WS_GZ}
          s_mov_b32 s{sLDA}, 1792
          s_lshl_b32 s{sBO}, s{sCT}, 8
          s_mov_b32 s{sLDB}, 1024
          s_mov_b32 s{sNST}, 14
          s_lshl_b32 s{sOUT}, s{sBLK}, 17
          s_add_u32 s{sOUT}, s{sOUT}, s{sBO}
          s_add_u32 s{sOUT}, s{sOUT}, {WS_OB}
          s_mov_b32 s{sOSTR}, 1024
          s_lshl_b32 s{sSPL}, s{sIDX}, 4
          s_add_u32 s{sSPL}, s{sSPL}, {WS_FLAGS+F_OB}
          s_mov_b32 s{sEPI}, 4
          s_branch L_gs''')
    a('L_att:')
    FS = opt.get('fs', 4)
    srd(a, S_B, 40, 4*MB)
    ft_prologue(a)
    a(f'''s_lshl_b32 s{sSPL}, s{sCT}, 5
          s_add_u32 s{sSPL}, s{sSPL}, {WS_FLAGS+F_FTQ}
          s_mov_b32 s{sAUX2}, 0
          s_lshl_b32 s{sFLG}, s{sCT}, 7
          s_add_u32 s{sFLG}, s{sFLG}, {WS_FLAGS+F_DONE+DN_HD*128}''')
    wait_flag(a, W, sFLG, 1, bar=False)
    TKF = FT_A + 8192
    a('L_ftc:')
    atomic_ret(a, vNXT, 0, 1, W, f's{sSPL}')
    a('L_ftl:')
    a('s_waitcnt vmcnt(0)')
    bcast_ticket(a, vNXT, sBLK, TKF)
    a(f's_cmp_ge_u32 s{sBLK}, 64\n s_cbranch_scc1 L_done')
    ft_loads_x(a)
    a(f's_add_u32 s{sT}, s{sBLK}, 6\n s_cmp_gt_u32 s{sAUX2}, s{sT}\n s_cselect_b32 s{sNT}, 1, 0\n s_cbranch_scc0 L_ftnp')
    atomic_ret(a, vNXT, 0, 1, W, f's{sSPL}')
    a('L_ftnp:')
    a(f'''s_cmp_gt_u32 s{sAUX2}, s{sBLK}
          s_cbranch_scc1 L_ftgo
          s_lshl_b32 s{sFLG}, s{sCT}, 6
          s_add_u32 s{sFLG}, s{sFLG}, {WS_FLAGS+F_CH}
          s_add_u32 s{sAUX}, s{sBLK}, 1''')
    wait_flag(a, W, sFLG, f's{sAUX}', sleep=2, bar=False)
    a('v_mov_b32 v24, v21')
    bcast_ticket(a, 24, sAUX2, TKF)
    a('L_ftgo:')
    if opt.get('prof'): a('s_memrealtime s[78:79]')
    ft_segment(a)
    if opt.get('prof'): a('s_memrealtime s[84:85]')
    ft_gemm(a)
    if opt.get('prof'): a('s_memrealtime s[86:87]')
    a(f's_lshl_b32 s{sFLG}, s{sBLK}, 5\n s_add_u32 s{sFLG}, s{sFLG}, {WS_FLAGS+F_FT}\n s_lshl_b32 s{sAUX}, s{sBLK}, 7\n s_add_u32 s{sAUX}, s{sAUX}, {WS_FLAGS+F_DONE+DN_FT*128}')
    signal2(a, W, sFLG, 32, sAUX)
    if opt.get('prof'):
        a(f'''s_memrealtime s[80:81]
              s_waitcnt lgkmcnt(0)
              v_mov_b32 v32, s78
              v_mov_b32 v33, s84
              v_mov_b32 v34, s86
              v_mov_b32 v35, s80
              s_lshr_b32 s{sT}, s{sAO}, 9
              s_add_u32 s{sT}, s{sT}, {241*MB}
              s_mov_b64 exec, 1
              buffer_store_dwordx4 v[32:35], v{vZ}, {W}, s{sT} offen
              s_mov_b64 exec, -1''')
    a(f's_cmp_eq_u32 s{sNT}, 1\n s_cbranch_scc1 L_ftl\n s_branch L_ftc')
    a('L_g3:')
    srd(a, S_C, 0, 2*MB); srd(a, S_D, 96, 2*MB)
    a(f'''s_and_b32 s{sFLG}, s{sBLK}, 0xfc
          s_lshr_b32 s{sT}, s{sCT}, 1
          s_add_u32 s{sFLG}, s{sFLG}, s{sT}
          s_lshl_b32 s{sFLG}, s{sFLG}, 4
          s_add_u32 s{sFLG}, s{sFLG}, {WS_FLAGS+F_OB}''')
    wait_flag(a, W, sFLG, 1)
    red_pre(a)
    a(f's_lshl_b32 s{sFLG}, s{sBLK}, 7\n s_add_u32 s{sFLG}, s{sFLG}, {WS_FLAGS+F_DONE+DN_FT*128}')
    wait_flag(a, W, sFLG, 1, sleep=2)
    if opt.get('prof'): a('s_memrealtime s[78:79]')
    a('L_redl:')
    red_task(a)
    a(f's_sub_u32 s{sNT}, s{sNT}, 1\n s_cmp_eq_u32 s{sNT}, 0\n s_cbranch_scc1 L_done\n s_add_u32 s{sCT}, s{sCT}, 1')
    red_pre(a)
    a('s_branch L_redl')
    a('L_gs:')
    if opt.get('prof'): a('s_memrealtime s[78:79]')
    gemm_task_addr(a)
    gemm_start(a)
    a('L_st:')
    gemm_tile(a, True, 's')
    epi_row(a, False)
    a(f's_cmp_eq_u32 s{sEPI}, 4\n s_cbranch_scc0 L_gate')
    rows_phase(a, 'plain')
    a('L_nt2:')
    next_tile(2, 'L_st')
    a('L_gate:')
    rows_phase(a, 'gate')
    signal2(a, W, sSPL, 7, sWC)
    a('s_branch L_done')
    a('L_drain:')
    a('s_waitcnt vmcnt(0)\n s_barrier')
    pend_signal(a)
    a('s_branch L_done')
    a('L_done:')
    if opt.get('prof'):
        a(f'''s_memrealtime s[80:81]
              s_waitcnt lgkmcnt(0)
              v_mov_b32 v24, s76
              v_mov_b32 v25, s78
              v_mov_b32 v26, s80
              v_mov_b32 v27, s99
              s_lshl_b32 s{sT}, s{sTASK}, 4
              s_add_u32 s{sT}, s{sT}, {240*MB}
              s_mov_b64 exec, 1
              buffer_store_dwordx4 v[24:27], v{vZ}, {W}, s{sT} offen
              s_mov_b64 exec, -1''')
    a('s_branch L_claim\n L_chk:')
    a(f'''s_mov_b32 s{sFIRST}, 0
          buffer_load_dword v21, v{vZ}, {DBG}, 0 offen offset:{D_TEAMF} sc1
          s_waitcnt vmcnt(0)''')
    a(f'v_mov_b32 v24, v21')
    bcast_ticket(a, 24, sT+8)
    a(f's_cmp_eq_u32 s{sT+8}, 0\n s_cbranch_scc1 L_tryrole')
    a(f's_cmp_lt_u32 s{sPH}, {len(PH)}\n s_cbranch_scc1 L_claim\n s_branch L_end')
    a('L_wdone:')
    if opt.get('prof'):
        a(f'''s_waitcnt vmcnt(0)
              s_memrealtime s[80:81]
              s_waitcnt lgkmcnt(0)
              v_mov_b32 v24, s80
              s_lshl_b32 s{sT}, s2, 2
              s_add_u32 s{sT}, s{sT}, {243*MB}
              s_mov_b64 exec, 1
              buffer_store_dword v24, v{vZ}, {W}, s{sT} offen
              s_mov_b64 exec, -1''')
    a('s_branch L_end')

    a('L_chain:')
    copt = dict(opt)
    Wc = W
    def kvwait(a, first):
        if first:
            L = a.label('kw')
            a(f'''s_lshl_b32 s{C.S_T0}, s{S_HEAD}, 13
                  s_add_u32 s{C.S_T0}, s{C.S_T0}, {WS_KM+6144}
                  s_mov_b32 s{C.S_T0+1}, {D_INIT}
                  s_mov_b32 s{C.S_T0+3}, 0
                  {L}:
                  s_add_u32 s{C.S_T0+3}, s{C.S_T0+3}, 1
                  s_cmp_gt_u32 s{C.S_T0+3}, 0x40000
                  s_cbranch_scc1 L_end
                  buffer_load_dword v16, v{C.PMZ+1}, {DBG}, s{C.S_T0+1} offen sc1
                  s_waitcnt vmcnt(0)
                  buffer_load_dword v17, v{C.PMZ+1}, {Wc}, s{C.S_T0} offen sc1
                  s_waitcnt vmcnt(0)
                  v_lshlrev_b32 v16, 1, v16
                  v_min_u32 v16, v16, v17
                  s_nop 0
                  v_readfirstlane_b32 s{C.S_T0+2}, v16
                  s_nop 3
                  s_cmp_lg_u32 s{C.S_T0+2}, 2
                  s_cbranch_scc1 {L}
                  v_mov_b32 v{C.vT+1}, 2''')
        else:
            L = a.label('kw'); Lx = a.label('kwx')
            a(f'''v_readlane_b32 s{C.S_T0}, v{C.vT+1}, 32
                  s_cmp_ge_u32 s{C.S_STEP}, 63
                  s_cbranch_scc1 {Lx}
                  s_cmp_eq_u32 s{C.S_T0}, 2
                  s_cbranch_scc1 {Lx}
                  s_sub_u32 s{C.S_T0+1}, s{C.S_KXO}, {32*8192}
                  s_mov_b32 exec_lo, 0
                  {L}:
                  s_add_u32 s{C.S_TO}, s{C.S_TO}, 16
                  s_cmp_gt_u32 s{C.S_TO}, 0x400000
                  s_cbranch_scc1 L_end
                  buffer_load_dword v{C.vT+1}, v{C.vTch}, {Wc}, s{C.S_T0+1} offen sc1
                  s_waitcnt vmcnt(0)
                  v_readlane_b32 s{C.S_T0}, v{C.vT+1}, 32
                  s_nop 3
                  s_cmp_lg_u32 s{C.S_T0}, 2
                  s_cbranch_scc1 {L}
                  s_mov_b64 exec, -1
                  {Lx}:''')
    def kmflag(a, last):
        L = a.label('kf')
        if last:
            a(f's_mov_b32 s{C.S_T0}, 64\n s_cmp_lg_u32 s{S_WAVE}, 0\n s_cbranch_scc1 {L}')
        else:
            a(f'''s_max_u32 s{C.S_T0}, s{C.S_STEP}, 1
                  s_sub_u32 s{C.S_T0}, s{C.S_T0}, 1
                  s_cmp_lg_u32 s{S_WAVE}, 0
                  s_cbranch_scc1 {L}''')
        a(f'''s_lshl_b32 s{C.S_T0+1}, s{S_HEAD}, 6
              s_add_u32 s{C.S_T0+1}, s{C.S_T0+1}, {WS_FLAGS+F_CH}
              v_mov_b32 v{C.vT}, s{C.S_T0}
              s_mov_b64 exec, 1
              buffer_store_dword v{C.vT}, v{C.PMZ+1}, {Wc}, s{C.S_T0+1} offen sc1
              s_mov_b64 exec, -1
              {L}:''')
    copt.setdefault('d1',7); copt.setdefault('d1e',4); copt.setdefault('d2',6); copt['kvwait'] = kvwait; copt['kmflag'] = kmflag
    def hook(a, n):
        if n == 4:
            a(f'''s_cmp_eq_u32 s{S_XCC}, {opt.get('team_xcc',0)}
                  s_cselect_b32 s59, 1, 0x10001
                  s_cmp_lg_u32 s{S_WAVE}, 0
                  s_cbranch_scc1 L_h4
                  v_mov_b32 v0, s59
                  v_mov_b32 v{C.vIdx}, {D_TEAM}
                  s_mov_b64 exec, 1
                  buffer_atomic_add v0, v{C.vIdx}, {DBG}, 0 offen sc0
                  s_mov_b64 exec, -1
                  L_h4:''')
        if n == 6:
            a(f'''s_cmp_lg_u32 s{S_WAVE}, 0
                  s_cbranch_scc1 L_h6
                  s_mov_b64 exec, 1
                  v_add_u32 v0, s59, v0
                  v_and_b32 v{C.vIdx}, 0xffff, v0
                  v_cmp_eq_u32 vcc, 32, v{C.vIdx}
                  v_mov_b32 v{C.vIdx}, {D_TEAMF}
                  s_and_b64 exec, exec, vcc
                  s_cbranch_execz L_h6x
                  buffer_store_dword v0, v{C.vIdx}, {DBG}, 0 offen sc1
                  L_h6x:
                  s_mov_b64 exec, -1
                  L_h6:''')
    copt['hook'] = hook
    C.chain_setup(a, copt)
    a(f'''
    v_bfe_u32 v16, v{C.vLANE}, 1, 1
    v_mov_b32 v{C.vIdx}, 0x4444
    v_mov_b32 v17, 0xeeee
    v_cmp_eq_u32 vcc, 1, v16
    v_mov_b32 v18, {D_TEAMF}
    s_mov_b32 s{C.S_T0+3}, 0
    v_cndmask_b32 v{C.vIdx}, v{C.vIdx}, v17, vcc
    L_cspin:
    s_add_u32 s{C.S_T0+3}, s{C.S_T0+3}, 1
    s_cmp_gt_u32 s{C.S_T0+3}, 0x100000
    s_cbranch_scc1 L_end
    buffer_load_dword v16, v18, {DBG}, 0 offen sc1
    s_waitcnt vmcnt(0)
    v_readfirstlane_b32 s{C.S_T0}, v16
    s_nop 3
    s_cmp_eq_u32 s{C.S_T0}, 0
    s_cbranch_scc1 L_cspin
    s_mov_b32 s59, s{C.S_T0}
    ''')
    C.chain_masks(a)
    a(f'''buffer_load_dwordx4 v[16:19], v{C.vOr}, {W}, s{C.S_INL} offen sc1
          buffer_load_dwordx4 v[20:23], v{C.vOr}, {W}, s{C.S_INL} offen offset:1024 sc1''')
    for s in range(1, C.RING):
        a(f'''s_mov_b32 s{C.S_T0}, {WS_MEM + s*8192}
              buffer_load_dwordx4 v[16:19], v{C.vMld}, {W}, s{C.S_T0} offen sc1
              buffer_load_dwordx4 v[20:23], v{C.vMld}, {W}, s{C.S_T0} offen offset:1024 sc1''')
    a(f's_waitcnt vmcnt(0)\n s_cmp_gt_u32 s59, 0xffff\n s_cbranch_scc1 L_slow')
    C.chain_loop(a, copt, '', 'f')
    a('s_branch L_end\n L_slow:')
    C.chain_loop(a, copt, 'sc1', 's')
    a('L_end:\n s_endpgm')
    a('.p2align 4\n.type task_table,@object\ntask_table:')
    for i in range(0, len(words), 8): a('.long ' + ', '.join(hex(x) for x in words[i:i+8]))
    a(f'.size task_table, {4*len(words)}')
    head = HDR + f'''; @launch grid=(256,1,1) block=(256,1,1) lds=163840
.amdgcn_target "amdgcn-amd-amdhsa--gfx950"
.text
.globl {NAME}
.p2align 8
.type {NAME},@function
{NAME}:
'''
    tail = f'''.section .rodata,"a"
.p2align 6
.amdhsa_kernel {NAME}
  .amdhsa_next_free_vgpr 512
  .amdhsa_next_free_sgpr 102
  .amdhsa_accum_offset 256
  .amdhsa_group_segment_fixed_size 0
  .amdhsa_kernarg_size 120
  .amdhsa_user_sgpr_count 2
  .amdhsa_user_sgpr_kernarg_segment_ptr 1
  .amdhsa_system_sgpr_workgroup_id_x 1
.end_amdhsa_kernel
'''
    return head + a.text() + tail

if __name__ == '__main__':
    out = sys.argv[1] if len(sys.argv) > 1 else 'parallel_sum__memory_aug_recurrent_mem_tr__mixer_gmlp__prompt.s'
    open(out,'w').write(gen({}))
```

```python
from common import *

S_WS   = 4
S_DBG  = 8
S_A    = 12
S_B    = 16
S_C    = 20
S_D    = 24
S_XCC  = 28
S_WAVE = 29
S_HEAD = 30
S_T0   = 31
S_STEP = 40
S_MEMO = 41
S_MEMN = 42
S_INO  = 43
S_KXO  = 44
S_VXO  = 45
S_KVL  = 46
S_INL  = 47
S_VMO  = 51
S_KMO  = 48
S_TO   = 49
S_C1   = 50
S_MT0  = 52
S_MT1  = 54
S_MST  = 56
S_PH   = 58
S_STAMP= 60

WREG = 36864
SH = 4*WREG
L_KV = 32768
PS = SH + 8192

vLANE=1; vL=2; vM=[3,4,5,6]; vN=[7,8,9,10]; vQTw=11; vQr=12; vKr=13; vOw=14; vOr=15
AF = lambda s: 16+4*s
ACC = [48,52,56,60]
SB = lambda i: 64+8*i
vIdx=96; vPst=97; vMld=98; vMst=99; vSel=100
VMQ=104; vKVr=108; vT=109; vKMst=111
PMZ=0
RESV=144
KXR=128; VXR=136
V0=112; V1=116; XA=[120,124]
vTch = vKVr
RING = 4

def wfrag(mat, s, t):
    if mat == 'v': return ar(8*(2*s+t), 8)
    if mat == 'o':
        tp = t >> 1
        if tp == 3: return None
        return ar(128 + 8*(2*(2*tp+s) + (t&1)), 8)
    if mat == 'k':
        if s in (2,3): return ar(224 + 8*(2*(s-2)+t), 8)
        if s in (4,5): return vr(RESV + 8*(2*(s-4)+t), 8)
        return None
    if mat == 'q':
        if s < 2 or s == 7: return None
        return vr(RESV + 32 + 8*(2*(s-2)+t), 8)
STREAMED = [('q',0),('k',0),('q',1),('k',1),('k',6),('k',7),('o',(0,3)),('o',(1,3)),('q',7)]
def home(mat, key, t):
    return STREAMED.index((mat,key))*4096 + t*2048

def padd(d, x, y):
    return f'v_add_f32 v{d}, v{x}, v{y}\n v_add_f32 v{d+1}, v{x+1}, v{y+1}'
def smf(a, acc, A, B):
    a(f'v_smfmac_f32_16x16x64_bf16 {vr(acc,4)}, {vr(A,4)}, {B}, {vr(vIdx)}')

def chain_setup(a, opt):
    a(f'''
    s_load_dwordx4 s[{S_T0+1}:{S_T0+4}], s[0:1], 16
    s_load_dwordx4 s[{S_T0+5}:{S_T0+8}], s[0:1], 32
    v_and_b32 v{vLANE}, 63, v0
    s_waitcnt lgkmcnt(0)
    s_mov_b32 s{S_A}, s{S_T0+1}
    s_mov_b32 s{S_A+1}, s{S_T0+2}
    s_mov_b32 s{S_A+2}, 0x400000
    s_mov_b32 s{S_A+3}, 0x20000
    s_mov_b32 s{S_B}, s{S_T0+3}
    s_mov_b32 s{S_B+1}, s{S_T0+4}
    s_mov_b32 s{S_B+2}, 0x400000
    s_mov_b32 s{S_B+3}, 0x20000
    s_mov_b32 s{S_C}, s{S_T0+5}
    s_mov_b32 s{S_C+1}, s{S_T0+6}
    s_mov_b32 s{S_C+2}, 0x400000
    s_mov_b32 s{S_C+3}, 0x20000
    s_mov_b32 s{S_D}, s{S_T0+7}
    s_mov_b32 s{S_D+1}, s{S_T0+8}
    s_mov_b32 s{S_D+2}, 0x400000
    s_mov_b32 s{S_D+3}, 0x20000
    ''')
    sq, so_, aq, ao = 100, 101, 102, 110
    a(f'''
    v_lshrrev_b32 v20, 4, v{vLANE}
    v_and_b32 v21, 15, v{vLANE}
    v_lshlrev_b32 v{sq}, 13, v20
    v_lshl_add_u32 v{sq}, v21, 4, v{sq}
    s_lshl_b32 s{S_T0}, s{S_HEAD}, 8
    s_lshl_b32 s{S_T0+1}, s{S_WAVE}, 20
    s_add_u32 s{S_T0}, s{S_T0}, s{S_T0+1}
    v_add_u32 v{sq}, s{S_T0}, v{sq}
    v_lshlrev_b32 v{so_}, 10, v20
    v_lshl_add_u32 v{so_}, v21, 4, v{so_}
    s_lshl_b32 s{S_T0}, s{S_HEAD}, 17
    s_lshl_b32 s{S_T0+1}, s{S_WAVE}, 8
    s_add_u32 s{S_T0}, s{S_T0}, s{S_T0+1}
    v_add_u32 v{so_}, s{S_T0}, v{so_}
    s_mul_i32 s{S_T0+2}, s{S_WAVE}, {WREG}
    s_lshl_b32 s{S_T0+3}, s{S_WAVE}, 14
    ''')
    batches = opt.get('border', [('o',0),('o',1),('v',0),('v',1),('k',0),('k',1),('q',0),('q',1)])
    def issue(n):
        mat, p = batches[n]
        buf = (n & 1)*65536
        for i in range(16):
            if mat == 'o':
                a(f'''s_add_u32 m0, s{S_T0+3}, {buf + i*1024}
                      s_mov_b32 s{S_STEP}, {p*65536 + i*4096}
                      buffer_load_dwordx4 v{so_}, s[{S_D}:{S_D+3}], s{S_STEP} offen lds''')
            else:
                srd = {'q':S_A,'k':S_B,'v':S_C}[mat]
                a(f'''s_add_u32 m0, s{S_T0+3}, {buf + i*1024}
                      s_mov_b32 s{S_STEP}, {p*524288 + i*32768}
                      buffer_load_dwordx4 v{sq}, s[{srd}:{srd+3}], s{S_STEP} offen lds''')
    issue(0); issue(1)
    a(f'''
    v_lshrrev_b32 v22, 4, v{vLANE}            ; g
    v_and_b32 v23, 15, v{vLANE}               ; j / i
    v_bfe_u32 v24, v{vLANE}, 2, 2
    v_and_b32 v25, 3, v{vLANE}                ; c
    v_lshrrev_b32 v26, 1, v22                 ; g>>1
    v_and_b32 v27, 1, v22                     ; g&1
    v_lshrrev_b32 v28, 1, v24                 ; r>>1
    v_and_b32 v29, 1, v24                     ; r&1
    v_lshl_add_u32 v18, v26, 2, v27
    v_lshl_add_u32 v18, v28, 1, v18
    v_lshl_add_u32 v18, v29, 4, v18
    v_lshlrev_b32 v18, 8, v18
    v_lshl_add_u32 v18, v25, 4, v18
    s_lshl_b32 s{S_T0+4}, s{S_WAVE}, 6
    s_add_u32 s{S_T0+4}, s{S_T0+4}, s{S_T0+3}
    v_add_u32 v{aq}, s{S_T0+4}, v18
    v_xor_b32 v{aq+1}, 0x4000, v{aq}
    v_xor_b32 v{aq+2}, 0x8000, v{aq}
    v_xor_b32 v{aq+3}, 0xc000, v{aq}
    v_add_u32 v{aq+4}, 0x10000, v{aq}
    v_add_u32 v{aq+5}, 0x10000, v{aq+1}
    v_add_u32 v{aq+6}, 0x10000, v{aq+2}
    v_add_u32 v{aq+7}, 0x10000, v{aq+3}
    v_lshl_add_u32 v19, v26, 4, v29
    v_lshl_add_u32 v19, v27, 2, v19
    v_lshl_add_u32 v19, v28, 3, v19
    v_lshlrev_b32 v19, 8, v19
    v_lshl_add_u32 v19, v25, 3, v19
    v_add_u32 v{ao}, s{S_T0+3}, v19
    ; vL
    v_lshlrev_b32 v30, 4, v{vLANE}            ; lane*16
    v_add_u32 v{vL}, s{S_T0+2}, v30
    v_lshlrev_b32 v31, 2, v{vLANE}            ; lane*4
    ''')
    for p in range(4):
        a(f'''s_xor_b32 s{S_T0+4}, s{S_WAVE}, {p}
              s_lshl_b32 s{S_T0+4}, s{S_T0+4}, 11
              s_add_u32 s{S_T0+5}, s{S_T0+4}, {SH}
              v_add_u32 v{vM[p]}, s{S_T0+5}, v30
              s_add_u32 s{S_T0+5}, s{S_T0+4}, {PS+1024}
              v_add_u32 v{vN[p]}, s{S_T0+5}, v31''')
    a(f'''
    s_lshl_b32 s{S_T0+4}, s{S_WAVE}, 11
    s_add_u32 s{S_T0+4}, s{S_T0+4}, {PS}
    v_lshlrev_b32 v{vQTw}, 7, v22
    v_lshl_add_u32 v{vQTw}, v23, 2, v{vQTw}
    v_add_u32 v{vQTw}, s{S_T0+4}, v{vQTw}
    v_and_b32 v32, 7, v23                     ; m
    v_lshrrev_b32 v33, 3, v23                 ; T
    v_lshlrev_b32 v{vQr}, 6, v32
    v_lshl_add_u32 v{vQr}, v27, 4, v{vQr}
    v_mov_b32 v34, 1280
    v_cmp_eq_u32 vcc, v26, v33
    s_nop 1
    v_cndmask_b32 v{vQr}, v34, v{vQr}, vcc
    v_add_u32 v{vQr}, s{S_T0+4}, v{vQr}
    v_lshl_add_u32 v35, v24, 1, v26           ; key
    v_lshlrev_b32 v{vKr}, 6, v35
    v_lshl_add_u32 v{vKr}, v27, 4, v{vKr}
    v_add_u32 v{vKr}, s{S_T0+4}, v{vKr}
    v_add_u32 v{vKr}, 512, v{vKr}
    v_and_b32 v36, 1, v{vLANE}
    v_lshl_add_u32 v{vKr}, v36, 5, v{vKr}
    v_lshlrev_b32 v{vKMst}, 8, v35
    v_lshl_add_u32 v{vKMst}, v27, 4, v{vKMst}
    v_lshl_add_u32 v{vKMst}, v36, 5, v{vKMst}
    s_lshl_b32 s{S_T0+5}, s{S_WAVE}, 6
    v_add_u32 v{vKMst}, s{S_T0+5}, v{vKMst}
    v_cmp_eq_u32 s[{S_MT0}:{S_MT0+1}], 0, v33
    v_cmp_eq_u32 s[{S_MT1}:{S_MT1+1}], 1, v33
    v_lshrrev_b32 v36, 1, v32                 ; m>>1
    v_and_b32 v37, 1, v32                     ; m&1
    v_lshl_add_u32 v{vOw}, v26, 4, v37
    v_lshl_add_u32 v{vOw}, v36, 2, v{vOw}
    v_lshl_add_u32 v{vOw}, v27, 1, v{vOw}
    v_lshlrev_b32 v{vOw}, 4, v{vOw}
    s_lshl_b32 s{S_T0+5}, s{S_WAVE}, 9         ; (w>>1)*1024 + (w&1)*512 = w*512
    s_add_u32 s{S_T0+5}, s{S_T0+5}, {SH}
    v_add_u32 v{vOw}, s{S_T0+5}, v{vOw}
    v_lshlrev_b32 v36, 4, v32
    v_lshl_add_u32 v36, v22, 7, v36
    v_add_u32 v36, s{S_T0+4}, v36
    v_add_u32 v36, 1536, v36
    v_cndmask_b32 v{vOw}, v{vOw}, v36, s[{S_MT1}:{S_MT1+1}]
    v_add_u32 v{vOr}, {SH}, v30
    v_bfe_u32 v38, v{vLANE}, 1, 1
    v_mov_b32 v{vIdx}, 0x4444
    v_mov_b32 v39, 0xeeee
    v_cmp_eq_u32 vcc, 1, v38
    s_nop 1
    v_cndmask_b32 v{vIdx}, v{vIdx}, v39, vcc
    s_lshl_b32 s{S_T0+5}, s{S_WAVE}, 3
    v_add_u32 v{vPst}, s{S_T0+5}, v22
    v_lshlrev_b32 v{vPst}, {opt.get('ins',14)}, v{vPst}
    v_lshl_add_u32 v{vPst}, v24, 11, v{vPst}
    v_lshl_add_u32 v{vPst}, v25, 4, v{vPst}
    s_lshl_b32 s{S_T0+5}, s{S_HEAD}, 6
    v_add_u32 v{vPst}, s{S_T0+5}, v{vPst}
    s_lshl_b32 s{S_T0+5}, s{S_HEAD}, {opt.get('ins',14)}
    s_lshl_b32 s{S_T0+6}, s{S_WAVE}, 11
    s_add_u32 s{S_T0+5}, s{S_T0+5}, s{S_T0+6}
    s_add_u32 s{S_INL}, s{S_T0+5}, {WS_INBOX - SH}
    v_lshlrev_b32 v{vMst}, 7, v26
    v_lshl_add_u32 v{vMst}, v25, 3, v{vMst}
    v_lshl_add_u32 v{vMst}, v27, 2, v{vMst}
    s_lshl_b32 s{S_T0+5}, s{S_HEAD}, 8
    s_lshl_b32 s{S_T0+6}, s{S_WAVE}, 5
    s_add_u32 s{S_T0+5}, s{S_T0+5}, s{S_T0+6}
    v_add_u32 v{vMst}, s{S_T0+5}, v{vMst}
    s_mov_b32 s{S_MST}, 0x000f000f
    s_mov_b32 s{S_MST+1}, 0x000f000f
    v_and_b32 v40, 1, v{vLANE}
    v_lshlrev_b32 v{vMld}, 8, v24
    v_lshl_add_u32 v{vMld}, v40, 7, v{vMld}
    v_lshl_add_u32 v{vMld}, v22, 5, v{vMld}
    v_lshl_add_u32 v{vMld}, v38, 4, v{vMld}
    s_lshl_b32 s{S_T0+5}, s{S_WAVE}, 11
    v_add_u32 v{vMld}, s{S_T0+5}, v{vMld}
    s_mov_b32 s{S_C1}, 0x3e0293ee      ; 128^-0.5 * log2(e)
    ''')
    ring = opt.get('ring', RING)
    a(f'''
    v_mov_b32 v44, -1
    v_mov_b32 v45, -1
    v_mov_b32 v46, -1
    v_mov_b32 v47, -1
    buffer_store_dwordx4 v[44:47], v{vOr}, s[{S_WS}:{S_WS+3}], s{S_INL} offen sc1
    buffer_store_dwordx4 v[44:47], v{vOr}, s[{S_WS}:{S_WS+3}], s{S_INL} offen offset:1024 sc1
    s_load_dwordx2 s[{S_T0+5}:{S_T0+6}], s[0:1], 8
    s_mov_b64 exec, s[{S_MST}:{S_MST+1}]
    ''')
    for s in range(1, ring):
        a(f'''s_mov_b32 s{S_T0+7}, {WS_MEM + s*8192}
              buffer_store_dword v44, v{vMst}, s[{S_WS}:{S_WS+3}], s{S_T0+7} offen sc1''')
    a(f'''
    s_mov_b64 exec, -1
    s_and_b32 s{S_T0+7}, s{S_HEAD}, 3
    s_lshl_b32 s{S_T0+7}, s{S_T0+7}, 11
    s_lshr_b32 s{S_T0+8}, s{S_HEAD}, 2
    s_lshl_b32 s{S_T0+8}, s{S_T0+8}, 7
    s_add_u32 s{S_T0+7}, s{S_T0+7}, s{S_T0+8}
    s_lshl_b32 s{S_T0+8}, s{S_WAVE}, 3
    s_add_u32 s{S_T0+7}, s{S_T0+7}, s{S_T0+8}
    v_lshlrev_b32 v41, 10, v26
    v_lshl_add_u32 v41, v25, 1, v41
    v_lshl_add_u32 v41, v27, 6, v41
    v_add_u32 v41, s{S_T0+7}, v41
    s_waitcnt lgkmcnt(0)
    global_load_ushort v48, v41, s[{S_T0+5}:{S_T0+6}]
    global_load_ushort v49, v41, s[{S_T0+5}:{S_T0+6}] offset:32
    ''')
    temps = [16+8*i for i in range(10)] + [112+8*i for i in range(4)]
    tmap = {}
    PARK = 131072
    for n,(mat,p) in enumerate(batches):
        buf = n & 1
        a(f's_waitcnt vmcnt({16 if n < 7 else 0})')
        if n == 2:
            a(f'''    v_lshl_or_b32 v48, v49, 16, v48
    v_min_u32 v48, -2, v48
    s_mov_b32 s{S_T0+7}, {WS_MEM}
    s_mov_b64 exec, s[{S_MST}:{S_MST+1}]
    buffer_store_dword v48, v{vMst}, s[{S_WS}:{S_WS+3}], s{S_T0+7} offen sc1
    s_mov_b64 exec, -1
''')
        if mat != 'o': a('s_barrier')
        if opt.get('hook'): opt['hook'](a, n)
        if mat == 'o':
            if buf: a(f'v_add_u32 v{ao}, 0x10000, v{ao}')
            for t in range(8):
                dst = wfrag('o', p, t)
                for rho in range(4):
                    if dst is None: d = vr(16 + 8*(t&1) + 2*rho, 2)
                    else:
                        f, base = dst[0], int(dst[2:dst.index(':')]); d = f'{f}[{base+2*rho}:{base+2*rho+1}]'
                    a(f'ds_read_b64_tr_b16 {d}, v{ao} offset:{(32*(rho>>1) + 2*(rho&1))*256 + 32*t}')
            if buf: a(f'v_subrev_u32 v{ao}, 0x10000, v{ao}')
            a('s_waitcnt lgkmcnt(0)')
            for t in range(2):
                for hf in range(2):
                    off = PARK + (2*p+t)*8192 + hf*1024 - SH
                    a(f'v_add_u32 v32, {off & 0xffffffff}, v{vM[0]}\n ds_write_b128 v32, {vr(16+8*t+4*hf,4)}')
        else:
            for pi in range(4):
                sg = 2*pi + p
                for t in range(2):
                    dst = wfrag(mat, sg, t)
                    if dst is None:
                        tmap[(mat,sg,t)] = temps.pop(0); dst = vr(tmap[(mat,sg,t)], 8)
                    f, base = dst[0], int(dst[2:dst.index(':')])
                    for rho in range(4):
                        a(f'ds_read_b64_tr_b16 {f}[{base+2*rho}:{base+2*rho+1}], v{aq+4*buf+pi} offset:{(32*(rho&1) + 8*(rho>>1))*256 + 8*t}')
        a('s_waitcnt lgkmcnt(0)\n s_barrier')
        if n + 2 < 8: issue(n+2)
    for (mat,sg,t),r in list(tmap.items())[:4]:
        pass
    items = list(tmap.items())
    low = [it for it in items if home(it[0][0],it[0][1],it[0][2]) + 2048 <= PARK - 3*WREG][:4]
    assert len(low) == 4
    def wr(key, r, k2=None):
        off = home(*key)
        a(f'ds_write_b128 v{vL}, {vr(r,4)} offset:{off}\n ds_write_b128 v{vL}, {vr(r+4,4)} offset:{off+1024}')
    for key,r in low: wr(key, r)
    a('s_waitcnt lgkmcnt(0)')
    for i,(key,r) in enumerate(low):
        for hf in range(2):
            off = PARK + i*8192 + hf*1024 - SH
            a(f'v_add_u32 v{ao}, {off & 0xffffffff}, v{vM[0]}\n ds_read_b128 {vr(r+4*hf,4)}, v{ao}')
    a('s_waitcnt lgkmcnt(0)\n s_barrier')
    for key,r in items:
        if (key,r) not in low: wr(key, r)
    for i,(key,r) in enumerate(low): wr(('o',(i>>1,3),i&1), r)
    a(f'''
    s_waitcnt lgkmcnt(0)
    v_lshrrev_b32 v22, 4, v{vLANE}
    v_and_b32 v23, 15, v{vLANE}
    v_bfe_u32 v24, v{vLANE}, 2, 2
    v_and_b32 v25, 3, v{vLANE}
    v_and_b32 v27, 1, v22
    v_lshrrev_b32 v28, 1, v24
    v_and_b32 v29, 1, v24
    v_mov_b32 v39, 0x3f80
    v_mov_b32 v40, 0x3f800000
    v_cmp_eq_u32 vcc, 1, v28
    s_nop 1
    v_cndmask_b32 v39, v39, v40, vcc
    v_cmp_gt_u32 vcc, 2, v25
    s_nop 1
    v_cndmask_b32 v39, 0, v39, vcc
    v_lshl_add_u32 v40, v29, 1, v25
    ''')
    for d in range(4):
        a(f'''v_cmp_eq_u32 vcc, {d}, v40
              s_nop 1
              v_cndmask_b32 v{vSel+d}, 0, v39, vcc''')
    a(f'''
    v_lshlrev_b32 v{vTch}, 7, v23
    v_lshl_add_u32 v{vTch}, v27, 24, v{vTch}
    v_add_u32 v{vTch}, {SH + 32*8192}, v{vTch}
    s_lshl_b32 s{S_T0+5}, s{S_WAVE}, 11
    s_sub_u32 s{S_T0+6}, {WS_KM + 6144 - WS_KX + SH + 2*32*8192}, s{S_T0+5}
    v_mov_b32 v40, s{S_T0+6}
    v_cmp_lt_u32 vcc, 31, v{vLANE}
    s_nop 1
    v_cndmask_b32 v{vTch}, v{vTch}, v40, vcc
    v_mov_b32 v42, 0
    ds_write_b32 v{vN[0]}, v42 offset:256
    s_waitcnt vmcnt(0) lgkmcnt(0)
    ''')

def chain_masks(a):
    a(f'''
    v_mov_b32 v{PMZ}, 0
    v_mov_b32 v{PMZ+1}, 0
    v_mov_b32 v{VMQ}, 0
    v_mov_b32 v{VMQ+1}, 0
    v_mov_b32 v{VMQ+2}, 0
    v_mov_b32 v{VMQ+3}, 0
    ''')

def stamp(a, opt, i, mode=1):
    if opt.get('stamps') == 3:
        if mode == 1 and i in (1,2,5,8,9,10,11): a(f's_memrealtime s[{S_STAMP+2*i}:{S_STAMP+2*i+1}]')
    elif opt.get('stamps') == 4:
        if (mode == 4) or (mode == 1 and i in (0,1,2,8,9,10,11)): a(f's_memtime s[{S_STAMP+2*i}:{S_STAMP+2*i+1}]')
    elif opt.get('stamps') == 5:
        if mode == 5 or (mode == 1 and i in (0,8,9,10,11)): a(f's_memtime s[{S_STAMP+2*i}:{S_STAMP+2*i+1}]')
    elif opt.get('stamps') == mode:
        a(f's_memtime s[{S_STAMP+2*i}:{S_STAMP+2*i+1}]')

def chain_loop(a, opt, st, tag):
    ring = opt.get('ring', RING)
    d1 = opt.get('d1', 7); d2 = opt.get('d2', 6)
    W = f's[{S_WS}:{S_WS+3}]'
    Q0,Q1,K0,K1 = ACC
    Ltop = f'L_step_{tag}'; P1 = f'L_p1_{tag}'; P2 = f'L_p2_{tag}'; Lfin = f'L_fin_{tag}'
    TO = lambda out: a(f's_add_u32 s{S_TO}, s{S_TO}, 1\n s_cmp_gt_u32 s{S_TO}, 0x100000\n s_cbranch_scc1 {out}')
    def zl(acc): return [f'v_mov_b32 v{acc+i}, 0' for i in range(4)]
    def zero(acc): a('\n'.join(zl(acc)))
    def sread(dst, mat, key, t):
        off = home(mat, key, t)
        a(f'ds_read_b128 {vr(dst,4)}, v{vL} offset:{off}\n ds_read_b128 {vr(dst+4,4)}, v{vL} offset:{off+1024}')
    a(f"""
    s_mov_b32 s{S_STEP}, 0
    s_mov_b32 s{S_MEMO}, {WS_MEM}
    s_mov_b32 s{S_MEMN}, {WS_MEM + 8192}
    s_mov_b32 s{S_INO}, {WS_INBOX}
    s_lshl_b32 s{S_T0}, s{S_HEAD}, 13
    s_lshl_b32 s{S_T0+1}, s{S_WAVE}, 11
    s_add_u32 s{S_KMO}, s{S_T0}, {WS_KM}
    s_add_u32 s{S_T0}, s{S_T0}, s{S_T0+1}
    s_add_u32 s{S_KXO}, s{S_T0}, {WS_KX - SH}
    s_add_u32 s{S_VXO}, s{S_T0}, {WS_VX - SH}
    s_add_u32 s{S_KVL}, s{S_KXO}, {62*32*8192}
    s_lshl_b32 s{S_T0+1}, s{S_WAVE}, 10
    s_add_u32 s{S_VMO}, s{S_KMO}, s{S_T0+1}
    s_add_u32 s{S_VMO}, s{S_VMO}, {2048 - SH - 32*8192}
    s_mov_b32 s{S_TO}, 0
    s_mov_b32 s{S_PH}, 0
    """)
    def kvload():
        return [f'buffer_load_dwordx4 {vr(KXR,4)}, v{vOr}, {W}, s{S_KXO} offen sc1',
                f'buffer_load_dwordx4 {vr(KXR+4,4)}, v{vOr}, {W}, s{S_KXO} offen offset:1024 sc1',
                f'buffer_load_dwordx4 {vr(VXR,4)}, v{vOr}, {W}, s{S_VXO} offen sc1',
                f'buffer_load_dwordx4 {vr(VXR+4,4)}, v{vOr}, {W}, s{S_VXO} offen offset:1024 sc1']
    def pre_sb():
        sread(SB(0),'k',0,1); sread(SB(1),'q',1,0); sread(SB(2),'q',1,1); sread(SB(3),'k',1,0)
    def pre_af():
        sread(AF(2),'q',0,0); sread(AF(4),'q',0,1); sread(AF(6),'k',0,0)
    def p2_loads():
        a(f"""buffer_load_dwordx4 {vr(AF(0),4)}, v{vMld}, {W}, s{S_MEMO} offen sc1
              buffer_load_dwordx4 {vr(AF(1),4)}, v{vMld}, {W}, s{S_MEMO} offen offset:1024 sc1""")
    if opt.get('kvwait'): opt['kvwait'](a, first=True)
    pre_sb(); pre_af()
    for x in ACC + [V0,V1] + XA: zero(x)
    D1p = opt.get('D1', 1); D2p = opt.get('D2', 1)
    chk2 = f"""
    v_max3_u32 v{vT}, v{AF(0)}, v{AF(0)+1}, v{AF(0)+2}
    v_max3_u32 v{vT}, v{vT}, v{AF(0)+3}, v{AF(1)}
    v_max3_u32 v{vT}, v{vT}, v{AF(1)+1}, v{AF(1)+2}
    v_max_u32 v{vT}, v{vT}, v{AF(1)+3}
    v_cmp_eq_u32 vcc, -1, v{vT}
    """
    p2_loads()
    a(f'{Ltop}:')
    stamp(a, opt, 0)
    a(f"""
    s_waitcnt vmcnt(1)
    ds_write_b128 v{vM[0]}, {vr(AF(0),4)}
    v_max3_u32 v{vT}, v{AF(0)}, v{AF(0)+1}, v{AF(0)+2}
    s_waitcnt vmcnt(0)
    ds_write_b128 v{vM[0]}, {vr(AF(1),4)} offset:1024
    v_max3_u32 v{vT}, v{vT}, v{AF(0)+3}, v{AF(1)}
    v_max3_u32 v{vT}, v{vT}, v{AF(1)+1}, v{AF(1)+2}
    v_max_u32 v{vT}, v{vT}, v{AF(1)+3}
    v_cmp_eq_u32 vcc, -1, v{vT}
    s_cbranch_vccnz {P2}
    """)
    ool = Asm()
    ool(f"""
    {P2}:
    s_mov_b64 exec, vcc
    buffer_load_dwordx4 {vr(AF(0),4)}, v{vMld}, {W}, s{S_MEMO} offen sc1
    buffer_load_dwordx4 {vr(AF(1),4)}, v{vMld}, {W}, s{S_MEMO} offen offset:1024 sc1
    s_mov_b64 exec, -1
    s_add_u32 s{S_TO}, s{S_TO}, 1
    s_cmp_gt_u32 s{S_TO}, 0x100000
    s_cbranch_scc0 {Ltop}
    s_waitcnt vmcnt(0)
    s_branch {P2}x
    """)
    a(f"""
    {P2}x:
    s_waitcnt lgkmcnt(2)
    """)
    stamp(a, opt, 1)
    kl = kvload()
    smf(a,Q0,AF(0),vr(AF(2),8)); a(kl[0])
    smf(a,Q1,AF(0),vr(AF(4),8)); a(kl[1])
    if opt.get('b1m'):
        a(kl[2]); smf(a,K0,AF(0),vr(AF(6),8)); a(kl[3])
        a('s_waitcnt lgkmcnt(0)\n s_barrier')
    else:
        smf(a,K0,AF(0),vr(AF(6),8)); a(kl[2])
        smf(a,K1,AF(0),vr(SB(0),8)); a(kl[3])
        a('s_waitcnt lgkmcnt(0)\n s_barrier')
    stamp(a, opt, 2)
    if opt.get('log'):
        a(f'''{'s_memrealtime' if opt.get('prof') else 's_memtime'} s[{S_STAMP}:{S_STAMP+1}]
              s_lshl_b32 s{S_STAMP+2}, s{S_HEAD}, 10
              s_lshl_b32 s{S_STAMP+3}, s{S_WAVE}, 8
              s_add_u32 s{S_STAMP+2}, s{S_STAMP+2}, s{S_STAMP+3}
              s_lshl_b32 s{S_STAMP+3}, s{S_STEP}, 2
              s_add_u32 s{S_STAMP+2}, s{S_STAMP+2}, s{S_STAMP+3}
              s_add_u32 s{S_STAMP+2}, s{S_STAMP+2}, {65536}
              s_waitcnt lgkmcnt(0)
              v_mov_b32 v{vT}, s{S_STAMP}
              s_mov_b64 exec, 1
              buffer_store_dword v{vT}, v{PMZ+1}, {W}, s{S_STAMP+2} offen
              s_mov_b64 exec, -1''')
    vseq = [(s,t) for s in range(8) for t in range(2)]
    def vm(n, fill=()):
        fill = list(fill)
        for _ in range(n):
            if not vseq: break
            s,t = vseq.pop(0)
            smf(a, V0 if t == 0 else V1, AF(s), wfrag('v',s,t))
            a('\n'.join(fill[:2])); fill = fill[2:]
        a('\n'.join(fill))
    rd = []
    for p in (1,2,3):
        rd += [f'ds_read_b128 {vr(AF(2*p),4)}, v{vM[p]}', f'ds_read_b128 {vr(AF(2*p+1),4)}, v{vM[p]} offset:1024']
    a(rd[0]); a(rd[1])
    if opt.get('kvwait'): opt['kvwait'](a, first=False)
    a(f's_min_u32 s{S_T0+2}, s{S_KXO}, s{S_KVL}\n buffer_load_dword v{vT+1}, v{vTch}, {W}, s{S_T0+2} offen sc1')
    smf(a,Q0,AF(1),vr(SB(1),8)); a(rd[2]); a(rd[3])
    smf(a,Q1,AF(1),vr(SB(2),8)); a(rd[4]); a(rd[5])
    smf(a,K0,AF(1),vr(SB(3),8))
    if opt.get('kmflag'): opt['kmflag'](a, last=False)
    a(f's_add_u32 s{S_KXO}, s{S_KXO}, {opt.get("kvs",32*8192)}\n s_add_u32 s{S_VXO}, s{S_VXO}, {opt.get("kvs",32*8192)}')
    if opt.get('b1m'): smf(a,K1,AF(0),vr(SB(0),8))
    vm(1 if opt.get('b1m') else 2)
    vm(opt.get('v0',0))
    def sr1(dst, mat, key, t, half):
        return f'ds_read_b128 {vr(dst+4*half,4)}, v{vL} offset:{home(mat,key,t)+1024*half}'
    late = [(SB(0),'q',7,0),(SB(1),'q',7,1),(SB(2),'k',1,1),(SB(3),'k',6,0)]
    for s in range(2,7):
        a(f's_waitcnt lgkmcnt({7-s + (0 if s<=2 else 2*min(s-2,4))})')
        smf(a,Q0,AF(s),wfrag('q',s,0))
        if s < 6: a(sr1(*late[s-2],0))
        smf(a,Q1,AF(s),wfrag('q',s,1))
        if s < 6: a(sr1(*late[s-2],1))
        if s == opt.get('vmpos',6) and opt.get('nokm') not in (1,3): a(f'buffer_store_dwordx4 {vr(VMQ,4)}, v{vOr}, {W}, s{S_VMO} offen sc1\n s_add_u32 s{S_VMO}, s{S_VMO}, {32*8192}')
    a('s_waitcnt lgkmcnt(2)')
    smf(a,Q0,AF(7),vr(SB(0),8)); smf(a,Q1,AF(7),vr(SB(1),8))
    stamp(a, opt, 3)
    smf(a,K1,AF(1),vr(SB(2),8))
    more = [sr1(SB(0),'k',6,1,0), sr1(SB(0),'k',6,1,1), sr1(SB(1),'k',7,0,0), sr1(SB(1),'k',7,0,1), sr1(SB(2),'k',7,1,0), sr1(SB(2),'k',7,1,1)]
    a(more.pop(0))
    for s in (2,3,4,5):
        smf(a,K0,AF(s),wfrag('k',s,0))
        if more: a(more.pop(0))
        if s == 3: a(padd(Q0,Q0,Q0+2))
        if s == 4: a(f'v_cvt_pk_bf16_f32 v{vT}, v{Q0}, v{Q1}\n v_cvt_pk_bf16_f32 v{PMZ}, v{Q0+1}, v{Q1+1}')
        if s == 5: a('\n'.join(zl(Q0)[:2]))
        smf(a,K1,AF(s),wfrag('k',s,1))
        if more: a(more.pop(0))
        if s == 3: a(padd(Q1,Q1,Q1+2))
        if s == 4: a(f'ds_write2_b32 v{vQTw}, v{vT}, v{PMZ} offset0:0 offset1:16')
        if s == 5: a('\n'.join(zl(Q0)[2:]))
    a('s_waitcnt lgkmcnt(1)')
    QB, KX, KM, DX, DM = SB(3), KXR, SB(0), SB(1), SB(1)+4
    smf(a,K0,AF(6),vr(SB(3),8)); a('\n'.join(zl(Q1)[:2]))
    smf(a,K1,AF(6),vr(SB(0),8)); a('\n'.join(zl(Q1)[2:]))
    smf(a,K0,AF(7),vr(SB(1),8))
    a(f'ds_read_b128 {vr(QB,4)}, v{vQr}')
    smf(a,K1,AF(7),vr(SB(2),8))
    a(f'ds_read_b128 {vr(QB+4,4)}, v{vQr} offset:32')
    stamp(a, opt, 4)
    vm(2)
    a(f"""
    s_nop 0
    {padd(K0,K0,K0+2)}
    {padd(K1,K1,K1+2)}
    v_cvt_pk_bf16_f32 v{vT}, v{K0}, v{K1}
    v_cvt_pk_bf16_f32 v{PMZ}, v{K0+1}, v{K1+1}
    ds_write2_b32 v{vQTw}, v{vT}, v{PMZ} offset0:128 offset1:144
    ds_read_b128 {vr(KM,4)}, v{vKr}
    ds_read_b128 {vr(KM+4,4)}, v{vKr} offset:32
    s_waitcnt lgkmcnt(3) vmcnt({opt.get('kvcnt',2)})
    v_mfma_f32_16x16x32_bf16 {vr(DX,4)}, {vr(KX,4)}, {vr(QB,4)}, 0
    v_mfma_f32_16x16x32_bf16 {vr(DX,4)}, {vr(KX+4,4)}, {vr(QB+4,4)}, {vr(DX,4)}
    """)
    vm(opt.get('va',3), zl(K0)+zl(K1)[:2])
    a(f"""
    s_waitcnt lgkmcnt(0)
    v_mfma_f32_16x16x32_bf16 {vr(DM,4)}, {vr(KM,4)}, {vr(QB,4)}, 0
    v_mfma_f32_16x16x32_bf16 {vr(DM,4)}, {vr(KM+4,4)}, {vr(QB+4,4)}, {vr(DM,4)}
    ds_write_b128 v{vM[0]}, {vr(DX,4)} offset:8192
    """)
    vm(2, zl(K1)[2:])
    a(f"""
    s_nop 0
    ds_write_b32 v{vN[0]}, v{DM}
    """)
    vm(opt.get('vb',3), [] if opt.get('nokm') in (1,2) else [f'buffer_store_dwordx4 {vr(KM,4)}, v{vKMst}, {W}, s{S_KMO} offen sc1'])
    a('s_waitcnt lgkmcnt(0)\n s_barrier')
    stamp(a, opt, 5)
    X1, X2, X3, MM = SB(3), SB(3)+4, SB(2), SB(2)+4
    VX = VXR
    a(f"""
    ds_read_b128 {vr(X1,4)}, v{vM[1]} offset:8192
    ds_read_b32 v{MM}, v{vN[1]}
    """)
    vm(16, [f'ds_read_b128 {vr(X2,4)}, v{vM[2]} offset:8192', f'ds_read_b32 v{MM+1}, v{vN[2]}',
            f'ds_read_b128 {vr(X3,4)}, v{vM[3]} offset:8192', f'ds_read_b32 v{MM+2}, v{vN[3]}'])
    a(f's_cmp_eq_u32 s{S_STEP}, 63\n s_cbranch_scc1 {Lfin}')
    pa = (lambda d,x,y: f'v_pk_add_f32 {vr(d,2)}, {vr(x,2)}, {vr(y,2)}') if opt.get('pk2',1) else padd
    a(f"""
    s_waitcnt lgkmcnt(4)
    {pa(DX,DX,X1)}
    {pa(DX+2,DX+2,X1+2)}
    v_add_f32 v{DM}, v{DM}, v{MM}
    s_waitcnt lgkmcnt(2)
    {pa(DX,DX,X2)}
    {pa(DX+2,DX+2,X2+2)}
    v_add_f32 v{DM}, v{DM}, v{MM+1}
    s_waitcnt lgkmcnt(0)
    {pa(DX,DX,X3)}
    {pa(DX+2,DX+2,X3+2)}
    v_add_f32 v{DM}, v{DM}, v{MM+2}
    """)
    stamp(a, opt, 6)
    PX = SB(3)
    mx, tt, E = SB(2), SB(2)+1, SB(2)+2
    DPP = 'row_ror:8 row_mask:0xf bank_mask:0xf'
    a(f"""
    v_max3_f32 v{mx}, v{DX}, v{DX+1}, v{DX+2}
    v_max3_f32 v{mx}, v{mx}, v{DX+3}, v{DM}
    {padd(V0,V0,V0+2)}
    v_max_f32_dpp v{mx}, v{mx}, v{mx} {DPP}
    v_mov_b32 v{tt}, v{mx}
    {padd(V1,V1,V1+2)}
    v_permlane16_swap_b32 v{mx}, v{tt}
    v_max_f32 v{mx}, v{mx}, v{tt}
    v_mov_b32 v{tt}, v{mx}
    v_cvt_pk_bf16_f32 v{VMQ}, v{V0}, v{V0+1}
    v_cvt_pk_bf16_f32 v{VMQ+2}, v{V1}, v{V1+1}
    v_permlane32_swap_b32 v{mx}, v{tt}
    v_max_f32 v{mx}, v{mx}, v{tt}
    v_mul_f32 v{mx}, s{S_C1}, v{mx}
    v_fma_f32 v{E}, v{DX}, s{S_C1}, -v{mx}
    v_fma_f32 v{E+1}, v{DX+1}, s{S_C1}, -v{mx}
    v_exp_f32 v{E}, v{E}
    v_fma_f32 v{E+2}, v{DX+2}, s{S_C1}, -v{mx}
    v_exp_f32 v{E+1}, v{E+1}
    v_fma_f32 v{E+3}, v{DX+3}, s{S_C1}, -v{mx}
    v_exp_f32 v{E+2}, v{E+2}
    v_fma_f32 v{E+4}, v{DM}, s{S_C1}, -v{mx}
    v_exp_f32 v{E+3}, v{E+3}
    v_cvt_pk_bf16_f32 v{PX}, v{E}, v{E+1}
    v_exp_f32 v{E+4}, v{E+4}
    v_cvt_pk_bf16_f32 v{PX+1}, v{E+2}, v{E+3}
    v_mov_b32_dpp v{PX+2}, v{PX} {DPP}
    v_add_f32 v{mx}, v{E}, v{E+1}
    v_mov_b32_dpp v{PX+3}, v{PX+1} {DPP}
    v_mov_b32_dpp v{tt}, v{E+4} {DPP}
    s_nop 0
    """)
    stamp(a, opt, 7)
    D0, D1 = V0, V1
    t2 = SB(2)+7
    a(f"""
    v_mfma_f32_16x16x32_bf16 {vr(D0,4)}, {vr(VX,4)}, {vr(PX,4)}, 0
    v_cvt_pk_bf16_f32 v{PMZ}, v{E+4}, v{tt}
    v_add_f32 v{t2}, v{E+2}, v{E+3}
    v_mfma_f32_16x16x32_bf16 {vr(D1,4)}, {vr(VX+4,4)}, {vr(PX,4)}, 0
    v_add_f32 v{mx}, v{mx}, v{t2}
    v_add_f32 v{mx}, v{mx}, v{E+4}
    v_mfma_f32_16x16x16_bf16 {vr(D0,4)}, {vr(VMQ,2)}, {vr(PMZ,2)}, {vr(D0,4)}
    {sr1(AF(0),'o',(0,3),0,0)}
    v_add_f32_dpp v{mx}, v{mx}, v{mx} {DPP}
    v_mfma_f32_16x16x16_bf16 {vr(D1,4)}, {vr(VMQ+2,2)}, {vr(PMZ,2)}, {vr(D1,4)}
    v_mov_b32 v{tt}, v{mx}
    {sr1(AF(0),'o',(0,3),0,1)}
    {sr1(AF(2),'o',(1,3),0,0)}
    v_permlane16_swap_b32 v{mx}, v{tt}
    v_add_f32 v{mx}, v{mx}, v{tt}
    v_mov_b32 v{tt}, v{mx}
    {sr1(AF(2),'o',(1,3),0,1)}
    s_nop 0
    v_permlane32_swap_b32 v{mx}, v{tt}
    v_add_f32 v{mx}, v{mx}, v{tt}
    v_rcp_f32 v{mx}, v{mx}
    s_nop 0
    """)
    OW = SB(3)
    if opt.get('pk',1):
        for r in (0,2): a(f'v_pk_mul_f32 {vr(D0+r,2)}, {vr(D0+r,2)}, {vr(mx,2)} op_sel_hi:[1,0]')
    else:
        for r in range(4): a(f'v_mul_f32 v{D0+r}, v{D0+r}, v{mx}')
    a(f'v_cvt_pk_bf16_f32 v{OW}, v{D0}, v{D0+1}\n v_cvt_pk_bf16_f32 v{OW+1}, v{D0+2}, v{D0+3}')
    if opt.get('pk',1):
        for r in (0,2): a(f'v_pk_mul_f32 {vr(D1+r,2)}, {vr(D1+r,2)}, {vr(mx,2)} op_sel_hi:[1,0]')
    else:
        for r in range(4): a(f'v_mul_f32 v{D1+r}, v{D1+r}, v{mx}')
    a(f"""
    v_cvt_pk_bf16_f32 v{OW+2}, v{D1}, v{D1+1}
    v_cvt_pk_bf16_f32 v{OW+3}, v{D1+2}, v{D1+3}
    ds_write_b128 v{vOw}, {vr(OW,4)}
    """)
    accs = [XA[0], XA[1], Q0, Q1, K0, K1, SB(1), SB(1)+4]
    zero(accs[6]); zero(accs[7])
    a('s_waitcnt lgkmcnt(0)\n s_barrier')
    stamp(a, opt, 8)
    OF = SB(0)
    a(f'ds_read_b128 {vr(OF,4)}, v{vOr}\n ds_read_b128 {vr(OF+4,4)}, v{vOr} offset:1024')
    OUT = SB(2)
    def wo(kb2, t):
        r = wfrag('o', kb2, t)
        if r: return r
        return {(0,6):vr(AF(0),8),(1,6):vr(AF(2),8),(0,7):vr(AF(4),8),(1,7):vr(AF(6),8)}[(kb2,t)]
    def post(t):
        x = accs[t]
        return [f'v_add_f32 v{x}, v{x}, v{x+2}', f'v_add_f32 v{x+1}, v{x+1}, v{x+3}', f'v_cvt_pk_bf16_f32 v{OUT+t}, v{x}, v{x+1}', f'v_bfi_b32 v{OUT+t}, 1, s{S_PH}, v{OUT+t}']
    a('s_waitcnt lgkmcnt(1)')
    stamp(a,opt,1,5)
    smf(a, accs[0], OF, wo(0,0)); smf(a, accs[1], OF, wo(0,1))
    a('s_waitcnt lgkmcnt(0)')
    smf(a, accs[0], OF+4, wo(1,0)); sread(AF(4),'o',(0,3),1)
    smf(a, accs[1], OF+4, wo(1,1)); sread(AF(6),'o',(1,3),1)
    stamp(a,opt,2,5)
    pend = []
    def st0(k):
        if not opt.get('stag',0):
            if k == 0: a(f'buffer_store_dwordx4 {vr(OUT,4)}, v{vPst}, {W}, s{S_INO} offen {st}')
            return
        L = a.label('s0')
        a(f's_cmp_lg_u32 s{S_WAVE}, {k}\n s_cbranch_scc1 {L}\n buffer_store_dwordx4 {vr(OUT,4)}, v{vPst}, {W}, s{S_INO} offen {st}\n {L}:')
    for t in range(2,8):
        if t == 7: a('s_waitcnt lgkmcnt(0)')
        smf(a, accs[t], OF, wo(0,t))
        if t == 3: pend += post(1)
        if t >= 4: pend += post(t-2)
        n = 3 if t in (3,4) else 2
        a('\n'.join(pend[:n])); pend = pend[n:]
        if t == 6: st0(1)
        if t == 7: st0(3)
        smf(a, accs[t], OF+4, wo(1,t))
        if t == 2: pend += post(0)
        a('\n'.join(pend[:2])); pend = pend[2:]
        if t == 5: st0(0)
        if t == 6: st0(2)
    assert not pend
    a(f's_add_u32 s{S_T0}, s{S_INO}, {4 << opt.get("ins",14)}')
    stamp(a,opt,6,5)
    a('\n'.join(post(6)))
    a('s_nop 0')
    a('\n'.join(post(7)))
    stamp(a,opt,7,5)
    a(f'buffer_store_dwordx4 {vr(OUT+4,4)}, v{vPst}, {W}, s{S_T0} offen {st}')
    stamp(a, opt, 9)
    R0, R1, RD = AF(0), AF(1), AF(4)
    pre_sb()
    fill = [f'v_mov_b32 v{RD+4+i}, -1' for i in range(2)]
    for x in [Q0,Q1,V0,V1] + XA + [K0,K1]: fill += zl(x)
    a('\n'.join(fill))
    Ld = a.label('d1')
    a('s_nop 7\n'*opt.get('d1e', 0))
    a(f's_bitcmp0_b32 s{S_HEAD}, 2\n s_cbranch_scc1 {Ld}')
    a('s_nop 7\n'*opt.get('d1x', 4))
    a(f'{Ld}:')
    a(f"""buffer_load_dwordx4 {vr(R0,4)}, v{vOr}, {W}, s{S_INL} offen sc1
          buffer_load_dwordx4 {vr(R1,4)}, v{vOr}, {W}, s{S_INL} offen offset:1024 sc1""")
    ool(f"""
    {P1}:
    s_mov_b64 exec, vcc
    buffer_load_dwordx4 {vr(R0,4)}, v{vOr}, {W}, s{S_INL} offen sc1
    buffer_load_dwordx4 {vr(R1,4)}, v{vOr}, {W}, s{S_INL} offen offset:1024 sc1
    s_mov_b64 exec, -1
    s_add_u32 s{S_TO}, s{S_TO}, 1
    s_cmp_gt_u32 s{S_TO}, 0x100000
    s_cbranch_scc0 {P1}c
    s_waitcnt vmcnt(0)
    s_branch {P1}x
    """)
    a(f"""
    {P1}c:
    s_waitcnt vmcnt(1)
    v_mfma_f32_16x16x32_bf16 {vr(RD,4)}, {vr(vSel,4)}, {vr(R0,4)}, 0
    v_bitop3_b32 v{vT}, v{R0}, v{R0+1}, s{S_PH} bitop3:0x7e
    v_bitop3_b32 v{RD+6}, v{R0+2}, v{R0+3}, s{S_PH} bitop3:0x7e
    s_waitcnt vmcnt(0)
    v_mfma_f32_16x16x32_bf16 {vr(RD,4)}, {vr(vSel,4)}, {vr(R1,4)}, {vr(RD,4)}
    v_bitop3_b32 v{RD+7}, v{R1}, v{R1+1}, s{S_PH} bitop3:0x7e
    v_or3_b32 v{vT}, v{vT}, v{RD+6}, v{RD+7}
    v_bitop3_b32 v{RD+6}, v{R1+2}, v{R1+3}, s{S_PH} bitop3:0x7e
    v_bitop3_b32 v{vT}, v{vT}, v{RD+6}, 1 bitop3:0xa8
    v_cmp_ne_u32 vcc, 0, v{vT}
    s_nop 0
    s_cbranch_vccnz {P1}
    {P1}x:
    s_nop 0
    """)
    stamp(a, opt, 10)
    a(f"""
    v_add_f32_dpp v{RD}, v{RD}, v{RD} row_ror:8 row_mask:0xf bank_mask:0xf
    v_add_f32_dpp v{RD+1}, v{RD+1}, v{RD+1} row_ror:8 row_mask:0xf bank_mask:0xf
    s_nop 0
    v_add_f32_dpp v{RD}, v{RD}, v{RD} row_ror:4 row_mask:0xf bank_mask:0xf
    v_add_f32_dpp v{RD+1}, v{RD+1}, v{RD+1} row_ror:4 row_mask:0xf bank_mask:0xf
    s_mov_b64 exec, s[{S_MST}:{S_MST+1}]
    v_cvt_pk_bf16_f32 v{vT}, v{RD}, v{RD+1}
    buffer_store_dword v{vT}, v{vMst}, {W}, s{S_MEMN} offen {st}
    """)
    if ring < 64:
        a(f'buffer_store_dword v{RD+4}, v{vMst}, {W}, s{S_MEMO} offen {st}')
    a(f"""
    s_mov_b64 exec, -1
    s_add_u32 s{S_STEP}, s{S_STEP}, 1
    s_mov_b32 s{S_MEMO}, s{S_MEMN}
    s_add_u32 s{S_T0}, s{S_STEP}, 1
    s_and_b32 s{S_T0}, s{S_T0}, {ring-1}
    s_lshl_b32 s{S_T0}, s{S_T0}, 13
    s_add_u32 s{S_MEMN}, s{S_T0}, {WS_MEM}
    s_xor_b32 s{S_PH}, s{S_PH}, 1
    s_add_u32 s{S_KMO}, s{S_KMO}, {opt.get('kms',32*8192)}
    """)
    stamp(a, opt, 11)
    if opt.get('stamps'):
        L = a.label('ns')
        a(f's_waitcnt lgkmcnt(0)\n s_cmp_eq_u32 s{S_STEP}, {opt.get("sstep",43)+1}\n s_cbranch_scc0 {L}')
        for i in range(12): a(f's_mov_b32 s{84+i}, s{S_STAMP+2*i}')
        a(f'{L}:')
    pre_af()
    a('s_nop 7\n'*d2)
    if opt.get('d2x',4):
        L2 = a.label('d2')
        a(f's_bitcmp1_b32 s{S_HEAD}, 2\n s_cbranch_scc1 {L2}')
        a('s_nop 7\n'*opt.get('d2x',4))
        a(f'{L2}:')
    p2_loads()
    a(f's_branch {Ltop}')
    a.l += ool.l
    for f in opt.get('_ool',[]): f(a)
    opt['_ool'] = []
    a(f'{Lfin}:')
    a(f"""s_nop 7
    {padd(V0,V0,V0+2)}
    {padd(V1,V1,V1+2)}
    v_cvt_pk_bf16_f32 v{VMQ}, v{V0}, v{V0+1}
    v_cvt_pk_bf16_f32 v{VMQ+2}, v{V1}, v{V1+1}
    """)
    a(f'buffer_store_dwordx4 {vr(VMQ,4)}, v{vOr}, {W}, s{S_VMO} offen sc1')
    a('s_waitcnt vmcnt(0) lgkmcnt(0)\n s_barrier')
    if opt.get('kmflag'): opt['kmflag'](a, last=True)
```

```python
import sys
from common import *
import chain as C
from chain import S_WS, S_DBG, S_A, S_B, S_C, S_D, S_XCC, S_WAVE, S_HEAD, SH
from worker import *
import g1a

HDR = open('parallel_sum__memory_aug_recurrent_mem_tr__mixer_gmlp__prompt.s.ref').read().split('; @launch')[0]

def bcast_ticket(a, vsrc, sdst, addr=TK_LDS):
    L = a.label('bt')
    a(f'''s_cmp_lg_u32 s{S_WAVE}, 0
          v_mov_b32 v21, {addr}
          s_cbranch_scc1 {L}
          s_mov_b64 exec, 1
          ds_write_b32 v21, v{vsrc}
          s_mov_b64 exec, -1
          s_waitcnt lgkmcnt(0)
          {L}:
          s_barrier
          ds_read_b32 v22, v21
          s_waitcnt lgkmcnt(0)
          v_readfirstlane_b32 s{sdst}, v22
          s_barrier''')

def atomic_ret(a, vdst, off, val=1, srd_=None, soff='0'):
    L = a.label('ar')
    a(f'''s_cmp_lg_u32 s{S_WAVE}, 0
          s_cbranch_scc1 {L}
          v_mov_b32 v{vdst}, {val}
          v_mov_b32 v21, {off}
          s_mov_b64 exec, 1
          buffer_atomic_add v{vdst}, v21, {srd_ or DBG}, {soff} offen sc0
          s_mov_b64 exec, -1
          {L}:''')

TY_K=0; TY_Q=1; TY_WIN=2; TY_SP=3; TY_OB=4; TY_G3=5; TY_V=6; TY_LN1=7; TY_LN2=8; TY_ATT=9; TY_NOP=10; TY_G1=11
def ent(ty, blk=0, ct=0, nt=1): return ty | (blk << 4) | (ct << 12) | (nt << 20)
def build_tables(opt):
    kvs = [0,5,10,15,20,24,28,32]; qs = [0,4,8,12,16,21,26,32]
    g1 = []; lists = []
    for j in range(7):
        kv = []
        for h in range(kvs[j],kvs[j+1]): kv += [ent(TY_K,0,h), ent(TY_V,0,h)]
        win = [ent(TY_WIN,0,7+j), ent(TY_WIN,0,j)]; qq = [ent(TY_Q,0,h) for h in range(qs[j],qs[j+1])]
        first = []; late = []
        def add(dst, b, l):
            if not l: return
            dst.append(ent(TY_G1,b,0,0) | (len(lists) << 20)); lists.append(l + [ent(TY_NOP)]*(4-len(l)))
        rest = win + qq
        for i,t in enumerate(kv): add(first, 0, [t] + ([rest[i]] if i < len(rest) else []))
        n0 = len(kv); n2 = min(len(rest), n0); n1 = n0 - n2
        nfull = 32 - n0
        n1l = (len(kv)+1)//2
        per = [n1l] + [(nfull-n1l)//6 + (1 if b < (nfull-n1l) % 6 else 0) for b in range(6)]
        small = [3]*n1 + [2]*n2
        for b in range(1,8):
            tiles = (kv + win + qq) if b == 1 else (win + kv + qq)
            nl = per[b-1] if b == 1 else min(per[b-1], 4)
            head, tail_ = tiles[:4*nl], tiles[4*nl:]
            for i in range(nl): add(first, b, head[i::nl])
            while tail_:
                n = small.pop(0) if small else 2
                add(late, b, tail_[:n]); tail_ = tail_[n:]
        g1.append(first + late)
    opt['_lists'] = lists
    sp = [[ent(TY_SP,b,j) for b in range(16)] for j in range(7)]
    ob = [ent(TY_OB,b,c) for b in range(16) for c in range(4)]
    FS = opt.get('fs', 4)
    FE = opt.get('fe', 2); RB = opt.get('rb', 52)
    ft_early = [ent(TY_ATT,r,h) for r in range(FE) for h in range(32)]
    tail = [ent(TY_ATT,r,h) for r in range(FE,FS) for h in range(32)] + ob + [ent(TY_G3,sg,j,2) for sg in range(RB) for j in range(0,8,2)] + [ent(TY_G3,sg,j,1) for sg in range(RB,64) for j in range(8)]
    return [([[ent(TY_LN1,i) for i in range(128)]],0), (g1,0), ([[ent(TY_LN2,i) for i in range(128)] + ft_early],0), (sp,0), ([tail],0)]
def table_words(PH, opt=None):
    hdr = []; body = []
    base = 4*len(PH)
    for qs_, pf in PH:
        L = max(len(q) for q in qs_)
        hdr += [len(qs_), L, base + len(body), PH_OFF[len(hdr)//4]]
        for q in qs_: body += q + [ent(TY_NOP)]*(L-len(q))
    w = hdr + body
    w += [0]*(-len(w) % 4)
    if opt is not None:
        opt['lists'] = 4*len(w)
        for l in opt['_lists']: w += l
    return w

def gen(opt={}):
    a = Asm()
    a(f'''
    s_cmp_ge_u32 s2, 256
    s_cbranch_scc1 L_end
    s_load_dwordx4 s[32:35], s[0:1], 104
    {'s_memrealtime s[90:91]' if opt.get('prof') else ''}
    s_getreg_b32 s{S_XCC}, hwreg(HW_REG_XCC_ID)
    s_and_b32 s{S_XCC}, s{S_XCC}, 15
    v_lshrrev_b32 v1, 6, v0
    v_mov_b32 v{vNXT}, 0
    v_readfirstlane_b32 s{S_WAVE}, v1
    s_waitcnt lgkmcnt(0)
    {'s_mov_b32 s99, s90' if opt.get('prof') else ''}
    s_mov_b32 s{S_DBG}, s32
    s_mov_b32 s{S_DBG+1}, s33
    s_mov_b32 s{S_DBG+2}, 256
    s_mov_b32 s{S_DBG+3}, 0x20000
    s_mov_b32 s{S_WS}, s34
    s_mov_b32 s{S_WS+1}, s35
    s_mov_b32 s{S_WS+2}, {WS_SIZE}
    s_mov_b32 s{S_WS+3}, 0x20000
    s_cmp_lg_u32 s{S_XCC}, {opt.get('team_xcc',0)}
    s_cbranch_scc1 L_worker
    L_tryrole:
    ''')
    atomic_ret(a, vNXT, D_ROLE)
    a('s_waitcnt vmcnt(0)')
    bcast_ticket(a, vNXT, S_HEAD)
    a(f'''
    s_cmp_lt_u32 s{S_HEAD}, 32
    s_cbranch_scc1 L_chain
    s_branch L_worker_noq
    ''')
    a('L_worker:')
    if opt.get('warm',0):
        a(f'''s_lshr_b32 s31, s2, 6
              s_lshl_b32 s31, s31, 3
              s_add_u32 s31, s31, 16
              s_load_dwordx2 s[32:33], s[0:1], s31
              s_and_b32 s34, s2, 63
              s_lshl_b32 s34, s34, 16
              v_lshlrev_b32 v21, 7, v0
              s_waitcnt lgkmcnt(0)
              s_mov_b32 s{S_A}, s32
              s_mov_b32 s{S_A+1}, s33
              s_mov_b32 s{S_A+2}, 0x400000
              s_mov_b32 s{S_A+3}, 0x20000
              s_add_u32 s35, s34, 32768
              buffer_load_dword v22, v21, {SA}, s34 offen
              buffer_load_dword v23, v21, {SA}, s35 offen''')
    a(f's_mov_b32 s{sFIRST}, 1\n s_branch L_winit')
    a('L_worker_noq:')
    a(f's_mov_b32 s{sFIRST}, 0')
    a('L_winit:')
    for s in (S_A,S_B,S_C,S_D): srd_ws(a, s)
    gemm_setup_consts(a)
    opt = dict(opt)
    PH = build_tables(opt)
    words = table_words(PH, opt)
    a(f'''s_mov_b32 s{sCNT}, 0
          s_getpc_b64 s[{sTB}:{sTB+1}]
          L_pc:
          s_add_u32 s{sTB}, s{sTB}, task_table-L_pc
          s_addc_u32 s{sTB+1}, s{sTB+1}, 0
          s_add_u32 s{sHOME}, s{S_XCC}, 6
          s_cmp_ge_u32 s{sHOME}, 7
          s_cselect_b32 s{sT}, 7, 0
          s_sub_u32 s{sHOME}, s{sHOME}, s{sT}
          s_min_u32 s{sHOME}, s{sHOME}, 6
          s_mov_b32 s{sPH}, 1
          s_mov_b32 s{sLNM}, 0
          s_mov_b32 s{sI}, 0
          s_mov_b32 s{sOSTR}, -1
          s_mov_b32 s{sQ}, s{sHOME}''')
    def initwait():
        L = a.label('iw')
        a(f's_cmp_eq_u32 s{sCNT}, 1\n s_cbranch_scc1 {L}\n s_mov_b32 s{sFLG}, {D_INIT}')
        wait_flag(a, DBG, sFLG, 1, sleep=2)
        a(f's_mov_b32 s{sCNT}, 1\n {L}:')
    a('L_claim:')
    a(f'''s_lshl_b32 s{sT}, s{sPH}, 4
          s_load_dwordx4 s[36:39], s[{sTB}:{sTB+1}], s{sT}
          s_cmp_ge_u32 s{sPH}, 2
          s_cbranch_scc1 L_claimw
          s_lshl_b32 s{sT+1}, s{sQ}, 2
          s_waitcnt lgkmcnt(0)
          s_add_u32 s{sFLG}, s{sT+1}, s39''')
    atomic_ret(a, vNXT, 0, 1, DBG, f's{sFLG}')
    a(f'''s_branch L_claimx
          L_claimw:
          s_lshl_b32 s{sT+1}, s{sQ}, 7
          s_waitcnt lgkmcnt(0)
          s_add_u32 s{sFLG}, s{sT+1}, s39''')
    atomic_ret(a, vNXT, 0, 1, W, f's{sFLG}')
    a('L_claimx:\n s_waitcnt vmcnt(0)')
    bcast_ticket(a, vNXT, sTASK)
    a(f'''s_cmp_lt_u32 s{sTASK}, s37
          s_cbranch_scc1 L_got
          s_cmp_eq_u32 s{sPH}, 0
          s_cbranch_scc1 L_lndone
          s_cmp_eq_u32 s{sI}, 0
          s_cbranch_scc1 L_toln''')
    initwait()
    a(f'''s_cmp_eq_u32 s36, 1
          s_cbranch_scc1 L_nextph
          s_lshl_b32 s{sT}, s{sPH}, 7
          s_add_u32 s{sT}, s{sT}, {WS_FLAGS+F_DONE+DN_EX*128}
          v_lshlrev_b32 v21, 2, v{vLN}
          v_and_b32 v21, 31, v21
          buffer_load_dword v22, v21, {W}, s{sT} offen sc1
          s_waitcnt vmcnt(0)
          v_cmp_eq_u32 vcc, 0, v22
          s_lshl_b32 s{sT}, 1, s36
          s_sub_u32 s{sT}, s{sT}, 1
          s_lshl_b32 s{sT+1}, 1, s{sQ}
          s_or_b32 s{sLNM}, s{sLNM}, s{sT+1}
          s_andn2_b32 s{sT}, s{sT}, s{sLNM}
          s_and_b32 s{sT}, s{sT}, vcc_lo
          v_mov_b32 v24, s{sT}''')
    bcast_ticket(a, 24, sT+1)
    a(f'''s_cmp_eq_u32 s{sT+1}, 0
          s_cbranch_scc1 L_nextph
          s_lshr_b32 s{sT}, s{sT+1}, s{sQ}
          s_lshl_b32 s{sT}, s{sT}, s{sQ}
          s_cmp_lg_u32 s{sT}, 0
          s_cselect_b32 s{sT}, s{sT}, s{sT+1}
          s_ff1_i32_b32 s{sQ}, s{sT}
          s_branch L_claim
          L_nextph:
          s_mov_b32 s{sLNM}, 0
          s_add_u32 s{sPH}, s{sPH}, 1
          s_cmp_ge_u32 s{sPH}, {len(PH)}
          s_cbranch_scc1 L_wdone
          s_bitcmp1_b32 s{sPH}, 0
          s_cselect_b32 s{sQ}, s{sHOME}, 0
          s_cmp_lg_u32 s{sPH}, 2
          s_cbranch_scc1 L_claim
          s_cmp_eq_u32 s{sFIRST}, 1
          s_cbranch_scc1 L_chk
          s_branch L_claim
          L_got:
          s_add_u32 s{sT}, s{sTASK}, 1
          s_cmp_lg_u32 s{sT}, s37
          s_cbranch_scc1 L_got2
          s_cmp_eq_u32 s36, 1
          s_cbranch_scc1 L_got2''')
    initwait()
    a(f'''s_lshl_b32 s{sT}, s{sPH}, 7
          s_lshl_b32 s{sT+1}, s{sQ}, 2
          s_add_u32 s{sT}, s{sT}, s{sT+1}
          s_add_u32 s{sT}, s{sT}, {WS_FLAGS+F_DONE+DN_EX*128}
          v_mov_b32 v21, 1
          s_mov_b64 exec, 1
          buffer_store_dword v21, v{vZ}, {W}, s{sT} offen sc1
          s_mov_b64 exec, -1
          L_got2:
          s_mul_i32 s{sT}, s{sQ}, s37
          s_add_u32 s{sT}, s{sT}, s38
          s_add_u32 s{sTASK}, s{sTASK}, s{sT}
          L_got3:
          s_lshl_b32 s{sT}, s{sTASK}, 2
          s_load_dword s{sIDX}, s[{sTB}:{sTB+1}], s{sT}
          ''')
    a('L_nopf:')
    if opt.get('prof'): a('s_memrealtime s[76:77]\n s_memrealtime s[78:79]')
    a(f'''s_waitcnt lgkmcnt(0)
          s_and_b32 s{sEPI}, s{sIDX}, 15          ; type
          s_bfe_u32 s{sBLK}, s{sIDX}, 0x80004
          s_bfe_u32 s{sCT}, s{sIDX}, 0x8000c
          s_bfe_u32 s{sNT}, s{sIDX}, 0x40014
          s_mov_b32 s{sDA}, 0
          s_mov_b32 s{sDB}, 256
          s_cmp_eq_u32 s{sI}, 1
          s_cbranch_scc1 L_disp
          s_cmp_lg_u32 s{sPH}, 1
          s_cbranch_scc1 L_disp
          s_and_b32 s{sT}, s{sIDX}, 0xfff
          s_cmp_eq_u32 s{sT}, {TY_G1}
          s_cbranch_scc1 L_disp
          s_mov_b32 s{sOSTR}, s{sTASK}
          L_toln:
          s_mov_b32 s{sNST}, s{sQ}
          s_mov_b32 s{sPH}, 0
          s_mov_b32 s{sQ}, 0
          s_branch L_claim
          L_lndone:
          s_mov_b32 s{sI}, 1
          s_mov_b32 s{sPH}, 1
          s_mov_b32 s{sQ}, s{sNST}
          s_cmp_eq_u32 s{sOSTR}, -1
          s_cbranch_scc1 L_claim
          s_mov_b32 s{sTASK}, s{sOSTR}
          s_branch L_got3
          L_disp:
          s_cmp_eq_u32 s{sEPI}, {TY_NOP}
          s_cbranch_scc1 L_done
          s_cmp_eq_u32 s{sEPI}, {TY_LN1}
          s_cbranch_scc1 L_ln1''')
    def lnwait():
        L = a.label('lw')
        a(f's_cmp_eq_u32 s{sCNT}, 1\n s_cbranch_scc1 {L}\n s_lshl_b32 s{sFLG}, s{sBLK}, 2\n s_add_u32 s{sFLG}, s{sFLG}, {D_LNF}')
        wait_flag(a, DBG, sFLG, 1, sleep=2)
        a(f'{L}:')
    opt['initwait'] = initwait; opt['lnwait'] = lnwait
    a(f's_cmp_eq_u32 s{sEPI}, {TY_G1}\n s_cbranch_scc1 L_g1')
    initwait()
    for ty, L in ((TY_LN2,'L_ln2'),(TY_SP,'L_sp'),(TY_OB,'L_ob'),(TY_ATT,'L_att')):
        a(f's_cmp_eq_u32 s{sEPI}, {ty}\n s_cbranch_scc1 {L}')
    a('s_branch L_g3')
    def wait_ln():
        pass
    def a_xn():
        srd_ws(a, S_A)
        a(f's_lshl_b32 s{sAO}, s{sBLK}, 17\n s_add_u32 s{sAO}, s{sAO}, {WS_XN}\n s_mov_b32 s{sLDA}, 1024\n s_mov_b32 s{sNST}, 8')
    a('L_ln1:')
    a(f'''s_cmp_lg_u32 s{S_WAVE}, 0
          s_cbranch_scc1 L_ln1b
          v_mov_b32 v24, 0
          v_mov_b32 v25, 0
          v_mov_b32 v26, 0
          v_mov_b32 v27, 0
          v_lshlrev_b32 v21, 4, v{vLN}
          v_lshlrev_b32 v22, 13, v{vLN}
          s_mul_i32 s{sT}, s{sBLK}, {F_SIZE//128}
          s_add_u32 s{sT}, s{sT}, {WS_FLAGS}
          s_lshl_b32 s{sT+1}, s{sBLK}, 17
          s_add_u32 s{sT+1}, s{sT+1}, {WS_KM + 6144}
          s_mov_b64 exec, 0x1fffff
          buffer_store_dwordx4 v[24:27], v21, {W}, s{sT} offen sc1
          s_mov_b64 exec, 0xffff
          buffer_store_dword v24, v22, {W}, s{sT+1} offen sc1
          s_mov_b64 exec, -1
          L_ln1b:''')
    srd(a, S_A, 0, 2*MB)
    a(f's_lshl_b32 s{sAO}, s{sBLK}, 14\n s_add_u32 s{sOUT}, s{sAO}, {WS_XN}')
    ln_task(a, 512, SA, '', 'a')
    L = a.label('ls')
    a(f'''s_waitcnt vmcnt(0)
          s_barrier
          s_cmp_lg_u32 s{S_WAVE}, 0
          s_cbranch_scc1 {L}
          s_lshr_b32 s{sT}, s{sBLK}, 4
          s_lshl_b32 s{sT}, s{sT}, 2
          s_add_u32 s{sT+1}, s{sT}, {D_LNC}
          s_add_u32 s{sT+2}, s{sT}, {D_LNF}
          v_mov_b32 v21, 1
          v_mov_b32 v22, {D_INITC}
          v_mov_b32 v23, {D_INIT}
          v_mov_b32 v24, 127
          v_mov_b32 v25, 1
          v_writelane_b32 v22, s{sT+1}, 1
          v_writelane_b32 v23, s{sT+2}, 1
          v_writelane_b32 v24, 15, 1
          s_mov_b64 exec, 3
          buffer_atomic_add v21, v22, {DBG}, 0 offen sc0
          s_waitcnt vmcnt(0)
          v_cmp_eq_u32 vcc, v24, v21
          s_and_b64 exec, exec, vcc
          s_cbranch_execz {L}x
          buffer_store_dword v25, v23, {DBG}, 0 offen sc1
          {L}x:
          s_mov_b64 exec, -1
          {L}:''')
    a('s_branch L_done')
    a('L_ln2:')
    srd(a, S_A, 72, 8*MB)
    a(f'''s_lshl_b32 s{sT+2}, s{sBLK}, 16
          s_add_u32 s{sT+3}, s{sT+2}, 32768
          v_lshlrev_b32 v252, 7, v0
          buffer_load_dword v250, v252, {SA}, s{sT+2} offen
          buffer_load_dword v251, v252, {SA}, s{sT+3} offen''')
    a(f'''s_mov_b32 s{sIDX}, s{sBLK}
          s_lshr_b32 s{sFLG}, s{sIDX}, 3
          s_lshl_b32 s{sFLG}, s{sFLG}, 7
          s_add_u32 s{sFLG}, s{sFLG}, {WS_FLAGS+F_DONE+DN_Z2*128}''')
    wait_flag(a, W, sFLG, 1)
    a(f'''s_mul_i32 s{sAO}, s{sIDX}, {16*1792}
          s_add_u32 s{sOUT}, s{sAO}, {WS_Z2N}
          s_add_u32 s{sAO}, s{sAO}, {WS_Z2}''')
    ln_task(a, 896, W, 'sc1', 'b')
    a(f's_mov_b32 s{sFLG}, {WS_FLAGS+F_Z2N}\n s_mov_b32 s{sAUX}, {WS_FLAGS+F_DONE+DN_Z2N*128}')
    signal2(a, W, sFLG, 128, sAUX)
    a('s_branch L_done')
    a('L_g1:')
    g1a.g1_task(a, dict(K=TY_K,V=TY_V,Q=TY_Q,WIN=TY_WIN,NOP=TY_NOP), opt)
    def next_tile(kind, Lt):
        a(f'''s_mov_b32 s{sPEND}, s{sSPL}
              s_mov_b32 s{sPK}, {kind}
              s_branch L_drain''')
    a('L_sp:')
    a(f'''s_mov_b32 s{sFLG}, {WS_FLAGS+F_DONE+DN_Z2N*128}''')
    wait_flag(a, W, sFLG, 1, bar=False)
    a(f's_lshl_b32 s{sFLG}, s{sBLK}, 6\n s_add_u32 s{sSPL}, s{sFLG}, {WS_FLAGS+F_GZ}\n s_lshl_b32 s{sFLG}, s{sBLK}, 7\n s_add_u32 s{sWC}, s{sFLG}, {WS_FLAGS+F_DONE+DN_GZ*128}\n s_add_u32 s{sFLG}, s{sFLG}, {WS_FLAGS+F_DONE+DN_Z1*128}')
    wait_flag(a, W, sFLG, 1)
    srd(a, S_A, 72, 8*MB); srd_ws(a, S_B); srd(a, S_C, 80, 4096)
    a(f'''s_lshl_b32 s{sAO}, s{sBLK}, 19
          s_mov_b32 s{sLDA}, 4096
          s_lshl_b32 s{sT}, s{sCT}, 8
          s_add_u32 s{sBO}, s{sT}, {WS_Z2N}
          s_mov_b32 s{sLDB}, 1792
          s_mov_b32 s{sNST}, 32
          s_mul_i32 s{sOUT}, s{sBLK}, {128*1792}
          s_add_u32 s{sOUT}, s{sOUT}, s{sT}
          s_add_u32 s{sAUX}, s{sOUT}, {WS_Z1}
          s_add_u32 s{sOUT}, s{sOUT}, {WS_GZ}
          s_lshl_b32 s{sAUX2}, s{sBLK}, 8
          s_mov_b32 s{sOSTR}, 1792
          s_mov_b32 s{sEPI}, 3
          s_branch L_gs''')
    a('L_ob:')
    a(f'''s_lshl_b32 s{sIDX}, s{sBLK}, 2
          s_add_u32 s{sIDX}, s{sIDX}, s{sCT}
          s_lshl_b32 s{sFLG}, s{sBLK}, 7
          s_add_u32 s{sFLG}, s{sFLG}, {WS_FLAGS+F_DONE+DN_GZ*128}''')
    wait_flag(a, W, sFLG, 1)
    srd_ws(a, S_A); srd(a, S_B, 88, 896*1024)
    a(f'''s_mul_i32 s{sAO}, s{sBLK}, {128*1792}
          s_add_u32 s{sAO}, s{sAO}, {WS_GZ}
          s_mov_b32 s{sLDA}, 1792
          s_lshl_b32 s{sBO}, s{sCT}, 8
          s_mov_b32 s{sLDB}, 1024
          s_mov_b32 s{sNST}, 14
          s_lshl_b32 s{sOUT}, s{sBLK}, 17
          s_add_u32 s{sOUT}, s{sOUT}, s{sBO}
          s_add_u32 s{sOUT}, s{sOUT}, {WS_OB}
          s_mov_b32 s{sOSTR}, 1024
          s_lshl_b32 s{sSPL}, s{sIDX}, 4
          s_add_u32 s{sSPL}, s{sSPL}, {WS_FLAGS+F_OB}
          s_mov_b32 s{sEPI}, 4
          s_branch L_gs''')
    a('L_att:')
    FS = opt.get('fs', 4)
    srd(a, S_B, 40, 4*MB)
    ft_prologue(a)
    a(f'''s_lshl_b32 s{sSPL}, s{sCT}, 5
          s_add_u32 s{sSPL}, s{sSPL}, {WS_FLAGS+F_FTQ}
          s_mov_b32 s{sAUX2}, 0
          s_lshl_b32 s{sFLG}, s{sCT}, 7
          s_add_u32 s{sFLG}, s{sFLG}, {WS_FLAGS+F_DONE+DN_HD*128}''')
    wait_flag(a, W, sFLG, 1, bar=False)
    TKF = FT_A + 8192
    a('L_ftc:')
    atomic_ret(a, vNXT, 0, 1, W, f's{sSPL}')
    a('L_ftl:')
    a('s_waitcnt vmcnt(0)')
    bcast_ticket(a, vNXT, sBLK, TKF)
    a(f's_cmp_ge_u32 s{sBLK}, 64\n s_cbranch_scc1 L_done')
    ft_loads_x(a)
    a(f's_add_u32 s{sT}, s{sBLK}, 6\n s_cmp_gt_u32 s{sAUX2}, s{sT}\n s_cselect_b32 s{sNT}, 1, 0\n s_cbranch_scc0 L_ftnp')
    atomic_ret(a, vNXT, 0, 1, W, f's{sSPL}')
    a('L_ftnp:')
    a(f'''s_cmp_gt_u32 s{sAUX2}, s{sBLK}
          s_cbranch_scc1 L_ftgo
          s_lshl_b32 s{sFLG}, s{sCT}, 6
          s_add_u32 s{sFLG}, s{sFLG}, {WS_FLAGS+F_CH}
          s_add_u32 s{sAUX}, s{sBLK}, 1''')
    wait_flag(a, W, sFLG, f's{sAUX}', sleep=2, bar=False)
    a('v_mov_b32 v24, v21')
    bcast_ticket(a, 24, sAUX2, TKF)
    a('L_ftgo:')
    if opt.get('prof'): a('s_memrealtime s[78:79]')
    ft_segment(a)
    if opt.get('prof'): a('s_memrealtime s[84:85]')
    ft_gemm(a)
    if opt.get('prof'): a('s_memrealtime s[86:87]')
    a(f's_lshl_b32 s{sFLG}, s{sBLK}, 5\n s_add_u32 s{sFLG}, s{sFLG}, {WS_FLAGS+F_FT}\n s_lshl_b32 s{sAUX}, s{sBLK}, 7\n s_add_u32 s{sAUX}, s{sAUX}, {WS_FLAGS+F_DONE+DN_FT*128}')
    signal2(a, W, sFLG, 32, sAUX)
    if opt.get('prof'):
        a(f'''s_memrealtime s[80:81]
              s_waitcnt lgkmcnt(0)
              v_mov_b32 v32, s78
              v_mov_b32 v33, s84
              v_mov_b32 v34, s86
              v_mov_b32 v35, s80
              s_lshr_b32 s{sT}, s{sAO}, 9
              s_add_u32 s{sT}, s{sT}, {241*MB}
              s_mov_b64 exec, 1
              buffer_store_dwordx4 v[32:35], v{vZ}, {W}, s{sT} offen
              s_mov_b64 exec, -1''')
    a(f's_cmp_eq_u32 s{sNT}, 1\n s_cbranch_scc1 L_ftl\n s_branch L_ftc')
    a('L_g3:')
    srd(a, S_C, 0, 2*MB); srd(a, S_D, 96, 2*MB)
    a(f'''s_and_b32 s{sFLG}, s{sBLK}, 0xfc
          s_lshr_b32 s{sT}, s{sCT}, 1
          s_add_u32 s{sFLG}, s{sFLG}, s{sT}
          s_lshl_b32 s{sFLG}, s{sFLG}, 4
          s_add_u32 s{sFLG}, s{sFLG}, {WS_FLAGS+F_OB}''')
    wait_flag(a, W, sFLG, 1)
    red_pre(a)
    a(f's_lshl_b32 s{sFLG}, s{sBLK}, 7\n s_add_u32 s{sFLG}, s{sFLG}, {WS_FLAGS+F_DONE+DN_FT*128}')
    wait_flag(a, W, sFLG, 1, sleep=2)
    if opt.get('prof'): a('s_memrealtime s[78:79]')
    a('L_redl:')
    red_task(a)
    a(f's_sub_u32 s{sNT}, s{sNT}, 1\n s_cmp_eq_u32 s{sNT}, 0\n s_cbranch_scc1 L_done\n s_add_u32 s{sCT}, s{sCT}, 1')
    red_pre(a)
    a('s_branch L_redl')
    a('L_gs:')
    if opt.get('prof'): a('s_memrealtime s[78:79]')
    gemm_task_addr(a)
    gemm_start(a)
    a('L_st:')
    gemm_tile(a, True, 's')
    epi_row(a, False)
    a(f's_cmp_eq_u32 s{sEPI}, 4\n s_cbranch_scc0 L_gate')
    rows_phase(a, 'plain')
    a('L_nt2:')
    next_tile(2, 'L_st')
    a('L_gate:')
    rows_phase(a, 'gate')
    signal2(a, W, sSPL, 7, sWC)
    a('s_branch L_done')
    a('L_drain:')
    a('s_waitcnt vmcnt(0)\n s_barrier')
    pend_signal(a)
    a('s_branch L_done')
    a('L_done:')
    if opt.get('prof'):
        a(f'''s_memrealtime s[80:81]
              s_waitcnt lgkmcnt(0)
              v_mov_b32 v24, s76
              v_mov_b32 v25, s78
              v_mov_b32 v26, s80
              v_mov_b32 v27, s99
              s_lshl_b32 s{sT}, s{sTASK}, 4
              s_add_u32 s{sT}, s{sT}, {240*MB}
              s_mov_b64 exec, 1
              buffer_store_dwordx4 v[24:27], v{vZ}, {W}, s{sT} offen
              s_mov_b64 exec, -1''')
    a('s_branch L_claim\n L_chk:')
    a(f'''s_mov_b32 s{sFIRST}, 0
          buffer_load_dword v21, v{vZ}, {DBG}, 0 offen offset:{D_TEAMF} sc1
          s_waitcnt vmcnt(0)''')
    a(f'v_mov_b32 v24, v21')
    bcast_ticket(a, 24, sT+8)
    a(f's_cmp_eq_u32 s{sT+8}, 0\n s_cbranch_scc1 L_tryrole')
    a(f's_cmp_lt_u32 s{sPH}, {len(PH)}\n s_cbranch_scc1 L_claim\n s_branch L_end')
    a('L_wdone:')
    if opt.get('prof'):
        a(f'''s_waitcnt vmcnt(0)
              s_memrealtime s[80:81]
              s_waitcnt lgkmcnt(0)
              v_mov_b32 v24, s80
              s_lshl_b32 s{sT}, s2, 2
              s_add_u32 s{sT}, s{sT}, {243*MB}
              s_mov_b64 exec, 1
              buffer_store_dword v24, v{vZ}, {W}, s{sT} offen
              s_mov_b64 exec, -1''')
    a('s_branch L_end')

    a('L_chain:')
    copt = dict(opt)
    Wc = W
    def kvwait(a, first):
        if first:
            L = a.label('kw')
            a(f'''s_lshl_b32 s{C.S_T0}, s{S_HEAD}, 13
                  s_add_u32 s{C.S_T0}, s{C.S_T0}, {WS_KM+6144}
                  s_mov_b32 s{C.S_T0+1}, {D_INIT}
                  s_mov_b32 s{C.S_T0+3}, 0
                  {L}:
                  s_add_u32 s{C.S_T0+3}, s{C.S_T0+3}, 1
                  s_cmp_gt_u32 s{C.S_T0+3}, 0x40000
                  s_cbranch_scc1 L_end
                  buffer_load_dword v16, v{C.PMZ+1}, {DBG}, s{C.S_T0+1} offen sc1
                  s_waitcnt vmcnt(0)
                  buffer_load_dword v17, v{C.PMZ+1}, {Wc}, s{C.S_T0} offen sc1
                  s_waitcnt vmcnt(0)
                  v_lshlrev_b32 v16, 1, v16
                  v_min_u32 v16, v16, v17
                  s_nop 0
                  v_readfirstlane_b32 s{C.S_T0+2}, v16
                  s_nop 3
                  s_cmp_lg_u32 s{C.S_T0+2}, 2
                  s_cbranch_scc1 {L}
                  v_mov_b32 v{C.vT+1}, 2''')
        else:
            L = a.label('kw'); Lx = a.label('kwx')
            a(f'''v_readlane_b32 s{C.S_T0}, v{C.vT+1}, 32
                  s_cmp_ge_u32 s{C.S_STEP}, 63
                  s_cselect_b32 s{C.S_T0}, 2, s{C.S_T0}
                  s_cmp_lg_u32 s{C.S_T0}, 2
                  s_cbranch_scc1 {L}e
                  {Lx}:''')
            def slow(a):
                a(f'''{L}e:
                  s_sub_u32 s{C.S_T0+1}, s{C.S_KXO}, {32*8192}
                  s_mov_b32 exec_lo, 0
                  {L}:
                  s_add_u32 s{C.S_TO}, s{C.S_TO}, 16
                  s_cmp_gt_u32 s{C.S_TO}, 0x400000
                  s_cbranch_scc1 L_end
                  buffer_load_dword v{C.vT+1}, v{C.vTch}, {Wc}, s{C.S_T0+1} offen sc1
                  s_waitcnt vmcnt(0)
                  v_readlane_b32 s{C.S_T0}, v{C.vT+1}, 32
                  s_sleep 2
                  s_cmp_lg_u32 s{C.S_T0}, 2
                  s_cbranch_scc1 {L}
                  s_mov_b64 exec, -1
                  s_branch {Lx}''')
            copt.setdefault('_ool', []).append(slow)
    def kmflag(a, last):
        if last: a(f's_mov_b32 s{C.S_T0}, 64')
        else: a(f's_max_u32 s{C.S_T0}, s{C.S_STEP}, 1\n s_sub_u32 s{C.S_T0}, s{C.S_T0}, 1')
        a(f'''v_mov_b32 v{C.vT}, s{C.S_T0}
              s_mov_b64 exec, 1
              buffer_store_dword v{C.vT}, v{C.PMZ+1}, {Wc}, s98 offen sc1
              s_mov_b64 exec, -1''')
    copt['kvcnt'] = 3
    copt['kvwait'] = kvwait; copt['kmflag'] = kmflag
    def hook(a, n):
        if n == 4:
            a(f'''s_cmp_eq_u32 s{S_XCC}, {opt.get('team_xcc',0)}
                  s_cselect_b32 s59, 1, 0x10001
                  s_cmp_lg_u32 s{S_WAVE}, 0
                  s_cbranch_scc1 L_h4
                  v_mov_b32 v0, s59
                  v_mov_b32 v{C.vIdx}, {D_TEAM}
                  s_mov_b64 exec, 1
                  buffer_atomic_add v0, v{C.vIdx}, {DBG}, 0 offen sc0
                  s_mov_b64 exec, -1
                  L_h4:''')
        if n == 6:
            a(f'''s_cmp_lg_u32 s{S_WAVE}, 0
                  s_cbranch_scc1 L_h6
                  s_mov_b64 exec, 1
                  v_add_u32 v0, s59, v0
                  v_and_b32 v{C.vIdx}, 0xffff, v0
                  v_cmp_eq_u32 vcc, 32, v{C.vIdx}
                  v_mov_b32 v{C.vIdx}, {D_TEAMF}
                  s_and_b64 exec, exec, vcc
                  s_cbranch_execz L_h6x
                  buffer_store_dword v0, v{C.vIdx}, {DBG}, 0 offen sc1
                  L_h6x:
                  s_mov_b64 exec, -1
                  L_h6:''')
    copt['hook'] = hook
    C.chain_setup(a, copt)
    a(f'''
    v_bfe_u32 v16, v{C.vLANE}, 1, 1
    v_mov_b32 v{C.vIdx}, 0x4444
    v_mov_b32 v17, 0xeeee
    v_cmp_eq_u32 vcc, 1, v16
    v_mov_b32 v18, {D_TEAMF}
    s_mov_b32 s{C.S_T0+3}, 0
    v_cndmask_b32 v{C.vIdx}, v{C.vIdx}, v17, vcc
    L_cspin:
    s_add_u32 s{C.S_T0+3}, s{C.S_T0+3}, 1
    s_cmp_gt_u32 s{C.S_T0+3}, 0x100000
    s_cbranch_scc1 L_end
    buffer_load_dword v16, v18, {DBG}, 0 offen sc1
    s_waitcnt vmcnt(0)
    v_readfirstlane_b32 s{C.S_T0}, v16
    s_nop 3
    s_cmp_eq_u32 s{C.S_T0}, 0
    s_cbranch_scc1 L_cspin
    s_mov_b32 s59, s{C.S_T0}
    ''')
    C.chain_masks(a)
    a(f'''s_lshl_b32 s98, s{S_HEAD}, 6
          s_add_u32 s{C.S_T0}, s98, {WS_FLAGS+F_CH}
          s_lshl_b32 s98, s98, 3
          s_lshl_b32 s{C.S_T0+1}, s{S_WAVE}, 7
          s_add_u32 s98, s98, s{C.S_T0+1}
          s_add_u32 s98, s98, {WS_FLAGS + 131072}
          s_cmp_eq_u32 s{S_WAVE}, 0
          s_cselect_b32 s98, s{C.S_T0}, s98''')
    a(f'''buffer_load_dwordx4 v[16:19], v{C.vOr}, {W}, s{C.S_INL} offen sc1
          buffer_load_dwordx4 v[20:23], v{C.vOr}, {W}, s{C.S_INL} offen offset:1024 sc1''')
    for s in range(1, C.RING):
        a(f'''s_mov_b32 s{C.S_T0}, {WS_MEM + s*8192}
              buffer_load_dwordx4 v[16:19], v{C.vMld}, {W}, s{C.S_T0} offen sc1
              buffer_load_dwordx4 v[20:23], v{C.vMld}, {W}, s{C.S_T0} offen offset:1024 sc1''')
    a(f's_waitcnt vmcnt(0)\n s_cmp_gt_u32 s59, 0xffff\n s_cbranch_scc1 L_slow')
    C.chain_loop(a, copt, '', 'f')
    a('s_branch L_end\n L_slow:')
    C.chain_loop(a, copt, 'sc1', 's')
    a('L_end:\n s_endpgm')
    a('.p2align 4\n.type task_table,@object\ntask_table:')
    for i in range(0, len(words), 8): a('.long ' + ', '.join(hex(x) for x in words[i:i+8]))
    a(f'.size task_table, {4*len(words)}')
    head = HDR + f'''; @launch grid=(256,1,1) block=(256,1,1) lds=163840
.amdgcn_target "amdgcn-amd-amdhsa--gfx950"
.text
.globl {NAME}
.p2align 8
.type {NAME},@function
{NAME}:
'''
    tail = f'''.section .rodata,"a"
.p2align 6
.amdhsa_kernel {NAME}
  .amdhsa_next_free_vgpr 512
  .amdhsa_next_free_sgpr 102
  .amdhsa_accum_offset 256
  .amdhsa_group_segment_fixed_size 0
  .amdhsa_kernarg_size 120
  .amdhsa_user_sgpr_count 2
  .amdhsa_user_sgpr_kernarg_segment_ptr 1
  .amdhsa_system_sgpr_workgroup_id_x 1
.end_amdhsa_kernel
'''
    return head + a.text() + tail

if __name__ == '__main__':
    out = sys.argv[1] if len(sys.argv) > 1 else 'parallel_sum__memory_aug_recurrent_mem_tr__mixer_gmlp__prompt.s'
    open(out,'w').write(gen({}))
```

```python
from common import *
from chain import S_WS, S_DBG, S_A, S_B, S_C, S_D, S_XCC, S_WAVE, S_HEAD

W = f's[{S_WS}:{S_WS+3}]'
DBG = f's[{S_DBG}:{S_DBG+3}]'
SA = f's[{S_A}:{S_A+3}]'; SBd = f's[{S_B}:{S_B+3}]'; SC = f's[{S_C}:{S_C+3}]'; SD = f's[{S_D}:{S_D+3}]'
sT = 31
sTASK=40; sIDX=41; sBLK=42; sCT=43; sLDA=44; sLDB=45; sAO=46; sBO=47; sNST=48; sEPI=49
sSTG=50; sDST=51; sM0=52; sI=53; sAK=54; sBK=55; sOUT=56; sOSTR=57; sFLG=58; sWM=59; sWN=60; sSPL=61; sX=62; sY=63
sRET=64
sEX=66
sAUX=68; sAUX2=69; sFIRST=70; sA8=71; sB4=72; sC0=73; sC1=74; sCNT=75
sNT=82; sLS=83; sLT=84; sA0=85; sB0=86; sWC=87; sPEND=88; sDOUT=89; sDFLG=90; sLNM=91; sJ=92; sPK=93; sDA=94; sDB=95; sPH=96; sQ=97; sHOME=98; sTB=100
vTID=0; vLN=1; vAe=2; vAo=3; vBs=4; vAr=5; vBr=9; vAc=11; vBc=15; vNXT=17; vE1=18; vE2=19; vZ=20; vT0=21
FR = 32
TK_LDS = 0
EP = 131072
STG = 32768

T_LN1=0; T_KV=128; T_WIN=T_KV+256; T_Q=T_WIN+64; T_LN2=T_Q+128; T_SP=T_LN2+128; T_OB=T_SP+112; T_TAIL=T_OB+64; T_END=T_TAIL+16*48

def srd(a, s, karg, nbytes):
    a(f'''s_load_dwordx2 s[{sT+1}:{sT+2}], s[0:1], {karg}
          s_waitcnt lgkmcnt(0)
          s_mov_b32 s{s}, s{sT+1}
          s_mov_b32 s{s+1}, s{sT+2}
          s_mov_b32 s{s+2}, {nbytes}
          s_mov_b32 s{s+3}, 0x20000''')
def srd_ws(a, s):
    a(f'''s_mov_b32 s{s}, s{S_WS}
          s_mov_b32 s{s+1}, s{S_WS+1}
          s_mov_b32 s{s+2}, {WS_SIZE}
          s_mov_b32 s{s+3}, 0x20000''')

def wait_flag(a, srd_, off_sgpr, target, sleep=8, bar=True):
    L = a.label('wf'); Lx = a.label('wfx')
    a(f'''s_cmp_lg_u32 s{S_WAVE}, 0
          s_cbranch_scc1 {Lx}
          s_mov_b32 s{sT+1}, 0
          s_mov_b64 exec, 1
          {L}:
          buffer_load_dword v21, v{vZ}, {srd_}, s{off_sgpr} offen sc1
          s_add_u32 s{sT+1}, s{sT+1}, 1
          s_waitcnt vmcnt(0)
          v_readfirstlane_b32 s{sT}, v21
          s_cmp_gt_u32 s{sT+1}, 0x40000
          s_cbranch_scc1 {Lx}
          s_cmp_ge_u32 s{sT}, {target}
          s_cbranch_scc1 {Lx}
          s_sleep {sleep}
          s_branch {L}
          {Lx}:
          s_mov_b64 exec, -1''')
    if bar: a('s_barrier')

def signal2(a, srd_, cnt_sgpr, n, flag_sgpr):
    L = a.label('sg')
    a(f'''s_waitcnt vmcnt(0)
          s_barrier
          s_cmp_lg_u32 s{S_WAVE}, 0
          s_cbranch_scc1 {L}
          v_mov_b32 v21, 1
          s_mov_b64 exec, 1
          buffer_atomic_add v21, v{vZ}, {srd_}, s{cnt_sgpr} offen sc0
          s_waitcnt vmcnt(0)
          v_cmp_eq_u32 vcc, {n-1}, v21
          v_mov_b32 v21, 1
          s_and_b64 exec, exec, vcc
          s_cbranch_execz {L}x
          buffer_store_dword v21, v{vZ}, {srd_}, s{flag_sgpr} offen sc1
          {L}x:
          s_mov_b64 exec, -1
          {L}:''')

def signal(a, srd_, off_sgpr, atomic):
    L = a.label('sg')
    a(f'''s_waitcnt vmcnt(0)
          s_barrier
          s_cmp_lg_u32 s{S_WAVE}, 0
          s_cbranch_scc1 {L}
          v_mov_b32 v21, 1
          s_mov_b64 exec, 1
          {'buffer_atomic_add v21' if atomic else 'buffer_store_dword v21'}, v{vZ}, {srd_}, s{off_sgpr} offen {'' if atomic else 'sc1'}
          s_mov_b64 exec, -1
          {L}:''')

def gemm_setup_consts(a):
    a(f'''
    v_and_b32 v{vLN}, 63, v{vTID}
    v_mov_b32 v{vZ}, 0
    s_lshr_b32 s{sWM}, s{S_WAVE}, 1
    s_and_b32 s{sWN}, s{S_WAVE}, 1
    v_and_b32 v21, 31, v{vLN}
    v_lshrrev_b32 v22, 5, v{vLN}
    v_bfe_u32 v23, v{vLN}, 1, 3
    v_xor_b32 v22, v22, v23
    v_lshlrev_b32 v24, 7, v21
    v_lshl_add_u32 v24, v22, 4, v24
    s_lshl_b32 s{sT}, s{sWM}, 13
    v_add_u32 v{vAr}, s{sT}, v24
    v_xor_b32 v{vAr+1}, 32, v{vAr}
    v_xor_b32 v{vAr+2}, 64, v{vAr}
    v_xor_b32 v{vAr+3}, 96, v{vAr}
    v_bfe_u32 v21, v{vLN}, 4, 1          ; nh
    v_lshrrev_b32 v22, 5, v{vLN}         ; kh
    v_bfe_u32 v23, v{vLN}, 2, 2          ; r
    v_and_b32 v24, 1, v{vLN}
    v_bfe_u32 v25, v{vLN}, 1, 1
    v_lshl_add_u32 v25, v24, 1, v25      ; 2*(c&1) + (c>>1)
    v_lshl_add_u32 v25, v21, 2, v25
    v_lshl_add_u32 v26, v22, 3, v23
    v_lshlrev_b32 v26, 8, v26
    v_lshl_add_u32 v26, v25, 3, v26
    s_lshl_b32 s{sT}, s{sWN}, 1
    v_xor_b32 v27, s{sT}, v23
    v_lshl_add_u32 v{vBr}, v27, 6, v26
    v_add_u32 v{vBr}, 16384, v{vBr}
    v_xor_b32 v{vBr+1}, 64, v{vBr}
    ''')

def gemm_task_addr(a):
    a(f'''
    v_lshrrev_b32 v21, 3, v{vLN}
    v_mul_lo_u32 v21, v21, s{sLDA}
    v_and_b32 v22, 7, v{vLN}
    v_lshrrev_b32 v23, 4, v{vLN}
    v_xor_b32 v22, v22, v23
    v_lshl_add_u32 v{vAe}, v22, 4, v21
    v_xor_b32 v{vAo}, 64, v{vAe}
    v_lshrrev_b32 v21, 4, v{vLN}
    v_mul_lo_u32 v22, v21, s{sLDB}
    v_and_b32 v23, 15, v{vLN}
    v_lshlrev_b32 v21, 2, v21
    v_xor_b32 v23, v23, v21
    v_lshl_add_u32 v{vBs}, v23, 4, v22
    s_lshl_b32 s{sA8}, s{sLDA}, 3
    s_lshl_b32 s{sB4}, s{sLDB}, 2
    s_lshl_b32 s{sT}, s{sLDA}, 5
    s_mul_i32 s{sT}, s{sT}, s{S_WAVE}
    s_add_u32 s{sAK}, s{sAO}, s{sT}
    s_lshl_b32 s{sT}, s{sLDB}, 4
    s_mul_i32 s{sT}, s{sT}, s{S_WAVE}
    s_add_u32 s{sBK}, s{sBO}, s{sT}
    s_lshl_b32 s{sDST}, s{S_WAVE}, 12
    s_mov_b32 s{sSTG}, 0
    s_mov_b32 s{sA0}, s{sAK}
    s_mov_b32 s{sB0}, s{sBK}
    s_mov_b32 s{sLS}, s{sNST}
    s_mul_i32 s{sLT}, s{sNST}, s{sNT}
    s_mov_b32 s{sPK}, 0
    ''')

def dma_list():
    out = []
    for i in range(4):
        out.append([f's_add_u32 m0, s{sDST}, {i*1024}',
                    f's_add_u32 s{sX}, s{sX}, s{sA8}' if i else f's_mov_b32 s{sX}, s{sAK}',
                    f'buffer_load_dwordx4 v{vAo if i&1 else vAe}, {SA}, s{sX} offen sc1 lds'])
    for i in range(4):
        out.append([f's_add_u32 m0, s{sDST}, {16384+i*1024}',
                    f's_add_u32 s{sY}, s{sY}, s{sB4}' if i else f's_mov_b32 s{sY}, s{sBK}',
                    f'buffer_load_dwordx4 v{vBs}, {SBd}, s{sY} offen sc1 lds'])
    out[-1] += [f's_add_u32 s{sAK}, s{sAK}, 128',
                f's_lshl_b32 s{sT}, s{sLDB}, 6', f's_add_u32 s{sBK}, s{sBK}, s{sT}',
                f's_add_u32 s{sDST}, s{sDST}, {STG}', f's_and_b32 s{sDST}, s{sDST}, {4*STG-1}',
                f's_sub_u32 s{sLT}, s{sLT}, 1',
                f's_sub_u32 s{sLS}, s{sLS}, 1', f's_cmp_eq_u32 s{sLS}, 0',
                f's_cselect_b32 s{sT}, s{sDB}, 0', f's_cselect_b32 s{sT+1}, s{sDA}, 0', f's_add_u32 s{sB0}, s{sB0}, s{sT}', f's_add_u32 s{sA0}, s{sA0}, s{sT+1}', f's_cmp_eq_u32 s{sLS}, 0',
                f's_cselect_b32 s{sAK}, s{sA0}, s{sAK}', f's_cselect_b32 s{sBK}, s{sB0}, s{sBK}', f's_cselect_b32 s{sLS}, s{sNST}, s{sLS}']
    return out

def frag_reads(ks, buf):
    b = FR + 16*buf
    r = []
    for mt in range(2):
        r.append(f'ds_read_b128 {vr(b+4*mt,4)}, v{vAc+ks} offset:{mt*4096}')
    for nt in range(2):
        for rho in range(2):
            r.append(f'ds_read_b64_tr_b16 {vr(b+8+4*nt+2*rho,2)}, v{vBc+nt} offset:{ks*4096+rho*1024}')
    return r

def stage(a, swapped, dma):
    for i in range(4): a(f'v_add_u32 v{vAc+i}, s{sSTG}, v{vAr+i}')
    for i in range(2): a(f'v_add_u32 v{vBc+i}, s{sSTG}, v{vBr+i}')
    a('\n'.join(frag_reads(0,0)))
    d = dma_list() if dma else []
    a(f's_add_u32 s{sSTG}, s{sSTG}, {STG}\n s_and_b32 s{sSTG}, s{sSTG}, {4*STG-1}')
    if d: a('\n'.join(d.pop(0)))
    for ks in range(4):
        nxt = frag_reads(ks+1, (ks+1)&1) if ks < 3 else []
        a('\n'.join(nxt))
        a(f's_waitcnt lgkmcnt({len(nxt)})')
        b = FR + 16*(ks&1)
        for mt in range(2):
            for nt in range(2):
                acc = ar(16*(2*mt+nt),16)
                A_, B_ = vr(b+4*mt,4), vr(b+8+4*nt,4)
                if swapped: A_, B_ = B_, A_
                a(f'v_mfma_f32_32x32x16_bf16 {acc}, {A_}, {B_}, {acc}')
                if d and (2*mt+nt) in (0,2): a('\n'.join(d.pop(0)))
    assert not d

def pend_signal(a):
    L = a.label('ps')
    a(f'''s_cmp_eq_u32 s{sPK}, 0
          s_cbranch_scc1 {L}
          s_cmp_eq_u32 s{sPK}, 1
          s_cselect_b32 s{sT}, 15, 1
          s_mov_b32 s{sPK}, 0
          s_cmp_lg_u32 s{S_WAVE}, 0
          s_cbranch_scc1 {L}
          v_mov_b32 v21, 1
          v_lshlrev_b32 v22, 18, v{vLN}
          s_mov_b32 exec_lo, s{sT}
          s_mov_b32 exec_hi, 0
          buffer_atomic_add v21, v22, {W}, s{sPEND} offen
          s_mov_b64 exec, -1
          {L}:''')

def gemm_start(a):
    for st in range(3):
        for g in dma_list(): a('\n'.join(g))

def gemm_tile(a, swapped, tag):
    for i in range(64): a(f'v_accvgpr_write_b32 a{i}, 0')
    a(f's_mov_b32 s{sJ}, 0')
    L = f'L_gl_{tag}'; Ln = f'L_gn_{tag}'; Lx = f'L_gx_{tag}'
    a(f'''{L}:
          s_cmp_eq_u32 s{sLT}, 0
          s_cbranch_scc1 {Ln}
          s_cmp_lt_u32 s{sJ}, 3
          s_cselect_b32 s{sT}, s{sPK}, 0
          s_cmp_lg_u32 s{sT}, 0
          s_cbranch_scc1 {L}a
          s_waitcnt vmcnt(16)
          s_barrier''')
    pend_signal(a)
    a(f'''s_branch {L}b
          {L}a:
          s_waitcnt vmcnt(24)
          s_barrier
          {L}b:''')
    stage(a, swapped, True)
    a(f's_add_u32 s{sJ}, s{sJ}, 1\n s_cmp_lt_u32 s{sJ}, s{sNST}\n s_cbranch_scc1 {L}\n s_branch {Lx}')
    a(f'{Ln}:')
    for vm in (16,8,0):
        a(f's_waitcnt vmcnt({vm})\n s_barrier')
        stage(a, swapped, False)
    a(f'{Lx}:\n s_nop 15')

def acc_read(a, dst, src, n):
    for i in range(n): a(f'v_accvgpr_read_b32 v{dst+i}, a{src+i}')

def gelu8(a, x, t):
    for i in range(0,8,2): a(f'v_cvt_pk_bf16_f32 v{t+i}, v{x+i}, v{x+i+1}')
    for i in range(0,8,2):
        a(f'v_lshlrev_b32 v{x+i}, 16, v{t+i}\n v_and_b32 v{x+i+1}, 0xffff0000, v{t+i}')
    for i in range(8): a(f'v_mul_f32 v{t+i}, v{x+i}, v{x+i}')
    for i in range(8): a(f'v_fma_f32 v{t+i}, v{t+i}, s{sC0}, 1.0')
    for i in range(8): a(f'v_mul_f32 v{t+i}, v{t+i}, v{x+i}')
    for i in range(8): a(f'v_mul_f32 v{t+i}, s{sC1}, v{t+i}')
    for i in range(8): a(f'v_exp_f32 v{t+i}, v{t+i}')
    for i in range(8): a(f'v_add_f32 v{t+i}, 1.0, v{t+i}')
    for i in range(8): a(f'v_rcp_f32 v{t+i}, v{t+i}')
    a('s_nop 0')
    for i in range(8): a(f'v_mul_f32 v{x+i}, v{x+i}, v{t+i}')

def epi_kq(a):
    a(f'''
    v_bfe_u32 v21, v{vLN}, 4, 1
    v_lshrrev_b32 v22, 5, v{vLN}
    v_and_b32 v23, 15, v{vLN}
    v_lshlrev_b32 v{vE1}, 9, v21
    v_lshl_add_u32 v{vE1}, v22, 8, v{vE1}
    v_lshl_add_u32 v{vE1}, v23, 4, v{vE1}
    s_lshl_b32 s{sT}, s{sWM}, 14
    s_lshl_b32 s{sT+1}, s{sWN}, 12
    s_add_u32 s{sT}, s{sT}, s{sT+1}
    s_add_u32 s{sT}, s{sT}, {EP}
    v_add_u32 v{vE1}, s{sT}, v{vE1}
    ''')
    for mt in range(2):
        for nt in range(2):
            for ap in range(2):
                x = 64 + 16*((2*nt+ap)&1); o = x+8
                acc_read(a, x, 16*(2*mt+nt)+8*ap, 8)
                for c in range(4): a(f'v_cvt_pk_bf16_f32 v{o+c}, v{x+c}, v{x+4+c}')
                a(f'ds_write_b128 v{vE1}, {vr(o,4)} offset:{mt*8192+nt*2048+ap*1024}')

def epi_v(a):
    a(f'''
    v_lshrrev_b32 v21, 5, v{vLN}          ; hb
    v_bfe_u32 v22, v{vLN}, 3, 1           ; t = a'&1
    v_bfe_u32 v23, v{vLN}, 4, 1           ; a'>>1
    v_and_b32 v24, 7, v{vLN}              ; 4*hb' + c'
    v_lshl_add_u32 v24, v23, 3, v24       ; i
    v_lshl_add_u32 v24, v21, 4, v24       ; + 16*g (g = hb (+2))
    v_lshlrev_b32 v{vE1}, 4, v24
    v_lshl_add_u32 v{vE1}, v22, 10, v{vE1}
    s_lshl_b32 s{sT}, s{sWM}, 14
    s_lshl_b32 s{sT+1}, s{sWN}, 12
    s_add_u32 s{sT}, s{sT}, s{sT+1}
    s_add_u32 s{sT}, s{sT}, {EP}
    v_add_u32 v{vE1}, s{sT}, v{vE1}
    ''')
    for mt in range(2):
        for nt in range(2):
            for g2 in range(2):
                x = 64 + 16*g2; o = x+8
                acc_read(a, x, 16*(2*mt+nt)+4*g2, 4); acc_read(a, x+4, 16*(2*mt+nt)+4*g2+8, 4)
                for c in range(4): a(f'v_cvt_pk_bf16_f32 v{o+c}, v{x+2*c}, v{x+2*c+1}')
                a(f'ds_write_b128 v{vE1}, {vr(o,4)} offset:{mt*8192+nt*2048+g2*512}')

def epi_row(a, gelu):
    a(f'''
    v_and_b32 v21, 31, v{vLN}
    v_lshrrev_b32 v22, 5, v{vLN}
    v_and_b32 v23, 15, v{vLN}
    s_lshl_b32 s{sT}, s{sWN}, 3
    v_or_b32 v22, s{sT}, v22
    v_xor_b32 v22, v22, v23
    v_lshlrev_b32 v{vE1}, 8, v21
    v_lshl_add_u32 v{vE1}, v22, 4, v{vE1}
    s_lshl_b32 s{sT}, s{sWM}, 14
    s_add_u32 s{sT}, s{sT}, {EP}
    v_add_u32 v{vE1}, s{sT}, v{vE1}
    ''')
    for nt in range(2):
        for ap in range(2):
            if nt or ap: a(f'v_xor_b32 v{vE2}, {(4*nt+2*ap)*16}, v{vE1}')
            adr = vE2 if (nt or ap) else vE1
            for mt in range(2):
                x = 64 + 24*mt; o = x+8
                acc_read(a, x, 16*(2*mt+nt)+8*ap, 8)
                if gelu: gelu8(a, x, x+8)
                for c in range(4): a(f'v_cvt_pk_bf16_f32 v{o+c}, v{x+2*c}, v{x+2*c+1}')
                a(f'ds_write_b128 v{adr}, {vr(o,4)} offset:{mt*8192}')

def copy_blocks(a):
    a(f'''
    s_waitcnt lgkmcnt(0)
    s_barrier
    v_lshlrev_b32 v21, 4, v{vLN}
    s_lshl_b32 s{sT}, s{S_WAVE}, 13
    s_add_u32 s{sT}, s{sT}, {EP}
    v_add_u32 v22, s{sT}, v21
    s_lshl_b32 s{sT}, s{S_WAVE}, 18
    s_add_u32 s{sT}, s{sT}, s{sOUT}
    s_add_u32 s{sT+1}, s{sT}, 4096
    ''')
    for i in range(8): a(f'ds_read_b128 {vr(64+4*i,4)}, v22 offset:{i*1024}')
    for i in range(8):
        a(f's_waitcnt lgkmcnt({7-i})\n buffer_store_dwordx4 {vr(64+4*i,4)}, v21, {W}, s{sT+(i>>2)} offen offset:{(i&3)*1024} sc1')

def unpack(a, d, s):
    a(f'v_lshlrev_b32 v{d}, 16, v{s}\n v_and_b32 v{d+1}, 0xffff0000, v{s}')

def rows_phase(a, mode):
    a(f'''
    v_lshrrev_b32 v21, 4, v{vLN}
    v_and_b32 v22, 15, v{vLN}
    v_mul_lo_u32 v23, v21, s{sOSTR}
    v_lshl_add_u32 v23, v22, 4, v23
    s_lshl_b32 s{sT}, s{S_WAVE}, 5
    s_mul_i32 s{sT+1}, s{sT}, s{sOSTR}
    s_add_u32 s{sX}, s{sOUT}, s{sT+1}
    s_add_u32 s{sY}, s{sAUX}, s{sT+1}
    s_lshl_b32 s{sT+2}, s{sOSTR}, 2
    v_xor_b32 v24, v22, v21
    v_lshlrev_b32 v25, 8, v21
    v_lshl_add_u32 v25, v24, 4, v25
    s_lshl_b32 s{sT+3}, s{S_WAVE}, 13
    s_add_u32 s{sT+3}, s{sT+3}, {EP}
    v_add_u32 v25, s{sT+3}, v25
    v_lshlrev_b32 v26, 1, v21
    s_lshl_b32 s{sT+3}, s{S_WAVE}, 6
    s_add_u32 s{sT+3}, s{sT+3}, s{sAUX2}
    ''')
    if mode != 'plain':
        a(f's_mov_b32 s{sT+4}, s{sY}\n s_mov_b32 s{sT+5}, s{sX}')
        for i in range(8):
            a(f'buffer_load_dwordx4 {vr(96+4*i,4)}, v23, {W}, s{sT+4} offen sc1\n s_add_u32 s{sT+4}, s{sT+4}, s{sT+2}')
            if mode == 'gate':
                a(f'buffer_load_ushort v{128+i}, v26, {SC}, s{sT+3} offen offset:{i*8}')
            else:
                a(f'buffer_load_dwordx4 {vr(128+4*i,4)}, v23, {SC}, s{sT+5} offen\n s_add_u32 s{sT+5}, s{sT+5}, s{sT+2}')
    a('s_waitcnt lgkmcnt(0)\n s_barrier')
    for i in range(8):
        a(f'v_xor_b32 v27, {(i&3)*64}, v25\n ds_read_b128 {vr(64+4*i,4)}, v27 offset:{i*1024}')
    if mode != 'plain': a('s_waitcnt vmcnt(0)')
    for i in range(8):
        r = 64+4*i
        a(f's_waitcnt lgkmcnt({7-i})')
        if mode == 'gate':
            a(f'v_lshlrev_b32 v{128+i}, 16, v{128+i}')
            for d in range(4):
                unpack(a, 28, r+d); unpack(a, 30, 96+4*i+d)
                a(f'''v_add_f32 v28, v28, v{128+i}
                      v_add_f32 v29, v29, v{128+i}
                      v_cvt_pk_bf16_f32 v{r+d}, v28, v29''')
                unpack(a, 28, r+d)
                a(f'''v_mul_f32 v28, v28, v30
                      v_mul_f32 v29, v29, v31
                      v_cvt_pk_bf16_f32 v{r+d}, v28, v29''')
        if mode == 'final':
            for d in range(4):
                unpack(a, 28, r+d); unpack(a, 30, 128+4*i+d)
                a(f'''v_add_f32 v28, v28, v30
                      v_add_f32 v29, v29, v31
                      v_cvt_pk_bf16_f32 v{r+d}, v28, v29''')
                unpack(a, 28, r+d); unpack(a, 30, 96+4*i+d)
                a(f'''v_add_f32 v28, v28, v30
                      v_add_f32 v29, v29, v31
                      v_cvt_pk_bf16_f32 v{r+d}, v28, v29''')
        if mode == 'final':
            a(f'buffer_store_dwordx4 {vr(r,4)}, v23, {SD}, s{sX} offen')
        else:
            a(f'buffer_store_dwordx4 {vr(r,4)}, v23, {W}, s{sX} offen sc1')
        a(f's_add_u32 s{sX}, s{sX}, s{sT+2}')

def ln_task(a, width, src_srd, sc, tag):
    nch = width//8//16
    stride = 2*width
    a(f'''
    v_lshrrev_b32 v21, 4, v{vLN}
    v_and_b32 v22, 15, v{vLN}
    s_lshl_b32 s{sT}, s{S_WAVE}, 2
    v_add_u32 v21, s{sT}, v21
    s_mov_b32 s{sT}, {stride}
    v_mul_lo_u32 v21, v21, s{sT}
    v_lshl_add_u32 v23, v22, 4, v21
    ''')
    for c in range(nch): a(f'buffer_load_dwordx4 {vr(64+4*c,4)}, v23, {src_srd}, s{sAO} offen offset:{c*256} {sc}')
    a('s_waitcnt vmcnt(0)')
    n = nch*8; X = 96
    for d in range(nch*4): unpack(a, X+2*d, 64+d)
    def red(reg):
        for sh in (8,4,2,1):
            a(f's_nop 1\n v_add_f32_dpp v{reg}, v{reg}, v{reg} row_ror:{sh} row_mask:0xf bank_mask:0xf')
    a(f'v_add_f32 v24, v{X}, v{X+1}')
    for i in range(2,n): a(f'v_add_f32 v24, v24, v{X+i}')
    red(24)
    inv = {512:0x3b000000, 896:0x3a924925}[width]
    a(f'v_mul_f32 v24, {inv:#x}, v24')
    a(f'v_sub_f32 v26, v{X}, v24\n v_mul_f32 v25, v26, v26')
    for i in range(1,n): a(f'v_sub_f32 v26, v{X+i}, v24\n v_fmac_f32 v25, v26, v26')
    red(25)
    a(f'''
    v_mul_f32 v25, {inv:#x}, v25
    v_cvt_pk_bf16_f32 v24, v24, v25
    v_and_b32 v25, 0xffff0000, v24
    v_lshlrev_b32 v24, 16, v24
    v_add_f32 v25, 0x3727c5ac, v25          ; + 1e-5
    v_cvt_pk_bf16_f32 v25, v25, v25
    v_and_b32 v25, 0xffff0000, v25
    v_sqrt_f32 v25, v25
    s_nop 0
    v_cvt_pk_bf16_f32 v25, v25, v25
    v_and_b32 v25, 0xffff0000, v25
    v_rcp_f32 v27, v25
    s_nop 0
    ''')
    for d in range(nch*4):
        x = X+2*d
        a(f'''v_sub_f32 v{x}, v{x}, v24
              v_sub_f32 v{x+1}, v{x+1}, v24
              v_cvt_pk_bf16_f32 v26, v{x}, v{x+1}''')
        unpack(a, x, 26)
        a(f'''v_mul_f32 v28, v{x}, v27
              v_mul_f32 v29, v{x+1}, v27
              v_fma_f32 v{x}, -v28, v25, v{x}
              v_fma_f32 v{x+1}, -v29, v25, v{x+1}
              v_fmac_f32 v28, v{x}, v27
              v_fmac_f32 v29, v{x+1}, v27
              v_cvt_pk_bf16_f32 v{64+d}, v28, v29''')
    for c in range(nch): a(f'buffer_store_dwordx4 {vr(64+4*c,4)}, v23, {W}, s{sOUT} offen offset:{c*256} sc1')

def att_task(a):
    KF=64; QF=96; VF=128; KMF=160; VMF=176; SX=192
    a(f'''
    s_lshl_b32 s{sT}, s{sBLK}, 2
    s_add_u32 s{sT}, s{sT}, s{S_WAVE}          ; seg
    s_lshl_b32 s{sT+1}, s{sT}, 5
    s_add_u32 s{sT+1}, s{sT+1}, s{sCT}
    s_lshl_b32 s{sT+1}, s{sT+1}, 13            ; (seg*32+h)*8192
    s_add_u32 s{sT+2}, s{sT+1}, {WS_KX}
    s_add_u32 s{sT+3}, s{sT+1}, {WS_QX}
    s_add_u32 s{sT+4}, s{sT+1}, {WS_VX}
    s_add_u32 s{sT+5}, s{sT+1}, {WS_KM}
    s_add_u32 s{sT+6}, s{sT+2}, 4096
    s_add_u32 s{sT+7}, s{sT+3}, 4096
    s_add_u32 s{sT+8}, s{sT+4}, 4096
    v_lshrrev_b32 v21, 4, v{vLN}               ; g
    v_and_b32 v22, 15, v{vLN}                  ; i
    v_lshrrev_b32 v23, 1, v21
    v_and_b32 v24, 1, v21
    v_lshlrev_b32 v25, 10, v23
    v_lshl_add_u32 v25, v24, 8, v25
    v_lshl_add_u32 v25, v22, 4, v25
    v_lshlrev_b32 v26, 4, v{vLN}
    v_lshrrev_b32 v27, 2, v22
    v_and_b32 v28, 1, v22
    v_lshl_add_u32 v27, v27, 1, v28
    v_lshlrev_b32 v27, 8, v27
    v_lshl_add_u32 v27, v21, 4, v27
    ''')
    for T in range(2):
        for ks in range(4):
            so = sT+2 if ks < 2 else sT+6
            a(f'buffer_load_dwordx4 {vr(KF+16*T+4*ks,4)}, v25, {W}, s{so} offen offset:{(ks&1)*2048+T*512} sc1')
            so = sT+3 if ks < 2 else sT+7
            a(f'buffer_load_dwordx4 {vr(QF+16*T+4*ks,4)}, v25, {W}, s{so} offen offset:{(ks&1)*2048+T*512} sc1')
    for ks in range(4): a(f'buffer_load_dwordx4 {vr(KMF+4*ks,4)}, v27, {W}, s{sT+5} offen offset:{ks*64} sc1')
    for f in range(8):
        so = sT+4 if f < 4 else sT+8
        a(f'buffer_load_dwordx4 {vr(VF+4*f,4)}, v26, {W}, s{so} offen offset:{(f&3)*1024} sc1')
    a(f's_add_u32 s{sT+5}, s{sT+5}, 2048')
    for w in range(4): a(f'buffer_load_dwordx4 {vr(VMF+4*w,4)}, v26, {W}, s{sT+5} offen offset:{w*1024} sc1')
    a(f'''
    v_lshlrev_b32 v29, 13, v22
    v_lshl_add_u32 v29, v21, 4, v29
    s_lshl_b32 s{sX}, s{sT}, 18
    s_lshl_b32 s{sY}, s{sCT}, 8
    s_add_u32 s{sX}, s{sX}, s{sY}
    s_add_u32 s{sX}, s{sX}, {WS_OX}
    s_mov_b32 s{sC0}, 0x3e0293ee
    v_lshlrev_b32 v30, 2, v21                  ; 4g
    v_mov_b32 v31, 0xff800000
    s_waitcnt vmcnt(12)
    ''')
    for qt in range(2):
        S = SX
        tiles = [0,2] if qt == 0 else [0,1,2]
        for T in tiles:
            for ks in range(4):
                A_ = vr(KF+16*T+4*ks,4) if T < 2 else vr(KMF+4*ks,4)
                c = '0' if ks == 0 else vr(S+4*T,4)
                a(f'v_mfma_f32_16x16x32_bf16 {vr(S+4*T,4)}, {A_}, {vr(QF+16*qt+4*ks,4)}, {c}')
        a('s_nop 7')
        for r in range(4):
            a(f'''v_add_u32 v{SX+28}, {r}, v30
                  v_cmp_le_u32 vcc, v{SX+28}, v22
                  s_nop 1
                  v_cndmask_b32 v{S+4*qt+r}, v31, v{S+4*qt+r}, vcc''')
        vals = [S+4*T+r for T in tiles if T < 2 for r in range(4)] + [S+8, S+9]
        mx, tt = SX+28, SX+29
        a(f'v_max_f32 v{mx}, v{vals[0]}, v{vals[1]}')
        for i in range(2,len(vals),2): a(f'v_max3_f32 v{mx}, v{mx}, v{vals[i]}, v{vals[i+1]}')
        for p in (16,32):
            a(f'v_mov_b32 v{tt}, v{mx}\n s_nop 1\n v_permlane{p}_swap_b32 v{mx}, v{tt}\n v_max_f32 v{mx}, v{mx}, v{tt}')
        a(f'v_mul_f32 v{mx}, s{sC0}, v{mx}')
        for v_ in vals: a(f'v_fma_f32 v{v_}, v{v_}, s{sC0}, -v{mx}')
        for v_ in vals: a(f'v_exp_f32 v{v_}, v{v_}')
        a(f's_nop 0\n v_add_f32 v{mx}, v{vals[0]}, v{vals[1]}')
        for v_ in vals[2:]: a(f'v_add_f32 v{mx}, v{mx}, v{v_}')
        for p in (16,32):
            a(f'v_mov_b32 v{tt}, v{mx}\n s_nop 1\n v_permlane{p}_swap_b32 v{mx}, v{tt}\n v_add_f32 v{mx}, v{mx}, v{tt}')
        a(f'v_rcp_f32 v{mx}, v{mx}\n s_nop 0')
        for v_ in vals: a(f'v_mul_f32 v{v_}, v{v_}, v{mx}')
        P = SX+12; PM = SX+16
        a(f'v_cvt_pk_bf16_f32 v{P}, v{S}, v{S+1}\n v_cvt_pk_bf16_f32 v{P+1}, v{S+2}, v{S+3}')
        if qt: a(f'v_cvt_pk_bf16_f32 v{P+2}, v{S+4}, v{S+5}\n v_cvt_pk_bf16_f32 v{P+3}, v{S+6}, v{S+7}')
        else:  a(f'v_mov_b32 v{P+2}, 0\n v_mov_b32 v{P+3}, 0')
        a(f'v_cvt_pk_bf16_f32 v{PM}, v{S+8}, v{S+9}\n v_mov_b32 v{PM+1}, 0')
        if qt == 0: a('s_waitcnt vmcnt(0)')
        a('s_nop 1')
        O = 224
        for f in range(8):
            a(f'v_mfma_f32_16x16x32_bf16 {vr(O+4*f,4)}, {vr(VF+4*f,4)}, {vr(P,4)}, 0')
        for f in range(8):
            a(f'v_mfma_f32_16x16x16_bf16 {vr(O+4*f,4)}, {vr(VMF+4*(f>>1)+2*(f&1),2)}, {vr(PM,2)}, {vr(O+4*f,4)}')
        a('s_nop 7')
        if qt: a(f's_add_u32 s{sX}, s{sX}, {16*8192}')
        for w in range(4):
            o = SX+20 if w&1 else SX+24
            for c in range(4): a(f'v_cvt_pk_bf16_f32 v{o+c}, v{O+8*w+2*c}, v{O+8*w+2*c+1}')
            a(f'buffer_store_dwordx4 {vr(o,4)}, v29, {W}, s{sX} offen offset:{w*64} sc1')
            a('s_nop 1')


FT_A = 131072
def ft_prologue(a):
    a(f'''
    v_lshrrev_b32 v21, 4, v{vLN}
    v_lshlrev_b32 v22, 10, v21
    v_and_b32 v23, 15, v{vLN}
    v_lshlrev_b32 v21, 2, v21
    v_xor_b32 v23, v23, v21
    v_lshl_add_u32 v{vBs}, v23, 4, v22
    s_lshl_b32 s{sY}, s{sCT}, 17
    s_lshl_b32 s{sT}, s{S_WAVE}, 8
    s_add_u32 s{sY}, s{sY}, s{sT}
    s_lshl_b32 s{sDST}, s{S_WAVE}, 15
    ''')
    for i in range(32):
        a(f'''s_add_u32 m0, s{sDST}, {i*1024}
              s_nop 0
              buffer_load_dwordx4 v{vBs}, {SBd}, s{sY} offen lds
              s_add_u32 s{sY}, s{sY}, 4096''')
    a(f'''
    s_lshl_b32 s{sT}, s{sWN}, 7
    v_xor_b32 v{vAc}, s{sT}, v{vBr}
    v_subrev_u32 v{vAc}, 16384, v{vAc}
    v_add_u32 v{vAc}, s{sDST}, v{vAc}
    v_xor_b32 v{vAc+1}, 64, v{vAc}
    v_xor_b32 v{vAc+2}, 128, v{vAc}
    v_xor_b32 v{vAc+3}, 192, v{vAc}
    s_lshl_b32 s{sT}, s{sWM}, 13
    s_sub_u32 s{sT}, {FT_A}, s{sT}
    v_add_u32 v{vBc}, s{sT}, v{vAr}
    v_lshrrev_b32 v21, 4, v{vLN}               ; g
    v_and_b32 v22, 15, v{vLN}                  ; i
    v_lshrrev_b32 v23, 1, v21
    v_and_b32 v24, 1, v21
    v_lshlrev_b32 v25, 10, v23
    v_lshl_add_u32 v25, v24, 8, v25
    v_lshl_add_u32 v25, v22, 4, v25
    v_lshlrev_b32 v26, 4, v{vLN}
    v_lshrrev_b32 v27, 2, v22
    v_and_b32 v28, 1, v22
    v_lshl_add_u32 v27, v27, 1, v28
    v_lshlrev_b32 v27, 8, v27
    v_lshl_add_u32 v27, v21, 4, v27
    s_lshl_b32 s{sT}, s{sWN}, 4
    v_add_u32 v28, s{sT}, v22                  ; token
    v_bfe_u32 v29, v28, 1, 3
    v_xor_b32 v29, v29, v21
    v_lshlrev_b32 v28, 7, v28
    v_lshl_add_u32 v29, v29, 4, v28
    s_lshl_b32 s{sT}, s{sWM}, 12
    s_add_u32 s{sT}, s{sT}, {FT_A}
    v_add_u32 v29, s{sT}, v29
    v_lshlrev_b32 v30, 2, v21                  ; 4g
    v_mov_b32 v31, 0xff800000
    s_mov_b32 s{sC0}, 0x3e0293ee
    s_lshl_b32 s{sT}, s{sWN}, 4
    v_add_u32 v{vE2}, s{sT}, v22
    v_sub_u32 v{vE2}, v{vE2}, v30
    ''')

def ft_loads_x(a):
    KF=64; QF=96; VF=112
    a(f'''
    s_lshl_b32 s{sT+1}, s{sBLK}, 5
    s_add_u32 s{sT+1}, s{sT+1}, s{sCT}
    s_lshl_b32 s{sAO}, s{sT+1}, 13             ; (seg*32+h)*8192
    s_add_u32 s{sT+2}, s{sAO}, {WS_KX}
    s_lshl_b32 s{sT}, s{sWN}, 9
    s_add_u32 s{sT+3}, s{sAO}, s{sT}
    s_add_u32 s{sT+3}, s{sT+3}, {WS_QX}
    s_lshl_b32 s{sT}, s{sWM}, 12
    s_add_u32 s{sT+4}, s{sAO}, s{sT}
    s_add_u32 s{sT+4}, s{sT+4}, {WS_VX}
    s_add_u32 s{sT+6}, s{sT+2}, 4096
    s_add_u32 s{sT+7}, s{sT+3}, 4096
    ''')
    for T in range(2):
        for ks in range(4):
            so = sT+2 if ks < 2 else sT+6
            a(f'buffer_load_dwordx4 {vr(KF+16*T+4*ks,4)}, v25, {W}, s{so} offen offset:{(ks&1)*2048+T*512} sc1')
    for ks in range(4):
        so = sT+3 if ks < 2 else sT+7
        a(f'buffer_load_dwordx4 {vr(QF+4*ks,4)}, v25, {W}, s{so} offen offset:{(ks&1)*2048} sc1')
    for f in range(4):
        a(f'buffer_load_dwordx4 {vr(VF+4*f,4)}, v26, {W}, s{sT+4} offen offset:{f*1024} sc1')

def ft_pre(a, nv):
    KF=64; QF=96; SX=152
    for i in range(64): a(f'v_accvgpr_write_b32 a{i}, 0')
    a(f's_waitcnt vmcnt({nv})')
    S = SX
    for T in range(2):
        for ks in range(4):
            c = '0' if ks == 0 else vr(S+4*T,4)
            a(f'v_mfma_f32_16x16x32_bf16 {vr(S+4*T,4)}, {vr(KF+16*T+4*ks,4)}, {vr(QF+4*ks,4)}, {c}')
    a('s_nop 7')
    for T in range(2):
        for r in range(4):
            a(f'''v_cmp_le_i32 vcc, {16*T+r}, v{vE2}
                  s_nop 1
                  v_cndmask_b32 v{S+4*T+r}, v31, v{S+4*T+r}, vcc''')

def ft_km(a):
    KMF=128; VMF=144
    a(f'''
    s_add_u32 s{sT+5}, s{sAO}, {WS_KM}
    s_lshl_b32 s{sT}, s{sWM}, 11
    s_add_u32 s{sT+6}, s{sT+5}, s{sT}
    ''')
    for ks in range(4): a(f'buffer_load_dwordx4 {vr(KMF+4*ks,4)}, v27, {W}, s{sT+5} offen offset:{ks*64} sc1')
    for u in range(2): a(f'buffer_load_dwordx4 {vr(VMF+4*u,4)}, v26, {W}, s{sT+6} offen offset:{2048+u*1024} sc1')

def ft_segment(a):
    KF=64; QF=96; VF=112; KMF=128; VMF=144; SX=152; O=184
    S = SX
    a('s_waitcnt vmcnt(2)')
    for ks in range(4):
        c = '0' if ks == 0 else vr(S+8,4)
        a(f'v_mfma_f32_16x16x32_bf16 {vr(S+8,4)}, {vr(KMF+4*ks,4)}, {vr(QF+4*ks,4)}, {c}')
    vals = [S+i for i in range(10)]
    mx, tt = SX+28, SX+29
    a(f'v_max_f32 v{mx}, v{vals[0]}, v{vals[1]}')
    for i in range(2,8,2): a(f'v_max3_f32 v{mx}, v{mx}, v{vals[i]}, v{vals[i+1]}')
    a(f's_nop 4\n v_max3_f32 v{mx}, v{mx}, v{vals[8]}, v{vals[9]}')
    for p in (16,32):
        a(f'v_mov_b32 v{tt}, v{mx}\n s_nop 1\n v_permlane{p}_swap_b32 v{mx}, v{tt}\n v_max_f32 v{mx}, v{mx}, v{tt}')
    a(f'v_mul_f32 v{mx}, s{sC0}, v{mx}')
    for v_ in vals: a(f'v_fma_f32 v{v_}, v{v_}, s{sC0}, -v{mx}')
    for v_ in vals: a(f'v_exp_f32 v{v_}, v{v_}')
    a(f's_nop 0\n v_add_f32 v{mx}, v{vals[0]}, v{vals[1]}')
    for v_ in vals[2:]: a(f'v_add_f32 v{mx}, v{mx}, v{v_}')
    for p in (16,32):
        a(f'v_mov_b32 v{tt}, v{mx}\n s_nop 1\n v_permlane{p}_swap_b32 v{mx}, v{tt}\n v_add_f32 v{mx}, v{mx}, v{tt}')
    a(f'v_rcp_f32 v{mx}, v{mx}\n s_nop 0')
    for v_ in vals: a(f'v_mul_f32 v{v_}, v{v_}, v{mx}')
    P = SX+12; PM = SX+16
    for c in range(4): a(f'v_cvt_pk_bf16_f32 v{P+c}, v{S+2*c}, v{S+2*c+1}')
    a(f'v_cvt_pk_bf16_f32 v{PM}, v{S+8}, v{S+9}\n v_mov_b32 v{PM+1}, 0\n s_waitcnt vmcnt(0)\n s_nop 0')
    for f in range(4):
        a(f'v_mfma_f32_16x16x32_bf16 {vr(O+4*f,4)}, {vr(VF+4*f,4)}, {vr(P,4)}, 0')
    for f in range(4):
        a(f'v_mfma_f32_16x16x16_bf16 {vr(O+4*f,4)}, {vr(VMF+4*(f>>1)+2*(f&1),2)}, {vr(PM,2)}, {vr(O+4*f,4)}')
    a(f's_nop 7\n v_xor_b32 v28, 64, v29')
    for u in range(2):
        o = SX+20+4*u
        for c in range(4): a(f'v_cvt_pk_bf16_f32 v{o+c}, v{O+8*u+2*c}, v{O+8*u+2*c+1}')
        a(f'ds_write_b128 v{28 if u else 29}, {vr(o,4)}')
    a('s_waitcnt lgkmcnt(0)\n s_barrier')

def ft_gemm(a):
    Fb = 200
    def reads(k8, buf):
        kh, ks = k8 >> 2, k8 & 3
        b = Fb + 20*buf
        r = [f'v_xor_b32 v{vBc+1}, {32*ks}, v{vBc}', f'ds_read_b128 {vr(b,4)}, v{vBc+1} offset:{kh*4096}']
        for nt in range(4):
            for rho in range(2):
                r.append(f'ds_read_b64_tr_b16 {vr(b+4+4*nt+2*rho,2)}, v{vAc+nt} offset:{kh*16384+ks*4096+rho*1024}')
        return r
    a('\n'.join(reads(0,0)))
    for k8 in range(8):
        if k8 < 7: a('\n'.join(reads(k8+1,(k8+1)&1)))
        a(f's_waitcnt lgkmcnt({9 if k8 < 7 else 0})')
        b = Fb + 20*(k8&1)
        for nt in range(4):
            a(f'v_mfma_f32_32x32x16_bf16 {ar(16*nt,16)}, {vr(b+4+4*nt,4)}, {vr(b,4)}, {ar(16*nt,16)}')
    a(f'''s_lshl_b32 s{sX}, s{sAO}, 2
          s_lshl_b32 s{sT}, s{S_WAVE}, 13
          s_add_u32 s{sX}, s{sX}, s{sT}
          s_add_u32 s{sX}, s{sX}, {WS_PART}
          s_add_u32 s{sY}, s{sX}, 4096
          s_nop 7''')
    for q in range(8):
        x = 152 + 12*(q&1); o = x+8
        acc_read(a, x, 8*q, 8)
        for c in range(4): a(f'v_cvt_pk_bf16_f32 v{o+c}, v{x+2*c}, v{x+2*c+1}')
        a(f'buffer_store_dwordx4 {vr(o,4)}, v26, {W}, s{sX if q < 4 else sY} offen offset:{(q&3)*1024} sc1')

def red_pre(a):
    a(f'''
    v_lshlrev_b32 v26, 4, v{vLN}
    s_lshl_b32 s{sT}, s{sCT}, 2
    s_add_u32 s{sT}, s{sT}, s{S_WAVE}          ; pi
    s_lshl_b32 s{sX}, s{sBLK}, 20
    s_lshl_b32 s{sT+1}, s{sT}, 10
    s_add_u32 s{sX}, s{sX}, s{sT+1}
    s_add_u32 s{sX}, s{sX}, {WS_PART}
    v_and_b32 v24, 31, v{vLN}
    v_lshrrev_b32 v22, 5, v{vLN}
    v_lshlrev_b32 v23, 10, v24
    v_lshl_add_u32 v23, v22, 4, v23
    s_lshl_b32 s{sOUT}, s{sBLK}, 15
    s_lshl_b32 s{sT+1}, s{sT}, 5
    s_add_u32 s{sOUT}, s{sOUT}, s{sT+1}
    s_add_u32 s{sAUX}, s{sOUT}, {WS_OB}
    buffer_load_dwordx4 v[192:195], v23, {SC}, s{sOUT} offen
    buffer_load_dwordx4 v[196:199], v23, {W}, s{sAUX} offen sc1
    s_mov_b32 s{sC0}, 0x00003f80
    s_mov_b32 s{sC1}, 0x3f800000
    ''')
    for i in range(8): a(f'v_mov_b32 v{32+i}, 0')

def red_task(a):
    for h in range(32):
        a(f'buffer_load_dwordx4 {vr(64+4*h,4)}, v26, {W}, s{sX} offen sc1\n s_add_u32 s{sX}, s{sX}, 32768')
    for h in range(32):
        a(f's_waitcnt vmcnt({31-h})')
        for d in range(4):
            a(f'v_dot2_f32_bf16 v{32+2*d}, v{64+4*h+d}, s{sC0}, v{32+2*d}\n v_dot2_f32_bf16 v{33+2*d}, v{64+4*h+d}, s{sC1}, v{33+2*d}')
    a('s_nop 3')
    for d in range(4):
        a(f'v_cvt_pk_bf16_f32 v{40+d}, v{32+2*d}, v{33+2*d}')
        unpack(a, 28, 40+d); unpack(a, 30, 192+d)
        a(f'v_add_f32 v28, v28, v30\n v_add_f32 v29, v29, v31\n v_cvt_pk_bf16_f32 v{40+d}, v28, v29')
        unpack(a, 28, 40+d); unpack(a, 30, 196+d)
        a(f'v_add_f32 v28, v28, v30\n v_add_f32 v29, v29, v31\n v_cvt_pk_bf16_f32 v{40+d}, v28, v29')
    a(f'buffer_store_dwordx4 v[40:43], v23, {SD}, s{sOUT} offen')
```

```python
import sys
from common import *
import chain as C
from chain import S_WS, S_DBG, S_A, S_B, S_C, S_D, S_XCC, S_WAVE, S_HEAD, SH
from worker import *
import g1a

HDR = open('parallel_sum__memory_aug_recurrent_mem_tr__mixer_gmlp__prompt.s.ref').read().split('; @launch')[0]

def bcast_ticket(a, vsrc, sdst, addr=TK_LDS):
    L = a.label('bt')
    a(f'''s_cmp_lg_u32 s{S_WAVE}, 0
          v_mov_b32 v21, {addr}
          s_cbranch_scc1 {L}
          s_mov_b64 exec, 1
          ds_write_b32 v21, v{vsrc}
          s_mov_b64 exec, -1
          s_waitcnt lgkmcnt(0)
          {L}:
          s_barrier
          ds_read_b32 v22, v21
          s_waitcnt lgkmcnt(0)
          v_readfirstlane_b32 s{sdst}, v22
          s_barrier''')

def atomic_ret(a, vdst, off, val=1, srd_=None, soff='0'):
    L = a.label('ar')
    a(f'''s_cmp_lg_u32 s{S_WAVE}, 0
          s_cbranch_scc1 {L}
          v_mov_b32 v{vdst}, {val}
          v_mov_b32 v21, {off}
          s_mov_b64 exec, 1
          buffer_atomic_add v{vdst}, v21, {srd_ or DBG}, {soff} offen sc0
          s_mov_b64 exec, -1
          {L}:''')

TY_K=0; TY_Q=1; TY_WIN=2; TY_SP=3; TY_OB=4; TY_G3=5; TY_V=6; TY_LN1=7; TY_LN2=8; TY_ATT=9; TY_NOP=10; TY_G1=11
def ent(ty, blk=0, ct=0, nt=1): return ty | (blk << 4) | (ct << 12) | (nt << 20)
def build_tables(opt):
    kvs = [0,5,10,15,20,24,28,32]; qs = [0,4,8,12,16,21,26,32]
    g1 = []; lists = []
    for j in range(7):
        kv = []
        for h in range(kvs[j],kvs[j+1]): kv += [ent(TY_K,0,h), ent(TY_V,0,h)]
        win = [ent(TY_WIN,0,7+j), ent(TY_WIN,0,j)]; qq = [ent(TY_Q,0,h) for h in range(qs[j],qs[j+1])]
        first = []; late = []
        def add(dst, b, l):
            if not l: return
            dst.append(ent(TY_G1,b,0,0) | (len(lists) << 20)); lists.append(l + [ent(TY_NOP)]*(4-len(l)))
        rest = win + qq
        for i,t in enumerate(kv): add(first, 0, [t] + ([rest[i]] if i < len(rest) else []))
        n0 = len(kv); n2 = min(len(rest), n0); n1 = n0 - n2
        nfull = 32 - n0
        n1l = (len(kv)+1)//2
        per = [n1l] + [(nfull-n1l)//6 + (1 if b < (nfull-n1l) % 6 else 0) for b in range(6)]
        small = [3]*n1 + [2]*n2
        for b in range(1,8):
            tiles = (kv + win + qq) if b == 1 else (win + kv + qq)
            nl = per[b-1] if b == 1 else min(per[b-1], 4)
            head, tail_ = tiles[:4*nl], tiles[4*nl:]
            for i in range(nl): add(first, b, head[i::nl])
            while tail_:
                n = small.pop(0) if small else 2
                add(late, b, tail_[:n]); tail_ = tail_[n:]
        g1.append(first + late)
    opt['_lists'] = lists
    sp = [[ent(TY_SP,b,j) for b in range(16)] for j in range(7)]
    ob = [ent(TY_OB,b,c) for b in range(16) for c in range(4)]
    FS = opt.get('fs', 4)
    FE = opt.get('fe', 2); RB = opt.get('rb', 52)
    ft_early = [ent(TY_ATT,r,h) for r in range(FE) for h in range(32)]
    tail = [ent(TY_ATT,r,h) for r in range(FE,FS) for h in range(32)] + ob + [ent(TY_G3,sg,j,2) for sg in range(RB) for j in range(0,8,2)] + [ent(TY_G3,sg,j,1) for sg in range(RB,64) for j in range(8)]
    return [([[ent(TY_LN1,i) for i in range(128)]],0), (g1,0), ([[ent(TY_LN2,i) for i in range(128)] + ft_early],0), (sp,0), ([tail],0)]
def table_words(PH, opt=None):
    hdr = []; body = []
    base = 4*len(PH)
    for qs_, pf in PH:
        L = max(len(q) for q in qs_)
        hdr += [len(qs_), L, base + len(body), PH_OFF[len(hdr)//4]]
        for q in qs_: body += q + [ent(TY_NOP)]*(L-len(q))
    w = hdr + body
    w += [0]*(-len(w) % 4)
    if opt is not None:
        opt['lists'] = 4*len(w)
        for l in opt['_lists']: w += l
    return w

def gen(opt={}):
    a = Asm()
    a(f'''
    s_cmp_ge_u32 s2, 256
    s_cbranch_scc1 L_end
    s_load_dwordx4 s[32:35], s[0:1], 104
    {'s_memrealtime s[90:91]' if opt.get('prof') else ''}
    s_getreg_b32 s{S_XCC}, hwreg(HW_REG_XCC_ID)
    s_and_b32 s{S_XCC}, s{S_XCC}, 15
    v_lshrrev_b32 v1, 6, v0
    v_mov_b32 v{vNXT}, 0
    v_readfirstlane_b32 s{S_WAVE}, v1
    s_waitcnt lgkmcnt(0)
    {'s_mov_b32 s99, s90' if opt.get('prof') else ''}
    s_mov_b32 s{S_DBG}, s32
    s_mov_b32 s{S_DBG+1}, s33
    s_mov_b32 s{S_DBG+2}, 256
    s_mov_b32 s{S_DBG+3}, 0x20000
    s_mov_b32 s{S_WS}, s34
    s_mov_b32 s{S_WS+1}, s35
    s_mov_b32 s{S_WS+2}, {WS_SIZE}
    s_mov_b32 s{S_WS+3}, 0x20000
    s_cmp_lg_u32 s{S_XCC}, {opt.get('team_xcc',0)}
    s_cbranch_scc1 L_worker
    L_tryrole:
    ''')
    atomic_ret(a, vNXT, D_ROLE)
    a('s_waitcnt vmcnt(0)')
    bcast_ticket(a, vNXT, S_HEAD)
    a(f'''
    s_cmp_lt_u32 s{S_HEAD}, 32
    s_cbranch_scc1 L_chain
    s_branch L_worker_noq
    ''')
    a('L_worker:')
    if opt.get('warm',0):
        a(f'''s_lshr_b32 s31, s2, 6
              s_lshl_b32 s31, s31, 3
              s_add_u32 s31, s31, 16
              s_load_dwordx2 s[32:33], s[0:1], s31
              s_and_b32 s34, s2, 63
              s_lshl_b32 s34, s34, 16
              v_lshlrev_b32 v21, 7, v0
              s_waitcnt lgkmcnt(0)
              s_mov_b32 s{S_A}, s32
              s_mov_b32 s{S_A+1}, s33
              s_mov_b32 s{S_A+2}, 0x400000
              s_mov_b32 s{S_A+3}, 0x20000
              s_add_u32 s35, s34, 32768
              buffer_load_dword v22, v21, {SA}, s34 offen
              buffer_load_dword v23, v21, {SA}, s35 offen''')
    a(f's_mov_b32 s{sFIRST}, 1\n s_branch L_winit')
    a('L_worker_noq:')
    a(f's_mov_b32 s{sFIRST}, 0')
    a('L_winit:')
    for s in (S_A,S_B,S_C,S_D): srd_ws(a, s)
    gemm_setup_consts(a)
    opt = dict(opt)
    PH = build_tables(opt)
    words = table_words(PH, opt)
    a(f'''s_mov_b32 s{sCNT}, 0
          s_getpc_b64 s[{sTB}:{sTB+1}]
          L_pc:
          s_add_u32 s{sTB}, s{sTB}, task_table-L_pc
          s_addc_u32 s{sTB+1}, s{sTB+1}, 0
          s_add_u32 s{sHOME}, s{S_XCC}, 6
          s_cmp_ge_u32 s{sHOME}, 7
          s_cselect_b32 s{sT}, 7, 0
          s_sub_u32 s{sHOME}, s{sHOME}, s{sT}
          s_min_u32 s{sHOME}, s{sHOME}, 6
          s_mov_b32 s{sPH}, 1
          s_mov_b32 s{sLNM}, 0
          s_mov_b32 s{sI}, 0
          s_mov_b32 s{sOSTR}, -1
          s_mov_b32 s{sQ}, s{sHOME}''')
    def initwait():
        L = a.label('iw')
        a(f's_cmp_eq_u32 s{sCNT}, 1\n s_cbranch_scc1 {L}\n s_mov_b32 s{sFLG}, {D_INIT}')
        wait_flag(a, DBG, sFLG, 1, sleep=2)
        a(f's_mov_b32 s{sCNT}, 1\n {L}:')
    a('L_claim:')
    a(f'''s_lshl_b32 s{sT}, s{sPH}, 4
          s_load_dwordx4 s[36:39], s[{sTB}:{sTB+1}], s{sT}
          s_cmp_ge_u32 s{sPH}, 2
          s_cbranch_scc1 L_claimw
          s_lshl_b32 s{sT+1}, s{sQ}, 2
          s_waitcnt lgkmcnt(0)
          s_add_u32 s{sFLG}, s{sT+1}, s39''')
    atomic_ret(a, vNXT, 0, 1, DBG, f's{sFLG}')
    a(f'''s_branch L_claimx
          L_claimw:
          s_lshl_b32 s{sT+1}, s{sQ}, 7
          s_waitcnt lgkmcnt(0)
          s_add_u32 s{sFLG}, s{sT+1}, s39''')
    atomic_ret(a, vNXT, 0, 1, W, f's{sFLG}')
    a('L_claimx:\n s_waitcnt vmcnt(0)')
    bcast_ticket(a, vNXT, sTASK)
    a(f'''s_cmp_lt_u32 s{sTASK}, s37
          s_cbranch_scc1 L_got
          s_cmp_eq_u32 s{sPH}, 0
          s_cbranch_scc1 L_lndone
          s_cmp_eq_u32 s{sI}, 0
          s_cbranch_scc1 L_toln''')
    initwait()
    a(f'''s_cmp_eq_u32 s36, 1
          s_cbranch_scc1 L_nextph
          s_lshl_b32 s{sT}, s{sPH}, 7
          s_add_u32 s{sT}, s{sT}, {WS_FLAGS+F_DONE+DN_EX*128}
          v_lshlrev_b32 v21, 2, v{vLN}
          v_and_b32 v21, 31, v21
          buffer_load_dword v22, v21, {W}, s{sT} offen sc1
          s_waitcnt vmcnt(0)
          v_cmp_eq_u32 vcc, 0, v22
          s_lshl_b32 s{sT}, 1, s36
          s_sub_u32 s{sT}, s{sT}, 1
          s_lshl_b32 s{sT+1}, 1, s{sQ}
          s_or_b32 s{sLNM}, s{sLNM}, s{sT+1}
          s_andn2_b32 s{sT}, s{sT}, s{sLNM}
          s_and_b32 s{sT}, s{sT}, vcc_lo
          v_mov_b32 v24, s{sT}''')
    bcast_ticket(a, 24, sT+1)
    a(f'''s_cmp_eq_u32 s{sT+1}, 0
          s_cbranch_scc1 L_nextph
          s_lshr_b32 s{sT}, s{sT+1}, s{sQ}
          s_lshl_b32 s{sT}, s{sT}, s{sQ}
          s_cmp_lg_u32 s{sT}, 0
          s_cselect_b32 s{sT}, s{sT}, s{sT+1}
          s_ff1_i32_b32 s{sQ}, s{sT}
          s_branch L_claim
          L_nextph:
          s_mov_b32 s{sLNM}, 0
          s_add_u32 s{sPH}, s{sPH}, 1
          s_cmp_ge_u32 s{sPH}, {len(PH)}
          s_cbranch_scc1 L_wdone
          s_bitcmp1_b32 s{sPH}, 0
          s_cselect_b32 s{sQ}, s{sHOME}, 0
          s_cmp_lg_u32 s{sPH}, 2
          s_cbranch_scc1 L_claim
          s_cmp_eq_u32 s{sFIRST}, 1
          s_cbranch_scc1 L_chk
          s_branch L_claim
          L_got:
          s_add_u32 s{sT}, s{sTASK}, 1
          s_cmp_lg_u32 s{sT}, s37
          s_cbranch_scc1 L_got2
          s_cmp_eq_u32 s36, 1
          s_cbranch_scc1 L_got2''')
    initwait()
    a(f'''s_lshl_b32 s{sT}, s{sPH}, 7
          s_lshl_b32 s{sT+1}, s{sQ}, 2
          s_add_u32 s{sT}, s{sT}, s{sT+1}
          s_add_u32 s{sT}, s{sT}, {WS_FLAGS+F_DONE+DN_EX*128}
          v_mov_b32 v21, 1
          s_mov_b64 exec, 1
          buffer_store_dword v21, v{vZ}, {W}, s{sT} offen sc1
          s_mov_b64 exec, -1
          L_got2:
          s_mul_i32 s{sT}, s{sQ}, s37
          s_add_u32 s{sT}, s{sT}, s38
          s_add_u32 s{sTASK}, s{sTASK}, s{sT}
          L_got3:
          s_lshl_b32 s{sT}, s{sTASK}, 2
          s_load_dword s{sIDX}, s[{sTB}:{sTB+1}], s{sT}
          ''')
    a('L_nopf:')
    if opt.get('prof'): a('s_memrealtime s[76:77]\n s_memrealtime s[78:79]')
    a(f'''s_waitcnt lgkmcnt(0)
          s_and_b32 s{sEPI}, s{sIDX}, 15          ; type
          s_bfe_u32 s{sBLK}, s{sIDX}, 0x80004
          s_bfe_u32 s{sCT}, s{sIDX}, 0x8000c
          s_bfe_u32 s{sNT}, s{sIDX}, 0x40014
          s_mov_b32 s{sDA}, 0
          s_mov_b32 s{sDB}, 256
          s_cmp_eq_u32 s{sI}, 1
          s_cbranch_scc1 L_disp
          s_cmp_lg_u32 s{sPH}, 1
          s_cbranch_scc1 L_disp
          s_and_b32 s{sT}, s{sIDX}, 0xfff
          s_cmp_eq_u32 s{sT}, {TY_G1}
          s_cbranch_scc1 L_disp
          s_mov_b32 s{sOSTR}, s{sTASK}
          L_toln:
          s_mov_b32 s{sNST}, s{sQ}
          s_mov_b32 s{sPH}, 0
          s_mov_b32 s{sQ}, 0
          s_branch L_claim
          L_lndone:
          s_mov_b32 s{sI}, 1
          s_mov_b32 s{sPH}, 1
          s_mov_b32 s{sQ}, s{sNST}
          s_cmp_eq_u32 s{sOSTR}, -1
          s_cbranch_scc1 L_claim
          s_mov_b32 s{sTASK}, s{sOSTR}
          s_branch L_got3
          L_disp:
          s_cmp_eq_u32 s{sEPI}, {TY_NOP}
          s_cbranch_scc1 L_done
          s_cmp_eq_u32 s{sEPI}, {TY_LN1}
          s_cbranch_scc1 L_ln1''')
    def lnwait():
        L = a.label('lw')
        a(f's_cmp_eq_u32 s{sCNT}, 1\n s_cbranch_scc1 {L}\n s_lshl_b32 s{sFLG}, s{sBLK}, 2\n s_add_u32 s{sFLG}, s{sFLG}, {D_LNF}')
        wait_flag(a, DBG, sFLG, 1, sleep=2)
        a(f'{L}:')
    opt['initwait'] = initwait; opt['lnwait'] = lnwait
    a(f's_cmp_eq_u32 s{sEPI}, {TY_G1}\n s_cbranch_scc1 L_g1')
    initwait()
    for ty, L in ((TY_LN2,'L_ln2'),(TY_SP,'L_sp'),(TY_OB,'L_ob'),(TY_ATT,'L_att')):
        a(f's_cmp_eq_u32 s{sEPI}, {ty}\n s_cbranch_scc1 {L}')
    a('s_branch L_g3')
    def wait_ln():
        pass
    def a_xn():
        srd_ws(a, S_A)
        a(f's_lshl_b32 s{sAO}, s{sBLK}, 17\n s_add_u32 s{sAO}, s{sAO}, {WS_XN}\n s_mov_b32 s{sLDA}, 1024\n s_mov_b32 s{sNST}, 8')
    a('L_ln1:')
    a(f'''s_cmp_lg_u32 s{S_WAVE}, 0
          s_cbranch_scc1 L_ln1b
          v_mov_b32 v24, 0
          v_mov_b32 v25, 0
          v_mov_b32 v26, 0
          v_mov_b32 v27, 0
          v_lshlrev_b32 v21, 4, v{vLN}
          v_lshlrev_b32 v22, 13, v{vLN}
          s_mul_i32 s{sT}, s{sBLK}, {F_SIZE//128}
          s_add_u32 s{sT}, s{sT}, {WS_FLAGS}
          s_lshl_b32 s{sT+1}, s{sBLK}, 17
          s_add_u32 s{sT+1}, s{sT+1}, {WS_KM + 6144}
          s_mov_b64 exec, 0x1fffff
          buffer_store_dwordx4 v[24:27], v21, {W}, s{sT} offen sc1
          s_mov_b64 exec, 0xffff
          buffer_store_dword v24, v22, {W}, s{sT+1} offen sc1
          s_mov_b64 exec, -1
          L_ln1b:''')
    srd(a, S_A, 0, 2*MB)
    a(f's_lshl_b32 s{sAO}, s{sBLK}, 14\n s_add_u32 s{sOUT}, s{sAO}, {WS_XN}')
    ln_task(a, 512, SA, '', 'a')
    L = a.label('ls')
    a(f'''s_waitcnt vmcnt(0)
          s_barrier
          s_cmp_lg_u32 s{S_WAVE}, 0
          s_cbranch_scc1 {L}
          s_lshr_b32 s{sT}, s{sBLK}, 4
          s_lshl_b32 s{sT}, s{sT}, 2
          s_add_u32 s{sT+1}, s{sT}, {D_LNC}
          s_add_u32 s{sT+2}, s{sT}, {D_LNF}
          v_mov_b32 v21, 1
          v_mov_b32 v22, {D_INITC}
          v_mov_b32 v23, {D_INIT}
          v_mov_b32 v24, 127
          v_mov_b32 v25, 1
          v_writelane_b32 v22, s{sT+1}, 1
          v_writelane_b32 v23, s{sT+2}, 1
          v_writelane_b32 v24, 15, 1
          s_mov_b64 exec, 3
          buffer_atomic_add v21, v22, {DBG}, 0 offen sc0
          s_waitcnt vmcnt(0)
          v_cmp_eq_u32 vcc, v24, v21
          s_and_b64 exec, exec, vcc
          s_cbranch_execz {L}x
          buffer_store_dword v25, v23, {DBG}, 0 offen sc1
          {L}x:
          s_mov_b64 exec, -1
          {L}:''')
    a('s_branch L_done')
    a('L_ln2:')
    srd(a, S_A, 72, 8*MB)
    a(f'''s_lshl_b32 s{sT+2}, s{sBLK}, 16
          s_add_u32 s{sT+3}, s{sT+2}, 32768
          v_lshlrev_b32 v252, 7, v0
          buffer_load_dword v250, v252, {SA}, s{sT+2} offen
          buffer_load_dword v251, v252, {SA}, s{sT+3} offen''')
    a(f'''s_mov_b32 s{sIDX}, s{sBLK}
          s_lshr_b32 s{sFLG}, s{sIDX}, 3
          s_lshl_b32 s{sFLG}, s{sFLG}, 7
          s_add_u32 s{sFLG}, s{sFLG}, {WS_FLAGS+F_DONE+DN_Z2*128}''')
    wait_flag(a, W, sFLG, 1)
    a(f'''s_mul_i32 s{sAO}, s{sIDX}, {16*1792}
          s_add_u32 s{sOUT}, s{sAO}, {WS_Z2N}
          s_add_u32 s{sAO}, s{sAO}, {WS_Z2}''')
    ln_task(a, 896, W, 'sc1', 'b')
    a(f's_mov_b32 s{sFLG}, {WS_FLAGS+F_Z2N}\n s_mov_b32 s{sAUX}, {WS_FLAGS+F_DONE+DN_Z2N*128}')
    signal2(a, W, sFLG, 128, sAUX)
    a('s_branch L_done')
    a('L_g1:')
    g1a.g1_task(a, dict(K=TY_K,V=TY_V,Q=TY_Q,WIN=TY_WIN,NOP=TY_NOP), opt)
    def next_tile(kind, Lt):
        a(f'''s_mov_b32 s{sPEND}, s{sSPL}
              s_mov_b32 s{sPK}, {kind}
              s_branch L_drain''')
    a('L_sp:')
    a(f'''s_mov_b32 s{sFLG}, {WS_FLAGS+F_DONE+DN_Z2N*128}''')
    wait_flag(a, W, sFLG, 1, bar=False)
    a(f's_lshl_b32 s{sFLG}, s{sBLK}, 6\n s_add_u32 s{sSPL}, s{sFLG}, {WS_FLAGS+F_GZ}\n s_lshl_b32 s{sFLG}, s{sBLK}, 7\n s_add_u32 s{sWC}, s{sFLG}, {WS_FLAGS+F_DONE+DN_GZ*128}\n s_add_u32 s{sFLG}, s{sFLG}, {WS_FLAGS+F_DONE+DN_Z1*128}')
    wait_flag(a, W, sFLG, 1)
    srd(a, S_A, 72, 8*MB); srd_ws(a, S_B); srd(a, S_C, 80, 4096)
    a(f'''s_lshl_b32 s{sAO}, s{sBLK}, 19
          s_mov_b32 s{sLDA}, 4096
          s_lshl_b32 s{sT}, s{sCT}, 8
          s_add_u32 s{sBO}, s{sT}, {WS_Z2N}
          s_mov_b32 s{sLDB}, 1792
          s_mov_b32 s{sNST}, 32
          s_mul_i32 s{sOUT}, s{sBLK}, {128*1792}
          s_add_u32 s{sOUT}, s{sOUT}, s{sT}
          s_add_u32 s{sAUX}, s{sOUT}, {WS_Z1}
          s_add_u32 s{sOUT}, s{sOUT}, {WS_GZ}
          s_lshl_b32 s{sAUX2}, s{sBLK}, 8
          s_mov_b32 s{sOSTR}, 1792
          s_mov_b32 s{sEPI}, 3
          s_branch L_gs''')
    a('L_ob:')
    a(f'''s_lshl_b32 s{sIDX}, s{sBLK}, 2
          s_add_u32 s{sIDX}, s{sIDX}, s{sCT}
          s_lshl_b32 s{sFLG}, s{sBLK}, 7
          s_add_u32 s{sFLG}, s{sFLG}, {WS_FLAGS+F_DONE+DN_GZ*128}''')
    wait_flag(a, W, sFLG, 1)
    srd_ws(a, S_A); srd(a, S_B, 88, 896*1024)
    a(f'''s_mul_i32 s{sAO}, s{sBLK}, {128*1792}
          s_add_u32 s{sAO}, s{sAO}, {WS_GZ}
          s_mov_b32 s{sLDA}, 1792
          s_lshl_b32 s{sBO}, s{sCT}, 8
          s_mov_b32 s{sLDB}, 1024
          s_mov_b32 s{sNST}, 14
          s_lshl_b32 s{sOUT}, s{sBLK}, 17
          s_add_u32 s{sOUT}, s{sOUT}, s{sBO}
          s_add_u32 s{sOUT}, s{sOUT}, {WS_OB}
          s_mov_b32 s{sOSTR}, 1024
          s_lshl_b32 s{sSPL}, s{sIDX}, 4
          s_add_u32 s{sSPL}, s{sSPL}, {WS_FLAGS+F_OB}
          s_mov_b32 s{sEPI}, 4
          s_branch L_gs''')
    a('L_att:')
    FS = opt.get('fs', 4)
    srd(a, S_B, 40, 4*MB)
    ft_prologue(a)
    a(f'''s_lshl_b32 s{sSPL}, s{sCT}, 5
          s_add_u32 s{sSPL}, s{sSPL}, {WS_FLAGS+F_FTQ}
          s_mov_b32 s{sAUX2}, 0
          s_lshl_b32 s{sFLG}, s{sCT}, 7
          s_add_u32 s{sFLG}, s{sFLG}, {WS_FLAGS+F_DONE+DN_HD*128}''')
    wait_flag(a, W, sFLG, 1, bar=False)
    TKF = FT_A + 8192
    a('L_ftc:')
    atomic_ret(a, vNXT, 0, 1, W, f's{sSPL}')
    a('L_ftl:')
    a('s_waitcnt vmcnt(0)')
    bcast_ticket(a, vNXT, sBLK, TKF)
    a(f's_cmp_ge_u32 s{sBLK}, 64\n s_cbranch_scc1 L_done')
    ft_loads_x(a)
    a(f's_add_u32 s{sT}, s{sBLK}, 6\n s_cmp_gt_u32 s{sAUX2}, s{sT}\n s_cselect_b32 s{sNT}, 1, 0\n s_cbranch_scc0 L_ftnp')
    atomic_ret(a, vNXT, 0, 1, W, f's{sSPL}')
    a('L_ftnp:')
    a(f's_cmp_gt_u32 s{sAUX2}, s{sBLK}\n s_cbranch_scc0 L_ftw')
    ft_km(a); ft_pre(a, 6)
    a('s_branch L_ftgo\n L_ftw:')
    ft_pre(a, 0)
    a(f'''s_lshl_b32 s{sFLG}, s{sCT}, 6
          s_add_u32 s{sFLG}, s{sFLG}, {WS_FLAGS+F_CH}
          s_add_u32 s{sAUX}, s{sBLK}, 1''')
    wait_flag(a, W, sFLG, f's{sAUX}', sleep=1, bar=False)
    a(f'''v_mov_b32 v22, {TKF}
          s_cmp_lg_u32 s{S_WAVE}, 0
          s_cbranch_scc1 L_ftb
          s_mov_b64 exec, 1
          ds_write_b32 v22, v21
          s_mov_b64 exec, -1
          s_waitcnt lgkmcnt(0)
          L_ftb:
          s_barrier''')
    ft_km(a)
    a(f'ds_read_b32 v22, v22\n s_waitcnt lgkmcnt(0)\n v_readfirstlane_b32 s{sAUX2}, v22')
    a('L_ftgo:')
    if opt.get('prof'): a('s_memrealtime s[78:79]')
    ft_segment(a)
    if opt.get('prof'): a('s_memrealtime s[84:85]')
    ft_gemm(a)
    if opt.get('prof'): a('s_memrealtime s[86:87]')
    a(f's_lshl_b32 s{sFLG}, s{sBLK}, 5\n s_add_u32 s{sFLG}, s{sFLG}, {WS_FLAGS+F_FT}\n s_lshl_b32 s{sAUX}, s{sBLK}, 7\n s_add_u32 s{sAUX}, s{sAUX}, {WS_FLAGS+F_DONE+DN_FT*128}')
    signal2(a, W, sFLG, 32, sAUX)
    if opt.get('prof'):
        a(f'''s_memrealtime s[80:81]
              s_waitcnt lgkmcnt(0)
              v_mov_b32 v32, s78
              v_mov_b32 v33, s84
              v_mov_b32 v34, s86
              v_mov_b32 v35, s80
              s_lshr_b32 s{sT}, s{sAO}, 9
              s_add_u32 s{sT}, s{sT}, {241*MB}
              s_mov_b64 exec, 1
              buffer_store_dwordx4 v[32:35], v{vZ}, {W}, s{sT} offen
              s_mov_b64 exec, -1''')
    a(f's_cmp_eq_u32 s{sNT}, 1\n s_cbranch_scc1 L_ftl\n s_branch L_ftc')
    a('L_g3:')
    srd(a, S_C, 0, 2*MB); srd(a, S_D, 96, 2*MB)
    a(f'''s_and_b32 s{sFLG}, s{sBLK}, 0xfc
          s_lshr_b32 s{sT}, s{sCT}, 1
          s_add_u32 s{sFLG}, s{sFLG}, s{sT}
          s_lshl_b32 s{sFLG}, s{sFLG}, 4
          s_add_u32 s{sFLG}, s{sFLG}, {WS_FLAGS+F_OB}''')
    wait_flag(a, W, sFLG, 1)
    red_pre(a)
    a(f's_lshl_b32 s{sFLG}, s{sBLK}, 7\n s_add_u32 s{sFLG}, s{sFLG}, {WS_FLAGS+F_DONE+DN_FT*128}')
    wait_flag(a, W, sFLG, 1, sleep=2)
    if opt.get('prof'): a('s_memrealtime s[78:79]')
    a('L_redl:')
    red_task(a)
    a(f's_sub_u32 s{sNT}, s{sNT}, 1\n s_cmp_eq_u32 s{sNT}, 0\n s_cbranch_scc1 L_done\n s_add_u32 s{sCT}, s{sCT}, 1')
    red_pre(a)
    a('s_branch L_redl')
    a('L_gs:')
    if opt.get('prof'): a('s_memrealtime s[78:79]')
    gemm_task_addr(a)
    gemm_start(a)
    a('L_st:')
    gemm_tile(a, True, 's')
    epi_row(a, False)
    a(f's_cmp_eq_u32 s{sEPI}, 4\n s_cbranch_scc0 L_gate')
    rows_phase(a, 'plain')
    a('L_nt2:')
    next_tile(2, 'L_st')
    a('L_gate:')
    rows_phase(a, 'gate')
    signal2(a, W, sSPL, 7, sWC)
    a('s_branch L_done')
    a('L_drain:')
    a('s_waitcnt vmcnt(0)\n s_barrier')
    pend_signal(a)
    a('s_branch L_done')
    a('L_done:')
    if opt.get('prof'):
        a(f'''s_memrealtime s[80:81]
              s_waitcnt lgkmcnt(0)
              v_mov_b32 v24, s76
              v_mov_b32 v25, s78
              v_mov_b32 v26, s80
              v_mov_b32 v27, s99
              s_lshl_b32 s{sT}, s{sTASK}, 4
              s_add_u32 s{sT}, s{sT}, {240*MB}
              s_mov_b64 exec, 1
              buffer_store_dwordx4 v[24:27], v{vZ}, {W}, s{sT} offen
              s_mov_b64 exec, -1''')
    a('s_branch L_claim\n L_chk:')
    a(f'''s_mov_b32 s{sFIRST}, 0
          buffer_load_dword v21, v{vZ}, {DBG}, 0 offen offset:{D_TEAMF} sc1
          s_waitcnt vmcnt(0)''')
    a(f'v_mov_b32 v24, v21')
    bcast_ticket(a, 24, sT+8)
    a(f's_cmp_eq_u32 s{sT+8}, 0\n s_cbranch_scc1 L_tryrole')
    a(f's_cmp_lt_u32 s{sPH}, {len(PH)}\n s_cbranch_scc1 L_claim\n s_branch L_end')
    a('L_wdone:')
    if opt.get('prof'):
        a(f'''s_waitcnt vmcnt(0)
              s_memrealtime s[80:81]
              s_waitcnt lgkmcnt(0)
              v_mov_b32 v24, s80
              s_lshl_b32 s{sT}, s2, 2
              s_add_u32 s{sT}, s{sT}, {243*MB}
              s_mov_b64 exec, 1
              buffer_store_dword v24, v{vZ}, {W}, s{sT} offen
              s_mov_b64 exec, -1''')
    a('s_branch L_end')

    a('L_chain:')
    copt = dict(opt)
    Wc = W
    def kvwait(a, first):
        if first:
            L = a.label('kw')
            if opt.get('prof'): a('s_memrealtime s[62:63]')
            a(f'''s_lshl_b32 s{C.S_T0}, s{S_HEAD}, 13
                  s_add_u32 s{C.S_T0}, s{C.S_T0}, {WS_KM+6144}
                  s_mov_b32 s{C.S_T0+1}, {D_INIT}
                  s_mov_b32 s{C.S_T0+3}, 0
                  {L}:
                  s_add_u32 s{C.S_T0+3}, s{C.S_T0+3}, 1
                  s_cmp_gt_u32 s{C.S_T0+3}, 0x40000
                  s_cbranch_scc1 L_end
                  buffer_load_dword v16, v{C.PMZ+1}, {DBG}, s{C.S_T0+1} offen sc1
                  s_waitcnt vmcnt(0)
                  buffer_load_dword v17, v{C.PMZ+1}, {Wc}, s{C.S_T0} offen sc1
                  s_waitcnt vmcnt(0)
                  v_lshlrev_b32 v16, 1, v16
                  v_min_u32 v16, v16, v17
                  s_nop 0
                  v_readfirstlane_b32 s{C.S_T0+2}, v16
                  s_nop 3
                  s_cmp_lg_u32 s{C.S_T0+2}, 2
                  s_cbranch_scc1 {L}
                  v_mov_b32 v{C.vT+1}, 2''')
            if opt.get('prof'):
                a(f'''s_memrealtime s[64:65]
                      s_waitcnt lgkmcnt(0)
                      v_mov_b32 v16, s62
                      v_mov_b32 v17, s64
                      s_lshl_b32 s{C.S_T0}, s{S_HEAD}, 3
                      s_add_u32 s{C.S_T0}, s{C.S_T0}, {244*MB}
                      s_mov_b64 exec, 1
                      buffer_store_dwordx2 v[16:17], v{C.PMZ+1}, {Wc}, s{C.S_T0} offen
                      s_mov_b64 exec, -1''')
        else:
            L = a.label('kw'); Lx = a.label('kwx')
            a(f'''v_readlane_b32 s{C.S_T0}, v{C.vT+1}, 32
                  s_cmp_ge_u32 s{C.S_STEP}, 63
                  s_cselect_b32 s{C.S_T0}, 2, s{C.S_T0}
                  s_cmp_lg_u32 s{C.S_T0}, 2
                  s_cbranch_scc1 {L}e
                  {Lx}:''')
            def slow(a):
                a(f'''{L}e:
                  s_sub_u32 s{C.S_T0+1}, s{C.S_KXO}, {32*8192}
                  s_mov_b32 exec_lo, 0
                  {L}:
                  s_add_u32 s{C.S_TO}, s{C.S_TO}, 16
                  s_cmp_gt_u32 s{C.S_TO}, 0x400000
                  s_cbranch_scc1 L_end
                  buffer_load_dword v{C.vT+1}, v{C.vTch}, {Wc}, s{C.S_T0+1} offen sc1
                  s_waitcnt vmcnt(0)
                  v_readlane_b32 s{C.S_T0}, v{C.vT+1}, 32
                  s_sleep 2
                  s_cmp_lg_u32 s{C.S_T0}, 2
                  s_cbranch_scc1 {L}
                  s_mov_b64 exec, -1
                  s_branch {Lx}''')
            copt.setdefault('_ool', []).append(slow)
    def kmflag(a, last):
        if last: a(f's_mov_b32 s{C.S_T0}, 64')
        else: a(f's_max_u32 s{C.S_T0}, s{C.S_STEP}, 1\n s_sub_u32 s{C.S_T0}, s{C.S_T0}, 1')
        a(f'''v_mov_b32 v{C.vT}, s{C.S_T0}
              s_mov_b64 exec, 1
              buffer_store_dword v{C.vT}, v{C.PMZ+1}, {Wc}, s98 offen sc1
              s_mov_b64 exec, -1''')
    copt['kvcnt'] = 3
    copt['kvwait'] = kvwait; copt['kmflag'] = kmflag
    def hook(a, n):
        if n == 4:
            a(f'''s_cmp_eq_u32 s{S_XCC}, {opt.get('team_xcc',0)}
                  s_cselect_b32 s59, 1, 0x10001
                  s_cmp_lg_u32 s{S_WAVE}, 0
                  s_cbranch_scc1 L_h4
                  v_mov_b32 v0, s59
                  v_mov_b32 v{C.vIdx}, {D_TEAM}
                  s_mov_b64 exec, 1
                  buffer_atomic_add v0, v{C.vIdx}, {DBG}, 0 offen sc0
                  s_mov_b64 exec, -1
                  L_h4:''')
        if n == 6:
            a(f'''s_cmp_lg_u32 s{S_WAVE}, 0
                  s_cbranch_scc1 L_h6
                  s_mov_b64 exec, 1
                  v_add_u32 v0, s59, v0
                  v_and_b32 v{C.vIdx}, 0xffff, v0
                  v_cmp_eq_u32 vcc, 32, v{C.vIdx}
                  v_mov_b32 v{C.vIdx}, {D_TEAMF}
                  s_and_b64 exec, exec, vcc
                  s_cbranch_execz L_h6x
                  buffer_store_dword v0, v{C.vIdx}, {DBG}, 0 offen sc1
                  L_h6x:
                  s_mov_b64 exec, -1
                  L_h6:''')
    copt['hook'] = hook
    C.chain_setup(a, copt)
    a(f'''
    v_bfe_u32 v16, v{C.vLANE}, 1, 1
    v_mov_b32 v{C.vIdx}, 0x4444
    v_mov_b32 v17, 0xeeee
    v_cmp_eq_u32 vcc, 1, v16
    v_mov_b32 v18, {D_TEAMF}
    s_mov_b32 s{C.S_T0+3}, 0
    v_cndmask_b32 v{C.vIdx}, v{C.vIdx}, v17, vcc
    L_cspin:
    s_add_u32 s{C.S_T0+3}, s{C.S_T0+3}, 1
    s_cmp_gt_u32 s{C.S_T0+3}, 0x100000
    s_cbranch_scc1 L_end
    buffer_load_dword v16, v18, {DBG}, 0 offen sc1
    s_waitcnt vmcnt(0)
    v_readfirstlane_b32 s{C.S_T0}, v16
    s_nop 3
    s_cmp_eq_u32 s{C.S_T0}, 0
    s_cbranch_scc1 L_cspin
    s_mov_b32 s59, s{C.S_T0}
    ''')
    C.chain_masks(a)
    a(f'''s_lshl_b32 s98, s{S_HEAD}, 6
          s_add_u32 s{C.S_T0}, s98, {WS_FLAGS+F_CH}
          s_lshl_b32 s98, s98, 3
          s_lshl_b32 s{C.S_T0+1}, s{S_WAVE}, 7
          s_add_u32 s98, s98, s{C.S_T0+1}
          s_add_u32 s98, s98, {WS_FLAGS + 131072}
          s_cmp_eq_u32 s{S_WAVE}, 0
          s_cselect_b32 s98, s{C.S_T0}, s98''')
    a(f'''buffer_load_dwordx4 v[16:19], v{C.vOr}, {W}, s{C.S_INL} offen sc1
          buffer_load_dwordx4 v[20:23], v{C.vOr}, {W}, s{C.S_INL} offen offset:1024 sc1''')
    for s in range(1, C.RING):
        a(f'''s_mov_b32 s{C.S_T0}, {WS_MEM + s*8192}
              buffer_load_dwordx4 v[16:19], v{C.vMld}, {W}, s{C.S_T0} offen sc1
              buffer_load_dwordx4 v[20:23], v{C.vMld}, {W}, s{C.S_T0} offen offset:1024 sc1''')
    a(f's_waitcnt vmcnt(0)\n s_cmp_gt_u32 s59, 0xffff\n s_cbranch_scc1 L_slow')
    C.chain_loop(a, copt, '', 'f')
    a('s_branch L_end\n L_slow:')
    C.chain_loop(a, copt, 'sc1', 's')
    a('L_end:\n s_endpgm')
    a('.p2align 4\n.type task_table,@object\ntask_table:')
    for i in range(0, len(words), 8): a('.long ' + ', '.join(hex(x) for x in words[i:i+8]))
    a(f'.size task_table, {4*len(words)}')
    head = HDR + f'''; @launch grid=(256,1,1) block=(256,1,1) lds=163840
.amdgcn_target "amdgcn-amd-amdhsa--gfx950"
.text
.globl {NAME}
.p2align 8
.type {NAME},@function
{NAME}:
'''
    tail = f'''.section .rodata,"a"
.p2align 6
.amdhsa_kernel {NAME}
  .amdhsa_next_free_vgpr 512
  .amdhsa_next_free_sgpr 102
  .amdhsa_accum_offset 256
  .amdhsa_group_segment_fixed_size 0
  .amdhsa_kernarg_size 120
  .amdhsa_user_sgpr_count 2
  .amdhsa_user_sgpr_kernarg_segment_ptr 1
  .amdhsa_system_sgpr_workgroup_id_x 1
.end_amdhsa_kernel
'''
    return head + a.text() + tail

if __name__ == '__main__':
    out = sys.argv[1] if len(sys.argv) > 1 else 'parallel_sum__memory_aug_recurrent_mem_tr__mixer_gmlp__prompt.s'
    open(out,'w').write(gen({}))
```

```python
from common import *

S_WS   = 4
S_DBG  = 8
S_A    = 12
S_B    = 16
S_C    = 20
S_D    = 24
S_XCC  = 28
S_WAVE = 29
S_HEAD = 30
S_T0   = 31
S_STEP = 40
S_MEMO = 41
S_MEMN = 42
S_INO  = 43
S_KXO  = 44
S_VXO  = 45
S_KVL  = 46
S_INL  = 47
S_VMO  = 51
S_KMO  = 48
S_TO   = 49
S_C1   = 50
S_MT0  = 52
S_MT1  = 54
S_MST  = 56
S_PH   = 58
S_STAMP= 60

WREG = 36864
SH = 4*WREG
L_KV = 32768
PS = SH + 8192

vLANE=1; vL=2; vM=[3,4,5,6]; vN=[7,8,9,10]; vQTw=11; vQr=12; vKr=13; vOw=14; vOr=15
AF = lambda s: 16+4*s
ACC = [48,52,56,60]
SB = lambda i: 64+8*i
vIdx=96; vPst=97; vMld=98; vMst=99; vSel=100
VMQ=104; vKVr=108; vT=109; vKMst=111
PMZ=0
RESV=144
KXR=128; VXR=136
V0=112; V1=116; XA=[]; vOa=120
vTch = vKVr
RING = 4

def wfrag(mat, s, t):
    if mat == 'v': return ar(8*(2*s+t), 8)
    if mat == 'o':
        tp = t >> 1
        if tp == 3: return None
        return ar(128 + 8*(2*(2*tp+s) + (t&1)), 8)
    if mat == 'k':
        if s in (2,3): return ar(224 + 8*(2*(s-2)+t), 8)
        if s in (4,5): return vr(RESV + 8*(2*(s-4)+t), 8)
        return None
    if mat == 'q':
        if s < 2 or s == 7: return None
        return vr(RESV + 32 + 8*(2*(s-2)+t), 8)
STREAMED = [('q',0),('k',0),('q',1),('k',1),('k',6),('k',7),('o',(0,3)),('o',(1,3)),('q',7)]
def home(mat, key, t):
    return STREAMED.index((mat,key))*4096 + t*2048

def padd(d, x, y):
    return f'v_add_f32 v{d}, v{x}, v{y}\n v_add_f32 v{d+1}, v{x+1}, v{y+1}'
def smf(a, acc, A, B):
    a(f'v_smfmac_f32_16x16x64_bf16 {vr(acc,4)}, {vr(A,4)}, {B}, {vr(vIdx)}')

def chain_setup(a, opt):
    a(f'''
    s_load_dwordx4 s[{S_T0+1}:{S_T0+4}], s[0:1], 16
    s_load_dwordx4 s[{S_T0+5}:{S_T0+8}], s[0:1], 32
    v_and_b32 v{vLANE}, 63, v0
    s_waitcnt lgkmcnt(0)
    s_mov_b32 s{S_A}, s{S_T0+1}
    s_mov_b32 s{S_A+1}, s{S_T0+2}
    s_mov_b32 s{S_A+2}, 0x400000
    s_mov_b32 s{S_A+3}, 0x20000
    s_mov_b32 s{S_B}, s{S_T0+3}
    s_mov_b32 s{S_B+1}, s{S_T0+4}
    s_mov_b32 s{S_B+2}, 0x400000
    s_mov_b32 s{S_B+3}, 0x20000
    s_mov_b32 s{S_C}, s{S_T0+5}
    s_mov_b32 s{S_C+1}, s{S_T0+6}
    s_mov_b32 s{S_C+2}, 0x400000
    s_mov_b32 s{S_C+3}, 0x20000
    s_mov_b32 s{S_D}, s{S_T0+7}
    s_mov_b32 s{S_D+1}, s{S_T0+8}
    s_mov_b32 s{S_D+2}, 0x400000
    s_mov_b32 s{S_D+3}, 0x20000
    ''')
    sq, so_, aq, ao = 100, 101, 102, 110
    a(f'''
    v_lshrrev_b32 v20, 4, v{vLANE}
    v_and_b32 v21, 15, v{vLANE}
    v_lshlrev_b32 v{sq}, 13, v20
    v_lshl_add_u32 v{sq}, v21, 4, v{sq}
    s_lshl_b32 s{S_T0}, s{S_HEAD}, 8
    s_lshl_b32 s{S_T0+1}, s{S_WAVE}, 20
    s_add_u32 s{S_T0}, s{S_T0}, s{S_T0+1}
    v_add_u32 v{sq}, s{S_T0}, v{sq}
    v_lshlrev_b32 v{so_}, 10, v20
    v_lshl_add_u32 v{so_}, v21, 4, v{so_}
    s_lshl_b32 s{S_T0}, s{S_HEAD}, 17
    s_lshl_b32 s{S_T0+1}, s{S_WAVE}, 8
    s_add_u32 s{S_T0}, s{S_T0}, s{S_T0+1}
    v_add_u32 v{so_}, s{S_T0}, v{so_}
    s_mul_i32 s{S_T0+2}, s{S_WAVE}, {WREG}
    s_lshl_b32 s{S_T0+3}, s{S_WAVE}, 14
    ''')
    batches = opt.get('border', [('o',0),('o',1),('v',0),('v',1),('k',0),('k',1),('q',0),('q',1)])
    def issue(n):
        mat, p = batches[n]
        buf = (n & 1)*65536
        for i in range(16):
            if mat == 'o':
                a(f'''s_add_u32 m0, s{S_T0+3}, {buf + i*1024}
                      s_mov_b32 s{S_STEP}, {p*65536 + i*4096}
                      buffer_load_dwordx4 v{so_}, s[{S_D}:{S_D+3}], s{S_STEP} offen lds''')
            else:
                srd = {'q':S_A,'k':S_B,'v':S_C}[mat]
                a(f'''s_add_u32 m0, s{S_T0+3}, {buf + i*1024}
                      s_mov_b32 s{S_STEP}, {p*524288 + i*32768}
                      buffer_load_dwordx4 v{sq}, s[{srd}:{srd+3}], s{S_STEP} offen lds''')
    issue(0); issue(1)
    a(f'''
    v_lshrrev_b32 v22, 4, v{vLANE}            ; g
    v_and_b32 v23, 15, v{vLANE}               ; j / i
    v_bfe_u32 v24, v{vLANE}, 2, 2
    v_and_b32 v25, 3, v{vLANE}                ; c
    v_lshrrev_b32 v26, 1, v22                 ; g>>1
    v_and_b32 v27, 1, v22                     ; g&1
    v_lshrrev_b32 v28, 1, v24                 ; r>>1
    v_and_b32 v29, 1, v24                     ; r&1
    v_lshl_add_u32 v18, v26, 2, v27
    v_lshl_add_u32 v18, v28, 1, v18
    v_lshl_add_u32 v18, v29, 4, v18
    v_lshlrev_b32 v18, 8, v18
    v_lshl_add_u32 v18, v25, 4, v18
    s_lshl_b32 s{S_T0+4}, s{S_WAVE}, 6
    s_add_u32 s{S_T0+4}, s{S_T0+4}, s{S_T0+3}
    v_add_u32 v{aq}, s{S_T0+4}, v18
    v_xor_b32 v{aq+1}, 0x4000, v{aq}
    v_xor_b32 v{aq+2}, 0x8000, v{aq}
    v_xor_b32 v{aq+3}, 0xc000, v{aq}
    v_add_u32 v{aq+4}, 0x10000, v{aq}
    v_add_u32 v{aq+5}, 0x10000, v{aq+1}
    v_add_u32 v{aq+6}, 0x10000, v{aq+2}
    v_add_u32 v{aq+7}, 0x10000, v{aq+3}
    v_lshl_add_u32 v19, v26, 3, v29
    v_lshl_add_u32 v19, v27, 2, v19
    v_lshlrev_b32 v19, 8, v19
    v_lshl_add_u32 v19, v28, 5, v19
    v_lshl_add_u32 v19, v25, 3, v19
    v_add_u32 v{ao}, s{S_T0+3}, v19
    ; vL
    v_lshlrev_b32 v30, 4, v{vLANE}            ; lane*16
    v_add_u32 v{vL}, s{S_T0+2}, v30
    v_lshlrev_b32 v31, 2, v{vLANE}            ; lane*4
    ''')
    for p in range(4):
        a(f'''s_xor_b32 s{S_T0+4}, s{S_WAVE}, {p}
              s_lshl_b32 s{S_T0+4}, s{S_T0+4}, 11
              s_add_u32 s{S_T0+5}, s{S_T0+4}, {SH}
              v_add_u32 v{vM[p]}, s{S_T0+5}, v30
              s_add_u32 s{S_T0+5}, s{S_T0+4}, {PS+1024}
              v_add_u32 v{vN[p]}, s{S_T0+5}, v31''')
    a(f'''
    s_lshl_b32 s{S_T0+4}, s{S_WAVE}, 11
    s_add_u32 s{S_T0+4}, s{S_T0+4}, {PS}
    v_lshlrev_b32 v{vQTw}, 7, v22
    v_lshl_add_u32 v{vQTw}, v23, 2, v{vQTw}
    v_add_u32 v{vQTw}, s{S_T0+4}, v{vQTw}
    v_and_b32 v32, 7, v23                     ; m
    v_lshrrev_b32 v33, 3, v23                 ; T
    v_lshlrev_b32 v{vQr}, 6, v32
    v_lshl_add_u32 v{vQr}, v27, 4, v{vQr}
    v_mov_b32 v34, 1280
    v_cmp_eq_u32 vcc, v26, v33
    s_nop 1
    v_cndmask_b32 v{vQr}, v34, v{vQr}, vcc
    v_add_u32 v{vQr}, s{S_T0+4}, v{vQr}
    v_lshl_add_u32 v35, v24, 1, v26           ; key
    v_lshlrev_b32 v{vKr}, 6, v35
    v_lshl_add_u32 v{vKr}, v27, 4, v{vKr}
    v_add_u32 v{vKr}, s{S_T0+4}, v{vKr}
    v_add_u32 v{vKr}, 512, v{vKr}
    v_and_b32 v36, 1, v{vLANE}
    v_lshl_add_u32 v{vKr}, v36, 5, v{vKr}
    v_lshlrev_b32 v{vKMst}, 8, v35
    v_lshl_add_u32 v{vKMst}, v27, 4, v{vKMst}
    v_lshl_add_u32 v{vKMst}, v36, 5, v{vKMst}
    s_lshl_b32 s{S_T0+5}, s{S_WAVE}, 6
    v_add_u32 v{vKMst}, s{S_T0+5}, v{vKMst}
    v_cmp_eq_u32 s[{S_MT0}:{S_MT0+1}], 0, v33
    v_cmp_eq_u32 s[{S_MT1}:{S_MT1+1}], 1, v33
    v_lshlrev_b32 v{vOw}, 7, v22
    v_lshl_add_u32 v{vOw}, v32, 4, v{vOw}
    s_lshl_b32 s{S_T0+5}, s{S_WAVE}, 9         ; (w>>1)*1024 + (w&1)*512 = w*512
    s_add_u32 s{S_T0+5}, s{S_T0+5}, {SH}
    v_add_u32 v{vOw}, s{S_T0+5}, v{vOw}
    v_lshlrev_b32 v36, 4, v32
    v_lshl_add_u32 v36, v22, 7, v36
    v_add_u32 v36, s{S_T0+4}, v36
    v_add_u32 v36, 1536, v36
    v_cndmask_b32 v{vOw}, v{vOw}, v36, s[{S_MT1}:{S_MT1+1}]
    v_add_u32 v{vOr}, {SH}, v30
    v_bfe_u32 v38, v{vLANE}, 1, 1
    v_mov_b32 v{vIdx}, 0x4444
    v_mov_b32 v39, 0xeeee
    v_cmp_eq_u32 vcc, 1, v38
    s_nop 1
    v_cndmask_b32 v{vIdx}, v{vIdx}, v39, vcc
    s_lshl_b32 s{S_T0+5}, s{S_WAVE}, 3
    v_add_u32 v{vPst}, s{S_T0+5}, v22
    v_lshlrev_b32 v{vPst}, {opt.get('ins',14)}, v{vPst}
    v_lshl_add_u32 v{vPst}, v24, 11, v{vPst}
    v_lshl_add_u32 v{vPst}, v25, 4, v{vPst}
    s_lshl_b32 s{S_T0+5}, s{S_HEAD}, 6
    v_add_u32 v{vPst}, s{S_T0+5}, v{vPst}
    s_lshl_b32 s{S_T0+5}, s{S_HEAD}, {opt.get('ins',14)}
    s_lshl_b32 s{S_T0+6}, s{S_WAVE}, 11
    s_add_u32 s{S_T0+5}, s{S_T0+5}, s{S_T0+6}
    s_add_u32 s{S_INL}, s{S_T0+5}, {WS_INBOX - SH}
    v_lshlrev_b32 v{vMst}, 7, v26
    v_lshl_add_u32 v{vMst}, v25, 3, v{vMst}
    v_lshl_add_u32 v{vMst}, v27, 2, v{vMst}
    s_lshl_b32 s{S_T0+5}, s{S_HEAD}, 8
    s_lshl_b32 s{S_T0+6}, s{S_WAVE}, 5
    s_add_u32 s{S_T0+5}, s{S_T0+5}, s{S_T0+6}
    v_add_u32 v{vMst}, s{S_T0+5}, v{vMst}
    s_mov_b32 s{S_MST}, 0x000f000f
    s_mov_b32 s{S_MST+1}, 0x000f000f
    v_and_b32 v40, 1, v{vLANE}
    v_lshlrev_b32 v{vMld}, 8, v24
    v_lshl_add_u32 v{vMld}, v40, 7, v{vMld}
    v_lshl_add_u32 v{vMld}, v22, 5, v{vMld}
    v_lshl_add_u32 v{vMld}, v38, 4, v{vMld}
    s_lshl_b32 s{S_T0+5}, s{S_WAVE}, 11
    v_add_u32 v{vMld}, s{S_T0+5}, v{vMld}
    s_mov_b32 s{S_C1}, 0x3e0293ee      ; 128^-0.5 * log2(e)
    ''')
    ring = opt.get('ring', RING)
    a(f'''
    v_mov_b32 v44, -1
    v_mov_b32 v45, -1
    v_mov_b32 v46, -1
    v_mov_b32 v47, -1
    buffer_store_dwordx4 v[44:47], v{vOr}, s[{S_WS}:{S_WS+3}], s{S_INL} offen sc1
    buffer_store_dwordx4 v[44:47], v{vOr}, s[{S_WS}:{S_WS+3}], s{S_INL} offen offset:1024 sc1
    s_load_dwordx2 s[{S_T0+5}:{S_T0+6}], s[0:1], 8
    s_mov_b64 exec, s[{S_MST}:{S_MST+1}]
    ''')
    for s in range(1, ring):
        a(f'''s_mov_b32 s{S_T0+7}, {WS_MEM + s*8192}
              buffer_store_dword v44, v{vMst}, s[{S_WS}:{S_WS+3}], s{S_T0+7} offen sc1''')
    a(f'''
    s_mov_b64 exec, -1
    s_and_b32 s{S_T0+7}, s{S_HEAD}, 3
    s_lshl_b32 s{S_T0+7}, s{S_T0+7}, 11
    s_lshr_b32 s{S_T0+8}, s{S_HEAD}, 2
    s_lshl_b32 s{S_T0+8}, s{S_T0+8}, 7
    s_add_u32 s{S_T0+7}, s{S_T0+7}, s{S_T0+8}
    s_lshl_b32 s{S_T0+8}, s{S_WAVE}, 3
    s_add_u32 s{S_T0+7}, s{S_T0+7}, s{S_T0+8}
    v_lshlrev_b32 v41, 10, v26
    v_lshl_add_u32 v41, v25, 1, v41
    v_lshl_add_u32 v41, v27, 6, v41
    v_add_u32 v41, s{S_T0+7}, v41
    s_waitcnt lgkmcnt(0)
    global_load_ushort v48, v41, s[{S_T0+5}:{S_T0+6}]
    global_load_ushort v49, v41, s[{S_T0+5}:{S_T0+6}] offset:32
    ''')
    temps = [16+8*i for i in range(10)] + [112+8*i for i in range(4)]
    tmap = {}
    PARK = 131072
    for n,(mat,p) in enumerate(batches):
        buf = n & 1
        a(f's_waitcnt vmcnt({16 if n < 7 else 0})')
        if n == 2:
            a(f'''    v_lshl_or_b32 v48, v49, 16, v48
    v_min_u32 v48, -2, v48
    s_mov_b32 s{S_T0+7}, {WS_MEM}
    s_mov_b64 exec, s[{S_MST}:{S_MST+1}]
    buffer_store_dword v48, v{vMst}, s[{S_WS}:{S_WS+3}], s{S_T0+7} offen sc1
    s_mov_b64 exec, -1
''')
        if mat != 'o': a('s_barrier')
        if opt.get('hook'): opt['hook'](a, n)
        if mat == 'o':
            if buf: a(f'v_add_u32 v{ao}, 0x10000, v{ao}')
            for t in range(8):
                dst = wfrag('o', p, t)
                for rho in range(4):
                    if dst is None: d = vr(16 + 8*(t&1) + 2*rho, 2)
                    else:
                        f, base = dst[0], int(dst[2:dst.index(':')]); d = f'{f}[{base+2*rho}:{base+2*rho+1}]'
                    a(f'ds_read_b64_tr_b16 {d}, v{ao} offset:{(32*(t&1) + 16*(rho>>1) + 2*(rho&1))*256 + 64*(t>>1)}')
            if buf: a(f'v_subrev_u32 v{ao}, 0x10000, v{ao}')
            a('s_waitcnt lgkmcnt(0)')
            for t in range(2):
                for hf in range(2):
                    off = PARK + (2*p+t)*8192 + hf*1024 - SH
                    a(f'v_add_u32 v32, {off & 0xffffffff}, v{vM[0]}\n ds_write_b128 v32, {vr(16+8*t+4*hf,4)}')
        else:
            for pi in range(4):
                sg = 2*pi + p
                for t in range(2):
                    dst = wfrag(mat, sg, t)
                    if dst is None:
                        tmap[(mat,sg,t)] = temps.pop(0); dst = vr(tmap[(mat,sg,t)], 8)
                    f, base = dst[0], int(dst[2:dst.index(':')])
                    for rho in range(4):
                        a(f'ds_read_b64_tr_b16 {f}[{base+2*rho}:{base+2*rho+1}], v{aq+4*buf+pi} offset:{(32*(rho&1) + 8*(rho>>1))*256 + 8*t}')
        a('s_waitcnt lgkmcnt(0)\n s_barrier')
        if n + 2 < 8: issue(n+2)
    for (mat,sg,t),r in list(tmap.items())[:4]:
        pass
    items = list(tmap.items())
    low = [it for it in items if home(it[0][0],it[0][1],it[0][2]) + 2048 <= PARK - 3*WREG][:4]
    assert len(low) == 4
    def wr(key, r, k2=None):
        off = home(*key)
        a(f'ds_write_b128 v{vL}, {vr(r,4)} offset:{off}\n ds_write_b128 v{vL}, {vr(r+4,4)} offset:{off+1024}')
    for key,r in low: wr(key, r)
    a('s_waitcnt lgkmcnt(0)')
    for i,(key,r) in enumerate(low):
        for hf in range(2):
            off = PARK + i*8192 + hf*1024 - SH
            a(f'v_add_u32 v{ao}, {off & 0xffffffff}, v{vM[0]}\n ds_read_b128 {vr(r+4*hf,4)}, v{ao}')
    a('s_waitcnt lgkmcnt(0)\n s_barrier')
    for key,r in items:
        if (key,r) not in low: wr(key, r)
    for i,(key,r) in enumerate(low): wr(('o',(i>>1,3),i&1), r)
    a(f'''
    s_waitcnt lgkmcnt(0)
    v_lshrrev_b32 v22, 4, v{vLANE}
    v_and_b32 v23, 15, v{vLANE}
    v_bfe_u32 v24, v{vLANE}, 2, 2
    v_and_b32 v25, 3, v{vLANE}
    v_and_b32 v27, 1, v22
    v_lshrrev_b32 v28, 1, v24
    v_and_b32 v29, 1, v24
    v_mov_b32 v39, 0x3f80
    v_mov_b32 v40, 0x3f800000
    v_cmp_eq_u32 vcc, 1, v28
    s_nop 1
    v_cndmask_b32 v39, v39, v40, vcc
    v_cmp_gt_u32 vcc, 2, v25
    s_nop 1
    v_cndmask_b32 v39, 0, v39, vcc
    v_lshl_add_u32 v40, v29, 1, v25
    ''')
    for d in range(4):
        a(f'''v_cmp_eq_u32 vcc, {d}, v40
              s_nop 1
              v_cndmask_b32 v{vSel+d}, 0, v39, vcc''')
    a(f'''
    v_lshlrev_b32 v{vTch}, 7, v23
    v_lshl_add_u32 v{vTch}, v27, 24, v{vTch}
    v_add_u32 v{vTch}, {SH + 32*8192}, v{vTch}
    s_lshl_b32 s{S_T0+5}, s{S_WAVE}, 11
    s_sub_u32 s{S_T0+6}, {WS_KM + 6144 - WS_KX + SH + 2*32*8192}, s{S_T0+5}
    v_mov_b32 v40, s{S_T0+6}
    v_cmp_lt_u32 vcc, 31, v{vLANE}
    s_nop 1
    v_cndmask_b32 v{vTch}, v{vTch}, v40, vcc
    v_mov_b32 v42, 0
    ds_write_b32 v{vN[0]}, v42 offset:256
    v_and_b32 v40, 1, v{vLANE}
    v_lshl_add_u32 v40, v24, 1, v40            ; m = 2*(i>>2) + (i&1)
    v_lshlrev_b32 v{vOa}, 7, v22
    v_lshl_add_u32 v{vOa}, v40, 4, v{vOa}
    v_add_u32 v{vOa}, {SH}, v{vOa}
    s_waitcnt vmcnt(0) lgkmcnt(0)
    ''')

def chain_masks(a):
    a(f'''
    v_mov_b32 v{PMZ}, 0
    v_mov_b32 v{PMZ+1}, 0
    v_mov_b32 v{VMQ}, 0
    v_mov_b32 v{VMQ+1}, 0
    v_mov_b32 v{VMQ+2}, 0
    v_mov_b32 v{VMQ+3}, 0
    ''')

def stamp(a, opt, i, mode=1):
    if opt.get('stamps') == 3:
        if mode == 1 and i in (1,2,5,8,9,10,11): a(f's_memrealtime s[{S_STAMP+2*i}:{S_STAMP+2*i+1}]')
    elif opt.get('stamps') == 4:
        if (mode == 4) or (mode == 1 and i in (0,1,2,8,9,10,11)): a(f's_memtime s[{S_STAMP+2*i}:{S_STAMP+2*i+1}]')
    elif opt.get('stamps') == 5:
        if mode == 5 or (mode == 1 and i in (0,8,9,10,11)): a(f's_memtime s[{S_STAMP+2*i}:{S_STAMP+2*i+1}]')
    elif opt.get('stamps') == mode:
        a(f's_memtime s[{S_STAMP+2*i}:{S_STAMP+2*i+1}]')

def chain_loop(a, opt, st, tag):
    ring = opt.get('ring', RING)
    d1 = opt.get('d1', 7); d2 = opt.get('d2', 6)
    W = f's[{S_WS}:{S_WS+3}]'
    Q0,Q1,K0,K1 = ACC
    Ltop = f'L_step_{tag}'; P1 = f'L_p1_{tag}'; P2 = f'L_p2_{tag}'; Lfin = f'L_fin_{tag}'
    TO = lambda out: a(f's_add_u32 s{S_TO}, s{S_TO}, 1\n s_cmp_gt_u32 s{S_TO}, 0x100000\n s_cbranch_scc1 {out}')
    def zl(acc): return [f'v_mov_b32 v{acc+i}, 0' for i in range(4)]
    def zero(acc): a('\n'.join(zl(acc)))
    def sread(dst, mat, key, t):
        off = home(mat, key, t)
        a(f'ds_read_b128 {vr(dst,4)}, v{vL} offset:{off}\n ds_read_b128 {vr(dst+4,4)}, v{vL} offset:{off+1024}')
    a(f"""
    s_mov_b32 s{S_STEP}, 0
    s_mov_b32 s{S_MEMO}, {WS_MEM}
    s_mov_b32 s{S_MEMN}, {WS_MEM + 8192}
    s_mov_b32 s{S_INO}, {WS_INBOX}
    s_lshl_b32 s{S_T0}, s{S_HEAD}, 13
    s_lshl_b32 s{S_T0+1}, s{S_WAVE}, 11
    s_add_u32 s{S_KMO}, s{S_T0}, {WS_KM}
    s_add_u32 s{S_T0}, s{S_T0}, s{S_T0+1}
    s_add_u32 s{S_KXO}, s{S_T0}, {WS_KX - SH}
    s_add_u32 s{S_VXO}, s{S_T0}, {WS_VX - SH}
    s_add_u32 s{S_KVL}, s{S_KXO}, {62*32*8192}
    s_lshl_b32 s{S_T0+1}, s{S_WAVE}, 10
    s_add_u32 s{S_VMO}, s{S_KMO}, s{S_T0+1}
    s_add_u32 s{S_VMO}, s{S_VMO}, {2048 - SH - 32*8192}
    s_mov_b32 s{S_TO}, 0
    s_mov_b32 s{S_PH}, 0
    """)
    def kvload():
        return [f'buffer_load_dwordx4 {vr(KXR,4)}, v{vOr}, {W}, s{S_KXO} offen sc1',
                f'buffer_load_dwordx4 {vr(KXR+4,4)}, v{vOr}, {W}, s{S_KXO} offen offset:1024 sc1',
                f'buffer_load_dwordx4 {vr(VXR,4)}, v{vOr}, {W}, s{S_VXO} offen sc1',
                f'buffer_load_dwordx4 {vr(VXR+4,4)}, v{vOr}, {W}, s{S_VXO} offen offset:1024 sc1']
    def pre_sb():
        sread(SB(0),'k',0,1); sread(SB(1),'q',1,0); sread(SB(2),'q',1,1); sread(SB(3),'k',1,0)
    def pre_af():
        sread(AF(2),'q',0,0); sread(AF(4),'q',0,1); sread(AF(6),'k',0,0)
    def p2_loads():
        a(f"""buffer_load_dwordx4 {vr(AF(0),4)}, v{vMld}, {W}, s{S_MEMO} offen sc1
              buffer_load_dwordx4 {vr(AF(1),4)}, v{vMld}, {W}, s{S_MEMO} offen offset:1024 sc1""")
    if opt.get('kvwait'): opt['kvwait'](a, first=True)
    pre_sb(); pre_af()
    for x in ACC + [V0,V1] + XA: zero(x)
    D1p = opt.get('D1', 1); D2p = opt.get('D2', 1)
    chk2 = f"""
    v_max3_u32 v{vT}, v{AF(0)}, v{AF(0)+1}, v{AF(0)+2}
    v_max3_u32 v{vT}, v{vT}, v{AF(0)+3}, v{AF(1)}
    v_max3_u32 v{vT}, v{vT}, v{AF(1)+1}, v{AF(1)+2}
    v_max_u32 v{vT}, v{vT}, v{AF(1)+3}
    v_cmp_eq_u32 vcc, -1, v{vT}
    """
    p2_loads()
    a(f'{Ltop}:')
    stamp(a, opt, 0)
    a(f"""
    s_waitcnt vmcnt(1)
    ds_write_b128 v{vM[0]}, {vr(AF(0),4)}
    v_max3_u32 v{vT}, v{AF(0)}, v{AF(0)+1}, v{AF(0)+2}
    s_waitcnt vmcnt(0)
    ds_write_b128 v{vM[0]}, {vr(AF(1),4)} offset:1024
    v_max3_u32 v{vT}, v{vT}, v{AF(0)+3}, v{AF(1)}
    v_max3_u32 v{vT}, v{vT}, v{AF(1)+1}, v{AF(1)+2}
    v_max_u32 v{vT}, v{vT}, v{AF(1)+3}
    v_cmp_eq_u32 vcc, -1, v{vT}
    s_cbranch_vccnz {P2}
    """)
    ool = Asm()
    ool(f"""
    {P2}:
    s_mov_b64 exec, vcc
    buffer_load_dwordx4 {vr(AF(0),4)}, v{vMld}, {W}, s{S_MEMO} offen sc1
    buffer_load_dwordx4 {vr(AF(1),4)}, v{vMld}, {W}, s{S_MEMO} offen offset:1024 sc1
    s_mov_b64 exec, -1
    s_add_u32 s{S_TO}, s{S_TO}, 1
    s_cmp_gt_u32 s{S_TO}, 0x100000
    s_cbranch_scc0 {Ltop}
    s_waitcnt vmcnt(0)
    s_branch {P2}x
    """)
    a(f"""
    {P2}x:
    s_waitcnt lgkmcnt(2)
    """)
    stamp(a, opt, 1)
    kl = kvload()
    smf(a,Q0,AF(0),vr(AF(2),8)); a(kl[0])
    smf(a,Q1,AF(0),vr(AF(4),8)); a(kl[1])
    if opt.get('b1m'):
        a(kl[2]); smf(a,K0,AF(0),vr(AF(6),8)); a(kl[3])
        a('s_waitcnt lgkmcnt(0)\n s_barrier')
    else:
        smf(a,K0,AF(0),vr(AF(6),8)); a(kl[2])
        smf(a,K1,AF(0),vr(SB(0),8)); a(kl[3])
        a('s_waitcnt lgkmcnt(0)\n s_barrier')
    stamp(a, opt, 2)
    if opt.get('log'):
        a(f'''{'s_memrealtime' if opt.get('prof') else 's_memtime'} s[{S_STAMP}:{S_STAMP+1}]
              s_lshl_b32 s{S_STAMP+2}, s{S_HEAD}, 10
              s_lshl_b32 s{S_STAMP+3}, s{S_WAVE}, 8
              s_add_u32 s{S_STAMP+2}, s{S_STAMP+2}, s{S_STAMP+3}
              s_lshl_b32 s{S_STAMP+3}, s{S_STEP}, 2
              s_add_u32 s{S_STAMP+2}, s{S_STAMP+2}, s{S_STAMP+3}
              s_add_u32 s{S_STAMP+2}, s{S_STAMP+2}, {65536}
              s_waitcnt lgkmcnt(0)
              v_mov_b32 v{vT}, s{S_STAMP}
              s_mov_b64 exec, 1
              buffer_store_dword v{vT}, v{PMZ+1}, {W}, s{S_STAMP+2} offen
              s_mov_b64 exec, -1''')
    vseq = [(s,t) for s in range(8) for t in range(2)]
    def vm(n, fill=()):
        fill = list(fill)
        for _ in range(n):
            if not vseq: break
            s,t = vseq.pop(0)
            smf(a, V0 if t == 0 else V1, AF(s), wfrag('v',s,t))
            a('\n'.join(fill[:2])); fill = fill[2:]
        a('\n'.join(fill))
    rd = []
    for p in (1,2,3):
        rd += [f'ds_read_b128 {vr(AF(2*p),4)}, v{vM[p]}', f'ds_read_b128 {vr(AF(2*p+1),4)}, v{vM[p]} offset:1024']
    a(rd[0]); a(rd[1])
    if opt.get('kvwait'): opt['kvwait'](a, first=False)
    a(f's_min_u32 s{S_T0+2}, s{S_KXO}, s{S_KVL}\n buffer_load_dword v{vT+1}, v{vTch}, {W}, s{S_T0+2} offen sc1')
    smf(a,Q0,AF(1),vr(SB(1),8)); a(rd[2]); a(rd[3])
    smf(a,Q1,AF(1),vr(SB(2),8)); a(rd[4]); a(rd[5])
    smf(a,K0,AF(1),vr(SB(3),8))
    if opt.get('kmflag'): opt['kmflag'](a, last=False)
    a(f's_add_u32 s{S_KXO}, s{S_KXO}, {opt.get("kvs",32*8192)}\n s_add_u32 s{S_VXO}, s{S_VXO}, {opt.get("kvs",32*8192)}')
    if opt.get('b1m'): smf(a,K1,AF(0),vr(SB(0),8))
    vm(1 if opt.get('b1m') else 2)
    vm(opt.get('v0',0))
    def sr1(dst, mat, key, t, half):
        return f'ds_read_b128 {vr(dst+4*half,4)}, v{vL} offset:{home(mat,key,t)+1024*half}'
    late = [(SB(0),'q',7,0),(SB(1),'q',7,1),(SB(2),'k',1,1),(SB(3),'k',6,0)]
    for s in range(2,7):
        a(f's_waitcnt lgkmcnt({7-s + (0 if s<=2 else 2*min(s-2,4))})')
        smf(a,Q0,AF(s),wfrag('q',s,0))
        if s < 6: a(sr1(*late[s-2],0))
        smf(a,Q1,AF(s),wfrag('q',s,1))
        if s < 6: a(sr1(*late[s-2],1))
        if s == opt.get('vmpos',6) and opt.get('nokm') not in (1,3): a(f'buffer_store_dwordx4 {vr(VMQ,4)}, v{vOr}, {W}, s{S_VMO} offen sc1\n s_add_u32 s{S_VMO}, s{S_VMO}, {32*8192}')
    a('s_waitcnt lgkmcnt(2)')
    smf(a,Q0,AF(7),vr(SB(0),8)); smf(a,Q1,AF(7),vr(SB(1),8))
    stamp(a, opt, 3)
    smf(a,K1,AF(1),vr(SB(2),8))
    more = [sr1(SB(0),'k',6,1,0), sr1(SB(0),'k',6,1,1), sr1(SB(1),'k',7,0,0), sr1(SB(1),'k',7,0,1), sr1(SB(2),'k',7,1,0), sr1(SB(2),'k',7,1,1)]
    a(more.pop(0))
    for s in (2,3,4,5):
        smf(a,K0,AF(s),wfrag('k',s,0))
        if more: a(more.pop(0))
        if s == 3: a(padd(Q0,Q0,Q0+2))
        if s == 4: a(f'v_cvt_pk_bf16_f32 v{vT}, v{Q0}, v{Q1}\n v_cvt_pk_bf16_f32 v{PMZ}, v{Q0+1}, v{Q1+1}')
        if s == 5: a('\n'.join(zl(Q0)[:2]))
        smf(a,K1,AF(s),wfrag('k',s,1))
        if more: a(more.pop(0))
        if s == 3: a(padd(Q1,Q1,Q1+2))
        if s == 4: a(f'ds_write2_b32 v{vQTw}, v{vT}, v{PMZ} offset0:0 offset1:16')
        if s == 5: a('\n'.join(zl(Q0)[2:]))
    a('s_waitcnt lgkmcnt(1)')
    QB, KX, KM, DX, DM = SB(3), KXR, SB(0), SB(1), SB(1)+4
    smf(a,K0,AF(6),vr(SB(3),8)); a('\n'.join(zl(Q1)[:2]))
    smf(a,K1,AF(6),vr(SB(0),8)); a('\n'.join(zl(Q1)[2:]))
    smf(a,K0,AF(7),vr(SB(1),8))
    a(f'ds_read_b128 {vr(QB,4)}, v{vQr}')
    smf(a,K1,AF(7),vr(SB(2),8))
    a(f'ds_read_b128 {vr(QB+4,4)}, v{vQr} offset:32')
    stamp(a, opt, 4)
    vm(2)
    a(f"""
    s_nop 0
    {padd(K0,K0,K0+2)}
    {padd(K1,K1,K1+2)}
    v_cvt_pk_bf16_f32 v{vT}, v{K0}, v{K1}
    v_cvt_pk_bf16_f32 v{PMZ}, v{K0+1}, v{K1+1}
    ds_write2_b32 v{vQTw}, v{vT}, v{PMZ} offset0:128 offset1:144
    ds_read_b128 {vr(KM,4)}, v{vKr}
    ds_read_b128 {vr(KM+4,4)}, v{vKr} offset:32
    s_waitcnt lgkmcnt(3) vmcnt({opt.get('kvcnt',2)})
    v_mfma_f32_16x16x32_bf16 {vr(DX,4)}, {vr(KX,4)}, {vr(QB,4)}, 0
    v_mfma_f32_16x16x32_bf16 {vr(DX,4)}, {vr(KX+4,4)}, {vr(QB+4,4)}, {vr(DX,4)}
    """)
    vm(opt.get('va',3), zl(K0)+zl(K1)[:2])
    a(f"""
    s_waitcnt lgkmcnt(0)
    v_mfma_f32_16x16x32_bf16 {vr(DM,4)}, {vr(KM,4)}, {vr(QB,4)}, 0
    v_mfma_f32_16x16x32_bf16 {vr(DM,4)}, {vr(KM+4,4)}, {vr(QB+4,4)}, {vr(DM,4)}
    ds_write_b128 v{vM[0]}, {vr(DX,4)} offset:8192
    """)
    vm(2, zl(K1)[2:])
    a(f"""
    s_nop 0
    ds_write_b32 v{vN[0]}, v{DM}
    """)
    vm(opt.get('vb',3), [] if opt.get('nokm') in (1,2) else [f'buffer_store_dwordx4 {vr(KM,4)}, v{vKMst}, {W}, s{S_KMO} offen sc1'])
    a('s_waitcnt lgkmcnt(0)\n s_barrier')
    stamp(a, opt, 5)
    X1, X2, X3, MM = SB(3), SB(3)+4, SB(2), SB(2)+4
    VX = VXR
    a(f"""
    ds_read_b128 {vr(X1,4)}, v{vM[1]} offset:8192
    ds_read_b32 v{MM}, v{vN[1]}
    """)
    vm(16, [f'ds_read_b128 {vr(X2,4)}, v{vM[2]} offset:8192', f'ds_read_b32 v{MM+1}, v{vN[2]}',
            f'ds_read_b128 {vr(X3,4)}, v{vM[3]} offset:8192', f'ds_read_b32 v{MM+2}, v{vN[3]}'])
    a(f's_cmp_eq_u32 s{S_STEP}, 63\n s_cbranch_scc1 {Lfin}')
    pa = (lambda d,x,y: f'v_pk_add_f32 {vr(d,2)}, {vr(x,2)}, {vr(y,2)}') if opt.get('pk2',1) else padd
    a(f"""
    s_waitcnt lgkmcnt(4)
    {pa(DX,DX,X1)}
    {pa(DX+2,DX+2,X1+2)}
    v_add_f32 v{DM}, v{DM}, v{MM}
    s_waitcnt lgkmcnt(2)
    {pa(DX,DX,X2)}
    {pa(DX+2,DX+2,X2+2)}
    v_add_f32 v{DM}, v{DM}, v{MM+1}
    s_waitcnt lgkmcnt(0)
    {pa(DX,DX,X3)}
    {pa(DX+2,DX+2,X3+2)}
    v_add_f32 v{DM}, v{DM}, v{MM+2}
    """)
    stamp(a, opt, 6)
    PX = SB(3)
    mx, tt, E = SB(2), SB(2)+1, SB(2)+2
    DPP = 'row_ror:8 row_mask:0xf bank_mask:0xf'
    a(f"""
    v_max3_f32 v{mx}, v{DX}, v{DX+1}, v{DX+2}
    v_max3_f32 v{mx}, v{mx}, v{DX+3}, v{DM}
    {padd(V0,V0,V0+2)}
    v_max_f32_dpp v{mx}, v{mx}, v{mx} {DPP}
    v_mov_b32 v{tt}, v{mx}
    {padd(V1,V1,V1+2)}
    v_permlane16_swap_b32 v{mx}, v{tt}
    v_max_f32 v{mx}, v{mx}, v{tt}
    v_mov_b32 v{tt}, v{mx}
    v_cvt_pk_bf16_f32 v{VMQ}, v{V0}, v{V0+1}
    v_cvt_pk_bf16_f32 v{VMQ+2}, v{V1}, v{V1+1}
    v_permlane32_swap_b32 v{mx}, v{tt}
    v_max_f32 v{mx}, v{mx}, v{tt}
    v_mul_f32 v{mx}, s{S_C1}, v{mx}
    v_fma_f32 v{E}, v{DX}, s{S_C1}, -v{mx}
    v_fma_f32 v{E+1}, v{DX+1}, s{S_C1}, -v{mx}
    v_exp_f32 v{E}, v{E}
    v_fma_f32 v{E+2}, v{DX+2}, s{S_C1}, -v{mx}
    v_exp_f32 v{E+1}, v{E+1}
    v_fma_f32 v{E+3}, v{DX+3}, s{S_C1}, -v{mx}
    v_exp_f32 v{E+2}, v{E+2}
    v_fma_f32 v{E+4}, v{DM}, s{S_C1}, -v{mx}
    v_exp_f32 v{E+3}, v{E+3}
    v_cvt_pk_bf16_f32 v{PX}, v{E}, v{E+1}
    v_exp_f32 v{E+4}, v{E+4}
    v_cvt_pk_bf16_f32 v{PX+1}, v{E+2}, v{E+3}
    v_mov_b32_dpp v{PX+2}, v{PX} {DPP}
    v_add_f32 v{mx}, v{E}, v{E+1}
    v_mov_b32_dpp v{PX+3}, v{PX+1} {DPP}
    v_mov_b32_dpp v{tt}, v{E+4} {DPP}
    s_nop 0
    """)
    stamp(a, opt, 7)
    D0, D1 = V0, V1
    t2 = SB(2)+7
    a(f"""
    v_mfma_f32_16x16x32_bf16 {vr(D0,4)}, {vr(VX,4)}, {vr(PX,4)}, 0
    v_cvt_pk_bf16_f32 v{PMZ}, v{E+4}, v{tt}
    v_add_f32 v{t2}, v{E+2}, v{E+3}
    v_mfma_f32_16x16x32_bf16 {vr(D1,4)}, {vr(VX+4,4)}, {vr(PX,4)}, 0
    v_add_f32 v{mx}, v{mx}, v{t2}
    v_add_f32 v{mx}, v{mx}, v{E+4}
    v_mfma_f32_16x16x16_bf16 {vr(D0,4)}, {vr(VMQ,2)}, {vr(PMZ,2)}, {vr(D0,4)}
    {sr1(AF(0),'o',(0,3),0,0)}
    v_add_f32_dpp v{mx}, v{mx}, v{mx} {DPP}
    v_mfma_f32_16x16x16_bf16 {vr(D1,4)}, {vr(VMQ+2,2)}, {vr(PMZ,2)}, {vr(D1,4)}
    v_mov_b32 v{tt}, v{mx}
    {sr1(AF(0),'o',(0,3),0,1)}
    {sr1(AF(2),'o',(1,3),0,0)}
    v_permlane16_swap_b32 v{mx}, v{tt}
    v_add_f32 v{mx}, v{mx}, v{tt}
    v_mov_b32 v{tt}, v{mx}
    {sr1(AF(2),'o',(1,3),0,1)}
    s_nop 0
    v_permlane32_swap_b32 v{mx}, v{tt}
    v_add_f32 v{mx}, v{mx}, v{tt}
    v_rcp_f32 v{mx}, v{mx}
    s_nop 0
    """)
    OW = SB(3)
    if opt.get('pk',1):
        for r in (0,2): a(f'v_pk_mul_f32 {vr(D0+r,2)}, {vr(D0+r,2)}, {vr(mx,2)} op_sel_hi:[1,0]')
    else:
        for r in range(4): a(f'v_mul_f32 v{D0+r}, v{D0+r}, v{mx}')
    a(f'v_cvt_pk_bf16_f32 v{OW}, v{D0}, v{D0+1}\n v_cvt_pk_bf16_f32 v{OW+1}, v{D0+2}, v{D0+3}')
    if opt.get('pk',1):
        for r in (0,2): a(f'v_pk_mul_f32 {vr(D1+r,2)}, {vr(D1+r,2)}, {vr(mx,2)} op_sel_hi:[1,0]')
    else:
        for r in range(4): a(f'v_mul_f32 v{D1+r}, v{D1+r}, v{mx}')
    a(f"""
    v_cvt_pk_bf16_f32 v{OW+2}, v{D1}, v{D1+1}
    v_cvt_pk_bf16_f32 v{OW+3}, v{D1+2}, v{D1+3}
    ds_write_b128 v{vOw}, {vr(OW,4)}
    """)
    accs = [Q0, Q1, K0, K1]
    a('s_waitcnt lgkmcnt(0)\n s_barrier')
    stamp(a, opt, 8)
    OF = SB(0)
    for ks in range(4): a(f'ds_read_b128 {vr(OF+4*ks,4)}, v{vOa} offset:{512*ks}')
    OUT = SB(2)
    def wo(ks, tp):
        r = wfrag('o', ks>>1, 2*tp + (ks&1))
        if r: return r
        return {0:vr(AF(0),8), 2:vr(AF(2),8), 1:vr(AF(4),8), 3:vr(AF(6),8)}[ks]
    def post(tp):
        x = accs[tp]
        return [f'v_cvt_pk_bf16_f32 v{OUT+2*tp}, v{x}, v{x+1}', f'v_cvt_pk_bf16_f32 v{OUT+2*tp+1}, v{x+2}, v{x+3}',
                f'v_bfi_b32 v{OUT+2*tp}, 1, s{S_PH}, v{OUT+2*tp}', f'v_bfi_b32 v{OUT+2*tp+1}, 1, s{S_PH}, v{OUT+2*tp+1}']
    late = [sr1(AF(4),'o',(0,3),1,0), sr1(AF(4),'o',(0,3),1,1), sr1(AF(6),'o',(1,3),1,0), sr1(AF(6),'o',(1,3),1,1)]
    for ks in range(4):
        a(f's_waitcnt lgkmcnt({3-ks})')
        smf(a, accs[0], OF+4*ks, wo(ks,0)); smf(a, accs[1], OF+4*ks, wo(ks,1))
    seq = [(2,0),(2,1),(2,2),(2,3),(3,0),(3,2),(3,1),(3,3)]
    p01 = post(0) + post(1)
    for n,(tp,ks) in enumerate(seq):
        if n == 6: a('s_waitcnt lgkmcnt(0)')
        smf(a, accs[tp], OF+4*ks, wo(ks,tp))
        if n < 2: a('\n'.join(late[2*n:2*n+2]))
        if 2 <= n < 5:
            k = 3 if n < 4 else 2
            a('\n'.join(p01[:k])); p01 = p01[k:]
        if n == 4: a(f'buffer_store_dwordx4 {vr(OUT,4)}, v{vPst}, {W}, s{S_INO} offen {st}')
        if n == 6: a('\n'.join(post(2)[:2]))
    a(f's_add_u32 s{S_T0}, s{S_INO}, {4 << opt.get("ins",14)}')
    a('\n'.join(post(2)[2:]))
    a('s_nop 4')
    a('\n'.join(post(3)))
    a(f'buffer_store_dwordx4 {vr(OUT+4,4)}, v{vPst}, {W}, s{S_T0} offen {st}')
    stamp(a, opt, 9)
    R0, R1, RD = AF(0), AF(1), AF(4)
    pre_sb()
    fill = [f'v_mov_b32 v{RD+4+i}, -1' for i in range(2)]
    for x in [Q0,Q1,V0,V1] + XA + [K0,K1]: fill += zl(x)
    a('\n'.join(fill))
    Ld = a.label('d1')
    a('s_nop 7\n'*opt.get('d1e', 1))
    a(f's_bitcmp0_b32 s{S_HEAD}, 2\n s_cbranch_scc1 {Ld}')
    a('s_nop 7\n'*opt.get('d1x', 4))
    a(f'{Ld}:')
    a(f"""buffer_load_dwordx4 {vr(R0,4)}, v{vOr}, {W}, s{S_INL} offen sc1
          buffer_load_dwordx4 {vr(R1,4)}, v{vOr}, {W}, s{S_INL} offen offset:1024 sc1""")
    ool(f"""
    {P1}:
    s_mov_b64 exec, vcc
    buffer_load_dwordx4 {vr(R0,4)}, v{vOr}, {W}, s{S_INL} offen sc1
    buffer_load_dwordx4 {vr(R1,4)}, v{vOr}, {W}, s{S_INL} offen offset:1024 sc1
    s_mov_b64 exec, -1
    s_add_u32 s{S_TO}, s{S_TO}, 1
    s_cmp_gt_u32 s{S_TO}, 0x100000
    s_cbranch_scc0 {P1}c
    s_waitcnt vmcnt(0)
    s_branch {P1}x
    """)
    a(f"""
    {P1}c:
    s_waitcnt vmcnt(1)
    v_mfma_f32_16x16x32_bf16 {vr(RD,4)}, {vr(vSel,4)}, {vr(R0,4)}, 0
    v_bitop3_b32 v{vT}, v{R0}, v{R0+1}, s{S_PH} bitop3:0x7e
    v_bitop3_b32 v{RD+6}, v{R0+2}, v{R0+3}, s{S_PH} bitop3:0x7e
    s_waitcnt vmcnt(0)
    v_mfma_f32_16x16x32_bf16 {vr(RD,4)}, {vr(vSel,4)}, {vr(R1,4)}, {vr(RD,4)}
    v_bitop3_b32 v{RD+7}, v{R1}, v{R1+1}, s{S_PH} bitop3:0x7e
    v_or3_b32 v{vT}, v{vT}, v{RD+6}, v{RD+7}
    v_bitop3_b32 v{RD+6}, v{R1+2}, v{R1+3}, s{S_PH} bitop3:0x7e
    v_bitop3_b32 v{vT}, v{vT}, v{RD+6}, 1 bitop3:0xa8
    v_cmp_ne_u32 vcc, 0, v{vT}
    s_nop 0
    s_cbranch_vccnz {P1}
    {P1}x:
    s_nop 0
    """)
    stamp(a, opt, 10)
    a(f"""
    v_add_f32_dpp v{RD}, v{RD}, v{RD} row_ror:8 row_mask:0xf bank_mask:0xf
    v_add_f32_dpp v{RD+1}, v{RD+1}, v{RD+1} row_ror:8 row_mask:0xf bank_mask:0xf
    s_nop 0
    v_add_f32_dpp v{RD}, v{RD}, v{RD} row_ror:4 row_mask:0xf bank_mask:0xf
    v_add_f32_dpp v{RD+1}, v{RD+1}, v{RD+1} row_ror:4 row_mask:0xf bank_mask:0xf
    s_mov_b64 exec, s[{S_MST}:{S_MST+1}]
    v_cvt_pk_bf16_f32 v{vT}, v{RD}, v{RD+1}
    buffer_store_dword v{vT}, v{vMst}, {W}, s{S_MEMN} offen {st}
    """)
    if ring < 64:
        a(f'buffer_store_dword v{RD+4}, v{vMst}, {W}, s{S_MEMO} offen {st}')
    a(f"""
    s_mov_b64 exec, -1
    s_add_u32 s{S_STEP}, s{S_STEP}, 1
    s_mov_b32 s{S_MEMO}, s{S_MEMN}
    s_add_u32 s{S_T0}, s{S_STEP}, 1
    s_and_b32 s{S_T0}, s{S_T0}, {ring-1}
    s_lshl_b32 s{S_T0}, s{S_T0}, 13
    s_add_u32 s{S_MEMN}, s{S_T0}, {WS_MEM}
    s_xor_b32 s{S_PH}, s{S_PH}, 1
    s_add_u32 s{S_KMO}, s{S_KMO}, {opt.get('kms',32*8192)}
    """)
    stamp(a, opt, 11)
    if opt.get('stamps'):
        L = a.label('ns')
        a(f's_waitcnt lgkmcnt(0)\n s_cmp_eq_u32 s{S_STEP}, {opt.get("sstep",43)+1}\n s_cbranch_scc0 {L}')
        for i in range(12): a(f's_mov_b32 s{84+i}, s{S_STAMP+2*i}')
        a(f'{L}:')
    pre_af()
    a('s_nop 7\n'*d2)
    if opt.get('d2x',4):
        L2 = a.label('d2')
        a(f's_bitcmp1_b32 s{S_HEAD}, 2\n s_cbranch_scc1 {L2}')
        a('s_nop 7\n'*opt.get('d2x',4))
        a(f'{L2}:')
    p2_loads()
    a(f's_branch {Ltop}')
    a.l += ool.l
    for f in opt.get('_ool',[]): f(a)
    opt['_ool'] = []
    a(f'{Lfin}:')
    a(f"""s_nop 7
    {padd(V0,V0,V0+2)}
    {padd(V1,V1,V1+2)}
    v_cvt_pk_bf16_f32 v{VMQ}, v{V0}, v{V0+1}
    v_cvt_pk_bf16_f32 v{VMQ+2}, v{V1}, v{V1+1}
    """)
    a(f'buffer_store_dwordx4 {vr(VMQ,4)}, v{vOr}, {W}, s{S_VMO} offen sc1')
    a('s_waitcnt vmcnt(0) lgkmcnt(0)\n s_barrier')
    if opt.get('kmflag'): opt['kmflag'](a, last=True)
```

```python
from common import *
from worker import *
from chain import S_WAVE, S_B

STF = 'sc1'
NB = 6; BST = 16384; EPA = 0; BR = 65536
ACC = 128
sPK_=12; sPV_=14; sPQ_=20; sPW_=22
sL0=24
sCUR=41; sNXT=43
vB8=vAe; vB3=vAo
vBu=[vAc, vAc+1, vAc+2, vAc+3]
vBb=[24,25,26,27]

def loader_switch(a, ent, TY):
    a(f'''
    s_and_b32 s{sT}, s{ent}, 15
    s_bfe_u32 s{sT+1}, s{ent}, 0x8000c
    s_mov_b32 s{S_B}, s{sPK_}
    s_mov_b32 s{S_B+1}, s{sPK_+1}
    s_cmp_eq_u32 s{sT}, {TY['V']}
    s_cselect_b32 s{S_B}, s{sPV_}, s{S_B}
    s_cselect_b32 s{S_B+1}, s{sPV_+1}, s{S_B+1}
    s_cmp_eq_u32 s{sT}, {TY['Q']}
    s_cselect_b32 s{S_B}, s{sPQ_}, s{S_B}
    s_cselect_b32 s{S_B+1}, s{sPQ_+1}, s{S_B+1}
    s_mov_b32 s{S_B+2}, 0x400000
    s_mov_b32 s{sLDB}, 8192
    s_cmp_eq_u32 s{sT}, {TY['WIN']}
    s_cselect_b32 s{S_B}, s{sPW_}, s{S_B}
    s_cselect_b32 s{S_B+1}, s{sPW_+1}, s{S_B+1}
    s_cselect_b32 s{S_B+2}, {512*3584}, s{S_B+2}
    s_cselect_b32 s{sLDB}, 3584, s{sLDB}
    s_cselect_b64 vcc, -1, 0
    s_mov_b32 s{S_B+3}, 0x20000
    v_cndmask_b32 v{vBs}, v{vB8}, v{vB3}, vcc
    s_lshl_b32 s{sB4}, s{sLDB}, 2
    s_lshl_b32 s{sT+2}, s{sLDB}, 4
    s_mul_i32 s{sT+2}, s{sT+2}, s{S_WAVE}
    s_lshl_b32 s{sBK}, s{sT+1}, 8
    s_add_u32 s{sBK}, s{sBK}, s{sT+2}
    ''')

def bdma():
    out = []
    for i in range(4):
        out.append([f's_add_u32 m0, s{sDST}, {BR+i*1024}',
                    f's_add_u32 s{sY}, s{sY}, s{sB4}' if i else f's_mov_b32 s{sY}, s{sBK}',
                    f'buffer_load_dwordx4 v{vBs}, {SBd}, s{sY} offen lds'])
    out[-1] += [f's_lshl_b32 s{sT}, s{sLDB}, 6', f's_add_u32 s{sBK}, s{sBK}, s{sT}',
                f's_add_u32 s{sDST}, s{sDST}, {BST}', f's_cmp_ge_u32 s{sDST}, {NB*BST}',
                f's_cselect_b32 s{sT}, {NB*BST}, 0', f's_sub_u32 s{sDST}, s{sDST}, s{sT}']
    return out

def g1_start(a, TY):
    a(f'''
    s_load_dwordx4 s[{sT+1}:{sT+4}], s[0:1], 16
    s_load_dwordx2 s[{sT+5}:{sT+6}], s[0:1], 32
    s_load_dwordx2 s[{sT+7}:{sT+8}], s[0:1], 64
    v_lshrrev_b32 v21, 3, v{vLN}
    v_lshlrev_b32 v21, 10, v21
    v_and_b32 v22, 7, v{vLN}
    v_lshrrev_b32 v23, 4, v{vLN}
    v_xor_b32 v22, v22, v23
    v_lshl_add_u32 v28, v22, 4, v21
    v_xor_b32 v29, 64, v28
    s_lshl_b32 s{sAK}, s{sBLK}, 18
    s_lshl_b32 s{sT}, s{S_WAVE}, 16
    s_add_u32 s{sAK}, s{sAK}, s{sT}
    s_add_u32 s{sAK}, s{sAK}, {WS_XN}
    s_lshl_b32 s{sM0}, s{S_WAVE}, 15
    s_lshl_b32 s{sT}, s{sWM}, 13
    s_sub_u32 s{sT}, s{sM0}, s{sT}
    v_add_u32 v{vAc}, s{sT}, v{vAr}
    v_add_u32 v{vAc+1}, s{sT}, v{vAr+1}
    v_add_u32 v{vAc+2}, s{sT}, v{vAr+2}
    v_add_u32 v{vAc+3}, s{sT}, v{vAr+3}
    v_lshrrev_b32 v21, 4, v{vLN}
    v_and_b32 v23, 15, v{vLN}
    v_lshlrev_b32 v22, 2, v21
    v_xor_b32 v23, v23, v22
    v_lshlrev_b32 v23, 4, v23
    v_lshl_add_u32 v{vB8}, v21, 13, v23
    v_mul_u32_u24 v22, 3584, v21
    v_add_u32 v{vB3}, v22, v23
    s_lshl_b32 s{sT}, s{sWN}, 7
    v_xor_b32 v{vBb[0]}, s{sT}, v{vBr}
    v_add_u32 v{vBb[0]}, {BR-16384}, v{vBb[0]}
    v_xor_b32 v{vBb[1]}, 64, v{vBb[0]}
    v_xor_b32 v{vBb[2]}, 128, v{vBb[0]}
    v_xor_b32 v{vBb[3]}, 192, v{vBb[0]}
    s_waitcnt lgkmcnt(0)
    s_mov_b32 s{sPQ_}, s{sT+1}
    s_mov_b32 s{sPQ_+1}, s{sT+2}
    s_mov_b32 s{sPK_}, s{sT+3}
    s_mov_b32 s{sPK_+1}, s{sT+4}
    s_mov_b32 s{sPV_}, s{sT+5}
    s_mov_b32 s{sPV_+1}, s{sT+6}
    s_mov_b32 s{sPW_}, s{sT+7}
    s_mov_b32 s{sPW_+1}, s{sT+8}
    ''')

def g1_load_a(a):
    def issue(c):
        for i in range(8):
            a(f'''s_add_u32 m0, s{sM0}, {(c&3)*8192 + i*1024}
                  s_add_u32 s{sX}, s{sAK}, {c*128 + i*8192}
                  buffer_load_dwordx4 v{29 if i&1 else 28}, {W}, s{sX} offen sc1 lds''')
    for c in range(4): issue(c)
    for c in range(8):
        a(f's_waitcnt vmcnt({8*min(3,7-c)})')
        for ks in range(4):
            for mt in range(2):
                a(f'ds_read_b128 {ar(128*mt + 16*c + 4*ks,4)}, v{vAc+ks} offset:{(c&3)*8192 + mt*4096}')
        if c + 4 < 8:
            a('s_waitcnt lgkmcnt(0)')
            issue(c+4)
    a('s_waitcnt lgkmcnt(0)\n s_barrier')

def g1_tile(a, swapped, tag, TY):
    Fb = FR
    def reads(ks, buf):
        b = Fb + 16*buf
        return [f'ds_read_b64_tr_b16 {vr(b+4*nt+2*rho,2)}, v{vBu[nt]} offset:{ks*4096+rho*1024}' for nt in range(4) for rho in range(2)]
    for j in range(8):
        L = a.label('g1w')
        if j <= 1:
            a(f'''s_cmp_lg_u32 s{sPK}, 0
                  s_cbranch_scc1 {L}
                  s_waitcnt vmcnt(16)
                  {L}:
                  s_waitcnt vmcnt(32)
                  s_barrier''')
        elif j == 2:
            a(f'''s_cmp_eq_u32 s{sPK}, 0
                  s_cbranch_scc1 {L}
                  s_waitcnt vmcnt(8)
                  {L}:
                  s_waitcnt vmcnt(16)
                  s_barrier''')
        else:
            a('s_waitcnt vmcnt(16)\n s_barrier')
        for i in range(4): a(f'v_add_u32 v{vBu[i]}, s{sSTG}, v{vBb[i]}')
        a('\n'.join(reads(0,0)))
        if j == 2: pend2(a)
        if j == 7: pend3(a)
        if j == 3: loader_switch(a, sNXT, TY)
        a(f's_add_u32 s{sSTG}, s{sSTG}, {BST}\n s_cmp_ge_u32 s{sSTG}, {NB*BST}\n s_cselect_b32 s{sT}, {NB*BST}, 0\n s_sub_u32 s{sSTG}, s{sSTG}, s{sT}')
        d = bdma()
        for ks in range(4):
            nxt = reads(ks+1,(ks+1)&1) if ks < 3 else []
            a('\n'.join(nxt))
            a(f's_waitcnt lgkmcnt({len(nxt)})')
            b = Fb + 16*(ks&1)
            for nt in range(4):
                for mt in range(2):
                    acc = vr(ACC + 16*(4*mt+nt),16)
                    A_, B_ = ar(128*mt + 16*j + 4*ks,4), vr(b+4*nt,4)
                    if swapped: A_, B_ = B_, A_
                    c = '0' if (j == 0 and ks == 0) else acc
                    a(f'v_mfma_f32_32x32x16_bf16 {acc}, {A_}, {B_}, {c}')
                if nt == 1: a('\n'.join(d.pop(0)))
    a('s_nop 15')

def pend2(a):
    L = a.label('ps')
    a(f'''s_cmp_eq_u32 s{sPK}, 0
          s_cbranch_scc1 {L}
          s_mov_b32 s{sT}, s{sPK}
          s_mov_b32 s{sWC}, s{sAUX}
          s_mov_b32 s{sLS}, s{sB0}
          s_mov_b32 s{sPK}, 0
          s_cmp_lg_u32 s{S_WAVE}, 0
          s_cbranch_scc1 {L}
          v_mov_b32 v{vNXT}, 1
          v_mul_lo_u32 v22, v{vLN}, s{sDFLG}
          v_add_u32 v22, s{sPEND}, v22
          v_writelane_b32 v22, s{sA0}, 0
          s_mov_b32 exec_lo, s{sT}
          s_mov_b32 exec_hi, 0
          buffer_atomic_add v{vNXT}, v22, {W}, 0 offen sc0
          s_mov_b64 exec, -1
          {L}:''')

def pend3(a):
    L = a.label('pt')
    a(f'''s_cmp_eq_u32 s{sWC}, 0
          s_mov_b32 s{sT}, s{sWC}
          s_mov_b32 s{sWC}, 0
          s_cbranch_scc1 {L}
          s_cmp_lg_u32 s{S_WAVE}, 0
          s_cbranch_scc1 {L}
          v_lshlrev_b32 v22, 7, v{vLN}
          v_mov_b32 v21, 1
          s_and_b32 s{sT+1}, s{sLS}, 255
          s_lshr_b32 exec_lo, s{sLS}, 8
          s_mov_b32 exec_hi, 0
          v_cmp_eq_u32 vcc, s{sT+1}, v{vNXT}
          s_and_b64 exec, exec, vcc
          s_cbranch_execz {L}x
          buffer_store_dword v21, v22, {W}, s{sT} offen sc1
          {L}x:
          s_mov_b64 exec, -1
          {L}:''')

def kvq_sig(mask):
    return f'''s_add_u32 s{sPEND}, s{sOUT}, {WS_KM+6144-262144}
          s_mov_b32 s{sDFLG}, 262144
          s_lshl_b32 s{sA0}, s{sSPL}, 6
          s_add_u32 s{sA0}, s{sA0}, {WS_FLAGS+F_KVQ}
          s_lshl_b32 s{sAUX}, s{sSPL}, 7
          s_add_u32 s{sAUX}, s{sAUX}, {WS_FLAGS+F_DONE+DN_HD*128}
          s_mov_b32 s{sB0}, {(1<<8)|23}
          s_mov_b32 s{sPK}, {mask}'''

def stage_base(a):
    a(f's_lshl_b32 s{sT}, s{S_WAVE}, 14\n s_add_u32 s{sT}, s{sT}, {EPA}')

def g1_epi_blocks(a, isv):
    if not isv:
        a(f'''v_bfe_u32 v21, v{vLN}, 4, 1
              v_lshrrev_b32 v22, 5, v{vLN}
              v_and_b32 v23, 15, v{vLN}
              v_lshlrev_b32 v{vE1}, 9, v21
              v_lshl_add_u32 v{vE1}, v22, 8, v{vE1}
              v_lshl_add_u32 v{vE1}, v23, 4, v{vE1}''')
    else:
        a(f'''v_lshrrev_b32 v21, 5, v{vLN}
              v_bfe_u32 v22, v{vLN}, 3, 1
              v_bfe_u32 v23, v{vLN}, 4, 1
              v_and_b32 v30, 7, v{vLN}
              v_lshl_add_u32 v30, v23, 3, v30
              v_lshl_add_u32 v30, v21, 4, v30
              v_lshlrev_b32 v{vE1}, 4, v30
              v_lshl_add_u32 v{vE1}, v22, 10, v{vE1}''')
    stage_base(a)
    a(f'v_add_u32 v{vE1}, s{sT}, v{vE1}\n v_lshlrev_b32 v21, 4, v{vLN}\n v_add_u32 v22, s{sT}, v21')
    n = 0
    for mt in range(2):
        for nt in range(4):
            x = ACC + 16*(4*mt+nt)
            for h in range(2):
                o = 64 + 4*(n&3); n += 1
                if not isv:
                    for c in range(4): a(f'v_cvt_pk_bf16_f32 v{o+c}, v{x+8*h+c}, v{x+8*h+4+c}')
                    a(f'ds_write_b128 v{vE1}, {vr(o,4)} offset:{mt*8192+nt*2048+h*1024}')
                else:
                    src = [x+4*h, x+4*h+2, x+4*h+8, x+4*h+10]
                    for c in range(4): a(f'v_cvt_pk_bf16_f32 v{o+c}, v{src[c]}, v{src[c]+1}')
                    a(f'ds_write_b128 v{vE1}, {vr(o,4)} offset:{mt*8192+nt*2048+h*512}')
    a(f's_lshl_b32 s{sT}, s{S_WAVE}, 19\n s_add_u32 s{sX}, s{sOUT}, s{sT}')
    for i in range(16): a(f'ds_read_b128 {vr(64+4*i,4)}, v22 offset:{i*1024}')
    for i in range(16):
        a(f's_waitcnt lgkmcnt({15-i})\n buffer_store_dwordx4 {vr(64+4*i,4)}, v21, {W}, s{sX} offen offset:{(i&3)*1024} {STF}')
        if i & 3 == 3: a(f's_add_u32 s{sX}, s{sX}, {4096 if i != 7 else 262144-4096}')

def g1_epi_gelu(a):
    a(f'''
    s_mov_b32 s{sC0}, 0x3d372713
    s_mov_b32 s{sC1}, 0xc0135761
    v_and_b32 v21, 31, v{vLN}
    v_lshrrev_b32 v22, 5, v{vLN}
    v_and_b32 v23, 15, v{vLN}
    v_xor_b32 v22, v22, v23
    v_lshlrev_b32 v{vE1}, 8, v21
    v_lshl_add_u32 v{vE1}, v22, 4, v{vE1}''')
    stage_base(a)
    a(f'''v_add_u32 v{vE1}, s{sT}, v{vE1}
    v_lshrrev_b32 v21, 4, v{vLN}
    v_mul_u32_u24 v30, 1792, v21
    v_lshl_add_u32 v30, v23, 4, v30
    v_xor_b32 v22, v23, v21
    v_lshlrev_b32 v31, 8, v21
    v_lshl_add_u32 v31, v22, 4, v31
    v_add_u32 v31, s{sT}, v31''')
    n = 0
    for nt in range(4):
        for ap in range(2):
            a(f'v_xor_b32 v{vE2}, {(4*nt+2*ap)*16}, v{vE1}')
            for mt in range(2):
                x = ACC + 16*(4*mt+nt) + 8*ap
                t = 64 + 8*(n&1); n += 1
                gelu8(a, x, t)
                for c in range(4): a(f'v_cvt_pk_bf16_f32 v{t+c}, v{x+2*c}, v{x+2*c+1}')
                a(f'ds_write_b128 v{vE2}, {vr(t,4)} offset:{mt*8192}')
    a(f's_mul_i32 s{sT}, s{S_WAVE}, {64*1792}\n s_add_u32 s{sX}, s{sOUT}, s{sT}')
    for i in range(16):
        a(f'v_xor_b32 v23, {(i&3)*64}, v31\n ds_read_b128 {vr(64+4*i,4)}, v23 offset:{i*1024}')
    for i in range(16):
        a(f's_waitcnt lgkmcnt({15-i})\n buffer_store_dwordx4 {vr(64+4*i,4)}, v30, {W}, s{sX} offen sc1\n s_add_u32 s{sX}, s{sX}, {4*1792}')

def g1_task(a, TY, opt):
    a(f'''s_lshr_b32 s{sT}, s{sIDX}, 20
          s_lshl_b32 s{sT}, s{sT}, 4
          s_add_u32 s{sT}, s{sT}, {opt['lists']}
          s_load_dwordx4 s[{sL0}:{sL0+3}], s[{sTB}:{sTB+1}], s{sT}''')
    g1_start(a, TY)
    loader_switch(a, sL0, TY)
    a(f's_lshl_b32 s{sDST}, s{S_WAVE}, 12\n s_add_u32 s{sDST}, s{sDST}, {4*BST}\n s_mov_b32 s{sSTG}, {4*BST}\n s_mov_b32 s{sPK}, 0\n s_mov_b32 s{sWC}, 0')
    for st in range(2):
        for g in bdma(): a('\n'.join(g))
    opt['lnwait']()
    if opt.get('prof'): a('s_memrealtime s[78:79]')
    g1_load_a(a)
    opt['initwait']()
    for st in range(3):
        for g in bdma(): a('\n'.join(g))
    if opt.get('prof'): a(f's_mov_b32 s{sJ}, 0')
    a('L_g1t:')
    if opt.get('prof'): a('s_memrealtime s[46:47]\n s_memtime s[64:65]')
    a(f'''s_mov_b32 s{sCUR}, s{sL0}
          s_mov_b32 s{sNXT}, s{sL0+1}
          s_mov_b32 s{sL0}, s{sL0+1}
          s_mov_b32 s{sL0+1}, s{sL0+2}
          s_mov_b32 s{sL0+2}, s{sL0+3}
          s_mov_b32 s{sL0+3}, {TY['NOP']}
          s_and_b32 s{sEPI}, s{sCUR}, 15
          s_cmp_eq_u32 s{sEPI}, {TY['V']}
          s_cbranch_scc1 L_g1v''')
    g1_tile(a, True, 's', TY)
    if opt.get('prof'): a('s_memrealtime s[94:95]\n s_memtime s[66:67]')
    a(f's_bfe_u32 s{sSPL}, s{sCUR}, 0x8000c\n s_cmp_eq_u32 s{sEPI}, {TY["WIN"]}\n s_cbranch_scc1 L_g1w')
    a(f'''s_lshl_b32 s{sOUT}, s{sBLK}, 8
          s_add_u32 s{sOUT}, s{sOUT}, s{sSPL}
          s_lshl_b32 s{sOUT}, s{sOUT}, 13
          {kvq_sig(0x1ff)}
          s_add_u32 s{sOUT}, s{sOUT}, {WS_KX}
          s_cmp_eq_u32 s{sEPI}, {TY['Q']}
          s_cbranch_scc0 L_g1k
          s_add_u32 s{sOUT}, s{sOUT}, {WS_QX-WS_KX}
          s_mov_b32 s{sPK}, 1
          L_g1k:''')
    g1_epi_blocks(a, False)
    a('s_branch L_g1n')
    a('L_g1w:')
    a(f'''s_lshl_b32 s{sT+1}, s{sSPL}, 8
          s_mul_i32 s{sOUT}, s{sBLK}, {256*1792}
          s_add_u32 s{sOUT}, s{sOUT}, s{sT+1}
          s_add_u32 s{sOUT}, s{sOUT}, {WS_Z1}
          s_lshl_b32 s{sPEND}, s{sBLK}, 7
          s_add_u32 s{sPEND}, s{sPEND}, {WS_FLAGS+F_Z1}
          s_cmp_ge_u32 s{sSPL}, 7
          s_cselect_b32 s{sT}, {WS_Z2 - WS_Z1 - 1792}, 0
          s_add_u32 s{sOUT}, s{sOUT}, s{sT}
          s_cmp_ge_u32 s{sSPL}, 7
          s_cselect_b32 s{sT}, {F_Z2-F_Z1}, 0
          s_add_u32 s{sPEND}, s{sPEND}, s{sT}
          s_mov_b32 s{sDFLG}, 64
          s_lshl_b32 s{sAUX}, s{sBLK}, 8
          s_add_u32 s{sAUX}, s{sAUX}, {WS_FLAGS+F_DONE+DN_Z1*128}
          s_cmp_ge_u32 s{sSPL}, 7
          s_cselect_b32 s{sT}, {(DN_Z2-DN_Z1)*128}, 0
          s_add_u32 s{sAUX}, s{sAUX}, s{sT}
          s_mov_b32 s{sA0}, s{sPEND}
          s_mov_b32 s{sB0}, {(3<<8)|6}
          s_mov_b32 s{sPK}, 3''')
    g1_epi_gelu(a)
    a('s_branch L_g1n')
    a('L_g1v:')
    g1_tile(a, False, 'n', TY)
    if opt.get('prof'): a('s_memrealtime s[94:95]\n s_memtime s[66:67]')
    a(f'''s_bfe_u32 s{sSPL}, s{sCUR}, 0x8000c
          s_lshl_b32 s{sOUT}, s{sBLK}, 8
          s_add_u32 s{sOUT}, s{sOUT}, s{sSPL}
          s_lshl_b32 s{sOUT}, s{sOUT}, 13
          {kvq_sig(0x1ff)}
          s_add_u32 s{sOUT}, s{sOUT}, {WS_VX}''')
    g1_epi_blocks(a, True)
    a('L_g1n:')
    if opt.get('prof'):
        L = a.label('pf')
        a(f'''s_memrealtime s[80:81]
              s_waitcnt lgkmcnt(0)
              s_sub_u32 s66, s66, s64
              v_mov_b32 v32, s46
              v_mov_b32 v33, s94
              v_mov_b32 v34, s80
              v_mov_b32 v35, s66
              s_lshl_b32 s{sT}, s{sTASK}, 2
              s_add_u32 s{sT}, s{sT}, s{sJ}
              s_lshl_b32 s{sT}, s{sT}, 4
              s_add_u32 s{sT}, s{sT}, {242*MB}
              s_add_u32 s{sJ}, s{sJ}, 1
              s_cmp_lg_u32 s{S_WAVE}, 0
              s_cbranch_scc1 {L}
              s_mov_b64 exec, 1
              buffer_store_dwordx4 v[32:35], v{vZ}, {W}, s{sT} offen
              s_mov_b64 exec, -1
              {L}:''')
    if opt.get('imm',1):
        a(f's_cmp_lg_u32 s{sBLK}, 0\n s_cbranch_scc1 L_g1n2\n s_waitcnt vmcnt(0)\n s_barrier')
        pend2(a)
        a('L_g1n2:')
    a(f's_and_b32 s{sT}, s{sL0}, 15\n s_cmp_lg_u32 s{sT}, {TY["NOP"]}\n s_cbranch_scc1 L_g1t')
    a('s_waitcnt vmcnt(0)\n s_barrier')
    pend2(a)
    a('s_waitcnt vmcnt(0)')
    pend3(a)
    for s_ in (S_A,S_C,S_D): srd_ws(a, s_)
    a('s_branch L_done')
```

```python
import sys
from common import *
import chain as C
from chain import S_WS, S_DBG, S_A, S_B, S_C, S_D, S_XCC, S_WAVE, S_HEAD, SH
from worker import *
import g1a

HDR = open('parallel_sum__memory_aug_recurrent_mem_tr__mixer_gmlp__prompt.s.ref').read().split('; @launch')[0]

def bcast_ticket(a, vsrc, sdst, addr=TK_LDS):
    L = a.label('bt')
    a(f'''s_cmp_lg_u32 s{S_WAVE}, 0
          v_mov_b32 v21, {addr}
          s_cbranch_scc1 {L}
          s_mov_b64 exec, 1
          ds_write_b32 v21, v{vsrc}
          s_mov_b64 exec, -1
          s_waitcnt lgkmcnt(0)
          {L}:
          s_barrier
          ds_read_b32 v22, v21
          s_waitcnt lgkmcnt(0)
          v_readfirstlane_b32 s{sdst}, v22
          s_barrier''')

def atomic_ret(a, vdst, off, val=1, srd_=None, soff='0'):
    L = a.label('ar')
    a(f'''s_cmp_lg_u32 s{S_WAVE}, 0
          s_cbranch_scc1 {L}
          v_mov_b32 v{vdst}, {val}
          v_mov_b32 v21, {off}
          s_mov_b64 exec, 1
          buffer_atomic_add v{vdst}, v21, {srd_ or DBG}, {soff} offen sc0
          s_mov_b64 exec, -1
          {L}:''')

TY_K=0; TY_Q=1; TY_WIN=2; TY_SP=3; TY_OB=4; TY_G3=5; TY_V=6; TY_LN1=7; TY_LN2=8; TY_ATT=9; TY_NOP=10; TY_G1=11
def ent(ty, blk=0, ct=0, nt=1): return ty | (blk << 4) | (ct << 12) | (nt << 20)
def build_tables(opt):
    kvs = [0,5,10,15,20,24,28,32]; qs = [0,4,8,12,16,21,26,32]
    g1 = []; lists = []
    for j in range(7):
        kv = []
        for h in range(kvs[j],kvs[j+1]): kv += [ent(TY_K,0,h), ent(TY_V,0,h)]
        win = [ent(TY_WIN,0,7+j), ent(TY_WIN,0,j)]; qq = [ent(TY_Q,0,h) for h in range(qs[j],qs[j+1])]
        first = []; late = []
        def add(dst, b, l):
            if not l: return
            dst.append(ent(TY_G1,b,0,0) | (len(lists) << 20)); lists.append(l + [ent(TY_NOP)]*(4-len(l)))
        rest = win + qq
        for i,t in enumerate(kv): add(first, 0, [t] + ([rest[i]] if i < len(rest) else []))
        n0 = len(kv); n2 = min(len(rest), n0); n1 = n0 - n2
        nfull = 32 - n0
        n1l = (len(kv)+1)//2
        per = [n1l] + [(nfull-n1l)//6 + (1 if b < (nfull-n1l) % 6 else 0) for b in range(6)]
        small = [3]*n1 + [2]*n2
        for b in range(1,8):
            tiles = (kv + win + qq) if b == 1 else (win + kv + qq)
            nl = per[b-1] if b == 1 else min(per[b-1], 4)
            head, tail_ = tiles[:4*nl], tiles[4*nl:]
            for i in range(nl): add(first, b, head[i::nl])
            while tail_:
                n = small.pop(0) if small else 2
                add(late, b, tail_[:n]); tail_ = tail_[n:]
        g1.append(first + late)
    opt['_lists'] = lists
    sp = [[ent(TY_SP,b,j) for b in range(16)] for j in range(7)]
    ob = [ent(TY_OB,b,c) for b in range(16) for c in range(4)]
    FS = opt.get('fs', 4)
    FE = opt.get('fe', 2); RB = opt.get('rb', 52)
    ft_early = [ent(TY_ATT,r,h) for r in range(FE) for h in range(32)]
    tail = [ent(TY_ATT,r,h) for r in range(FE,FS) for h in range(32)] + ob + [ent(TY_G3,sg,j,2) for sg in range(RB) for j in range(0,8,2)] + [ent(TY_G3,sg,j,1) for sg in range(RB,64) for j in range(8)]
    return [([[ent(TY_LN1,i) for i in range(128)]],0), (g1,0), ([[ent(TY_LN2,i) for i in range(128)] + ft_early],0), (sp,0), ([tail],0)]
def table_words(PH, opt=None):
    hdr = []; body = []
    base = 4*len(PH)
    for qs_, pf in PH:
        L = max(len(q) for q in qs_)
        hdr += [len(qs_), L, base + len(body), PH_OFF[len(hdr)//4]]
        for q in qs_: body += q + [ent(TY_NOP)]*(L-len(q))
    w = hdr + body
    w += [0]*(-len(w) % 4)
    if opt is not None:
        opt['lists'] = 4*len(w)
        for l in opt['_lists']: w += l
    return w

def gen(opt={}):
    a = Asm()
    a(f'''
    s_cmp_ge_u32 s2, 256
    s_cbranch_scc1 L_end
    s_load_dwordx4 s[32:35], s[0:1], 104
    {'s_memrealtime s[90:91]' if opt.get('prof') else ''}
    s_getreg_b32 s{S_XCC}, hwreg(HW_REG_XCC_ID)
    s_and_b32 s{S_XCC}, s{S_XCC}, 15
    v_lshrrev_b32 v1, 6, v0
    v_mov_b32 v{vNXT}, 0
    v_readfirstlane_b32 s{S_WAVE}, v1
    s_waitcnt lgkmcnt(0)
    {'s_mov_b32 s99, s90' if opt.get('prof') else ''}
    s_mov_b32 s{S_DBG}, s32
    s_mov_b32 s{S_DBG+1}, s33
    s_mov_b32 s{S_DBG+2}, 256
    s_mov_b32 s{S_DBG+3}, 0x20000
    s_mov_b32 s{S_WS}, s34
    s_mov_b32 s{S_WS+1}, s35
    s_mov_b32 s{S_WS+2}, {WS_SIZE}
    s_mov_b32 s{S_WS+3}, 0x20000
    s_cmp_lg_u32 s{S_XCC}, {opt.get('team_xcc',0)}
    s_cbranch_scc1 L_worker
    L_tryrole:
    ''')
    a('s_load_dwordx2 s[36:37], s[0:1], 40')
    atomic_ret(a, vNXT, D_ROLE)
    if opt.get('pre',0):
        a(f'''s_bfe_u32 s38, s2, 0x50003
              s_lshl_b32 s38, s38, 17
              v_lshlrev_b32 v249, 7, v0
              s_waitcnt lgkmcnt(0)
              s_mov_b32 s{S_A}, s36
              s_mov_b32 s{S_A+1}, s37
              s_mov_b32 s{S_A+2}, 0x400000
              s_mov_b32 s{S_A+3}, 0x20000''')
        for i in range(4):
            a(f'buffer_load_dword v{250+i}, v249, {SA}, s38 offen\n s_add_u32 s38, s38, 32768')
        a('s_waitcnt vmcnt(4)')
    else:
        a('s_waitcnt vmcnt(0) lgkmcnt(0)')
    bcast_ticket(a, vNXT, S_HEAD)
    a(f'''
    s_cmp_lt_u32 s{S_HEAD}, 32
    s_cbranch_scc1 L_chain
    s_waitcnt vmcnt(0)
    s_branch L_worker_noq
    ''')
    a('L_worker:')
    if opt.get('warm',0):
        a(f'''s_lshr_b32 s31, s2, 6
              s_lshl_b32 s31, s31, 3
              s_add_u32 s31, s31, 16
              s_load_dwordx2 s[32:33], s[0:1], s31
              s_and_b32 s34, s2, 63
              s_lshl_b32 s34, s34, 16
              v_lshlrev_b32 v21, 7, v0
              s_waitcnt lgkmcnt(0)
              s_mov_b32 s{S_A}, s32
              s_mov_b32 s{S_A+1}, s33
              s_mov_b32 s{S_A+2}, 0x400000
              s_mov_b32 s{S_A+3}, 0x20000
              s_add_u32 s35, s34, 32768
              buffer_load_dword v22, v21, {SA}, s34 offen
              buffer_load_dword v23, v21, {SA}, s35 offen''')
    a(f's_mov_b32 s{sFIRST}, 1\n s_branch L_winit')
    a('L_worker_noq:')
    a(f's_mov_b32 s{sFIRST}, 0')
    a('L_winit:')
    for s in (S_A,S_B,S_C,S_D): srd_ws(a, s)
    gemm_setup_consts(a)
    opt = dict(opt)
    PH = build_tables(opt)
    words = table_words(PH, opt)
    a(f'''s_mov_b32 s{sCNT}, 0
          s_getpc_b64 s[{sTB}:{sTB+1}]
          L_pc:
          s_add_u32 s{sTB}, s{sTB}, task_table-L_pc
          s_addc_u32 s{sTB+1}, s{sTB+1}, 0
          s_add_u32 s{sHOME}, s{S_XCC}, 6
          s_cmp_ge_u32 s{sHOME}, 7
          s_cselect_b32 s{sT}, 7, 0
          s_sub_u32 s{sHOME}, s{sHOME}, s{sT}
          s_min_u32 s{sHOME}, s{sHOME}, 6
          s_mov_b32 s{sPH}, 1
          s_mov_b32 s{sLNM}, 0
          s_mov_b32 s{sI}, 0
          s_mov_b32 s{sOSTR}, -1
          s_mov_b32 s{sQ}, s{sHOME}''')
    def initwait():
        L = a.label('iw')
        a(f's_cmp_eq_u32 s{sCNT}, 1\n s_cbranch_scc1 {L}\n s_mov_b32 s{sFLG}, {D_INIT}')
        wait_flag(a, DBG, sFLG, 1, sleep=2)
        a(f's_mov_b32 s{sCNT}, 1\n {L}:')
    a('L_claim:')
    a(f'''s_lshl_b32 s{sT}, s{sPH}, 4
          s_load_dwordx4 s[36:39], s[{sTB}:{sTB+1}], s{sT}
          s_cmp_ge_u32 s{sPH}, 2
          s_cbranch_scc1 L_claimw
          s_lshl_b32 s{sT+1}, s{sQ}, 2
          s_waitcnt lgkmcnt(0)
          s_add_u32 s{sFLG}, s{sT+1}, s39''')
    atomic_ret(a, vNXT, 0, 1, DBG, f's{sFLG}')
    a(f'''s_branch L_claimx
          L_claimw:
          s_lshl_b32 s{sT+1}, s{sQ}, 7
          s_waitcnt lgkmcnt(0)
          s_add_u32 s{sFLG}, s{sT+1}, s39''')
    atomic_ret(a, vNXT, 0, 1, W, f's{sFLG}')
    a('L_claimx:\n s_waitcnt vmcnt(0)')
    bcast_ticket(a, vNXT, sTASK)
    a(f'''s_cmp_lt_u32 s{sTASK}, s37
          s_cbranch_scc1 L_got
          s_cmp_eq_u32 s{sPH}, 0
          s_cbranch_scc1 L_lndone
          s_cmp_eq_u32 s{sI}, 0
          s_cbranch_scc1 L_toln''')
    initwait()
    a(f'''s_cmp_eq_u32 s36, 1
          s_cbranch_scc1 L_nextph
          s_lshl_b32 s{sT}, s{sPH}, 7
          s_add_u32 s{sT}, s{sT}, {WS_FLAGS+F_DONE+DN_EX*128}
          v_lshlrev_b32 v21, 2, v{vLN}
          v_and_b32 v21, 31, v21
          buffer_load_dword v22, v21, {W}, s{sT} offen sc1
          s_waitcnt vmcnt(0)
          v_cmp_eq_u32 vcc, 0, v22
          s_lshl_b32 s{sT}, 1, s36
          s_sub_u32 s{sT}, s{sT}, 1
          s_lshl_b32 s{sT+1}, 1, s{sQ}
          s_or_b32 s{sLNM}, s{sLNM}, s{sT+1}
          s_andn2_b32 s{sT}, s{sT}, s{sLNM}
          s_and_b32 s{sT}, s{sT}, vcc_lo
          v_mov_b32 v24, s{sT}''')
    bcast_ticket(a, 24, sT+1)
    a(f'''s_cmp_eq_u32 s{sT+1}, 0
          s_cbranch_scc1 L_nextph
          s_lshr_b32 s{sT}, s{sT+1}, s{sQ}
          s_lshl_b32 s{sT}, s{sT}, s{sQ}
          s_cmp_lg_u32 s{sT}, 0
          s_cselect_b32 s{sT}, s{sT}, s{sT+1}
          s_ff1_i32_b32 s{sQ}, s{sT}
          s_branch L_claim
          L_nextph:
          s_mov_b32 s{sLNM}, 0
          s_add_u32 s{sPH}, s{sPH}, 1
          s_cmp_ge_u32 s{sPH}, {len(PH)}
          s_cbranch_scc1 L_wdone
          s_bitcmp1_b32 s{sPH}, 0
          s_cselect_b32 s{sQ}, s{sHOME}, 0
          s_cmp_lg_u32 s{sPH}, 2
          s_cbranch_scc1 L_claim
          s_cmp_eq_u32 s{sFIRST}, 1
          s_cbranch_scc1 L_chk
          s_branch L_claim
          L_got:
          s_add_u32 s{sT}, s{sTASK}, 1
          s_cmp_lg_u32 s{sT}, s37
          s_cbranch_scc1 L_got2
          s_cmp_eq_u32 s36, 1
          s_cbranch_scc1 L_got2''')
    initwait()
    a(f'''s_lshl_b32 s{sT}, s{sPH}, 7
          s_lshl_b32 s{sT+1}, s{sQ}, 2
          s_add_u32 s{sT}, s{sT}, s{sT+1}
          s_add_u32 s{sT}, s{sT}, {WS_FLAGS+F_DONE+DN_EX*128}
          v_mov_b32 v21, 1
          s_mov_b64 exec, 1
          buffer_store_dword v21, v{vZ}, {W}, s{sT} offen sc1
          s_mov_b64 exec, -1
          L_got2:
          s_mul_i32 s{sT}, s{sQ}, s37
          s_add_u32 s{sT}, s{sT}, s38
          s_add_u32 s{sTASK}, s{sTASK}, s{sT}
          L_got3:
          s_lshl_b32 s{sT}, s{sTASK}, 2
          s_load_dword s{sIDX}, s[{sTB}:{sTB+1}], s{sT}
          ''')
    a('L_nopf:')
    if opt.get('prof'): a('s_memrealtime s[76:77]\n s_memrealtime s[78:79]')
    a(f'''s_waitcnt lgkmcnt(0)
          s_and_b32 s{sEPI}, s{sIDX}, 15          ; type
          s_bfe_u32 s{sBLK}, s{sIDX}, 0x80004
          s_bfe_u32 s{sCT}, s{sIDX}, 0x8000c
          s_bfe_u32 s{sNT}, s{sIDX}, 0x40014
          s_mov_b32 s{sDA}, 0
          s_mov_b32 s{sDB}, 256
          s_cmp_eq_u32 s{sI}, 1
          s_cbranch_scc1 L_disp
          s_cmp_lg_u32 s{sPH}, 1
          s_cbranch_scc1 L_disp
          s_and_b32 s{sT}, s{sIDX}, 0xfff
          s_cmp_eq_u32 s{sT}, {TY_G1}
          s_cbranch_scc1 L_disp
          s_mov_b32 s{sOSTR}, s{sTASK}
          L_toln:
          s_mov_b32 s{sNST}, s{sQ}
          s_mov_b32 s{sPH}, 0
          s_mov_b32 s{sQ}, 0
          s_branch L_claim
          L_lndone:
          s_mov_b32 s{sI}, 1
          s_mov_b32 s{sPH}, 1
          s_mov_b32 s{sQ}, s{sNST}
          s_cmp_eq_u32 s{sOSTR}, -1
          s_cbranch_scc1 L_claim
          s_mov_b32 s{sTASK}, s{sOSTR}
          s_branch L_got3
          L_disp:
          s_cmp_eq_u32 s{sEPI}, {TY_NOP}
          s_cbranch_scc1 L_done
          s_cmp_eq_u32 s{sEPI}, {TY_LN1}
          s_cbranch_scc1 L_ln1''')
    def lnwait():
        L = a.label('lw')
        a(f's_cmp_eq_u32 s{sCNT}, 1\n s_cbranch_scc1 {L}\n s_lshl_b32 s{sFLG}, s{sBLK}, 2\n s_add_u32 s{sFLG}, s{sFLG}, {D_LNF}')
        wait_flag(a, DBG, sFLG, 1, sleep=2)
        a(f'{L}:')
    opt['initwait'] = initwait; opt['lnwait'] = lnwait
    a(f's_cmp_eq_u32 s{sEPI}, {TY_G1}\n s_cbranch_scc1 L_g1')
    initwait()
    for ty, L in ((TY_LN2,'L_ln2'),(TY_SP,'L_sp'),(TY_OB,'L_ob'),(TY_ATT,'L_att')):
        a(f's_cmp_eq_u32 s{sEPI}, {ty}\n s_cbranch_scc1 {L}')
    a('s_branch L_g3')
    def wait_ln():
        pass
    def a_xn():
        srd_ws(a, S_A)
        a(f's_lshl_b32 s{sAO}, s{sBLK}, 17\n s_add_u32 s{sAO}, s{sAO}, {WS_XN}\n s_mov_b32 s{sLDA}, 1024\n s_mov_b32 s{sNST}, 8')
    a('L_ln1:')
    a(f'''s_cmp_lg_u32 s{S_WAVE}, 0
          s_cbranch_scc1 L_ln1b
          v_mov_b32 v24, 0
          v_mov_b32 v25, 0
          v_mov_b32 v26, 0
          v_mov_b32 v27, 0
          v_lshlrev_b32 v21, 4, v{vLN}
          v_lshlrev_b32 v22, 13, v{vLN}
          s_mul_i32 s{sT}, s{sBLK}, {F_SIZE//128}
          s_add_u32 s{sT}, s{sT}, {WS_FLAGS}
          s_lshl_b32 s{sT+1}, s{sBLK}, 17
          s_add_u32 s{sT+1}, s{sT+1}, {WS_KM + 6144}
          s_mov_b64 exec, 0x1fffff
          buffer_store_dwordx4 v[24:27], v21, {W}, s{sT} offen sc1
          s_mov_b64 exec, 0xffff
          buffer_store_dword v24, v22, {W}, s{sT+1} offen sc1
          s_mov_b64 exec, -1
          L_ln1b:''')
    srd(a, S_A, 0, 2*MB)
    a(f's_lshl_b32 s{sAO}, s{sBLK}, 14\n s_add_u32 s{sOUT}, s{sAO}, {WS_XN}')
    ln_task(a, 512, SA, '', 'a')
    L = a.label('ls')
    a(f'''s_waitcnt vmcnt(0)
          s_barrier
          s_cmp_lg_u32 s{S_WAVE}, 0
          s_cbranch_scc1 {L}
          s_lshr_b32 s{sT}, s{sBLK}, 4
          s_lshl_b32 s{sT}, s{sT}, 2
          s_add_u32 s{sT+1}, s{sT}, {D_LNC}
          s_add_u32 s{sT+2}, s{sT}, {D_LNF}
          v_mov_b32 v21, 1
          v_mov_b32 v22, {D_INITC}
          v_mov_b32 v23, {D_INIT}
          v_mov_b32 v24, 127
          v_mov_b32 v25, 1
          v_writelane_b32 v22, s{sT+1}, 1
          v_writelane_b32 v23, s{sT+2}, 1
          v_writelane_b32 v24, 15, 1
          s_mov_b64 exec, 3
          buffer_atomic_add v21, v22, {DBG}, 0 offen sc0
          s_waitcnt vmcnt(0)
          v_cmp_eq_u32 vcc, v24, v21
          s_and_b64 exec, exec, vcc
          s_cbranch_execz {L}x
          buffer_store_dword v25, v23, {DBG}, 0 offen sc1
          {L}x:
          s_mov_b64 exec, -1
          {L}:''')
    a('s_branch L_done')
    a('L_ln2:')
    srd(a, S_A, 72, 8*MB)
    a(f'''s_lshl_b32 s{sT+2}, s{sBLK}, 16
          s_add_u32 s{sT+3}, s{sT+2}, 32768
          v_lshlrev_b32 v252, 7, v0
          buffer_load_dword v250, v252, {SA}, s{sT+2} offen
          buffer_load_dword v251, v252, {SA}, s{sT+3} offen''')
    a(f'''s_mov_b32 s{sIDX}, s{sBLK}
          s_lshr_b32 s{sFLG}, s{sIDX}, 3
          s_lshl_b32 s{sFLG}, s{sFLG}, 7
          s_add_u32 s{sFLG}, s{sFLG}, {WS_FLAGS+F_DONE+DN_Z2*128}''')
    wait_flag(a, W, sFLG, 1)
    a(f'''s_mul_i32 s{sAO}, s{sIDX}, {16*1792}
          s_add_u32 s{sOUT}, s{sAO}, {WS_Z2N}
          s_add_u32 s{sAO}, s{sAO}, {WS_Z2}''')
    ln_task(a, 896, W, 'sc1', 'b')
    a(f's_mov_b32 s{sFLG}, {WS_FLAGS+F_Z2N}\n s_mov_b32 s{sAUX}, {WS_FLAGS+F_DONE+DN_Z2N*128}')
    signal2(a, W, sFLG, 128, sAUX)
    a('s_branch L_done')
    a('L_g1:')
    g1a.g1_task(a, dict(K=TY_K,V=TY_V,Q=TY_Q,WIN=TY_WIN,NOP=TY_NOP), opt)
    def next_tile(kind, Lt):
        a(f'''s_mov_b32 s{sPEND}, s{sSPL}
              s_mov_b32 s{sPK}, {kind}
              s_branch L_drain''')
    a('L_sp:')
    a(f'''s_mov_b32 s{sFLG}, {WS_FLAGS+F_DONE+DN_Z2N*128}''')
    wait_flag(a, W, sFLG, 1, bar=False)
    a(f's_lshl_b32 s{sFLG}, s{sBLK}, 6\n s_add_u32 s{sSPL}, s{sFLG}, {WS_FLAGS+F_GZ}\n s_lshl_b32 s{sFLG}, s{sBLK}, 7\n s_add_u32 s{sWC}, s{sFLG}, {WS_FLAGS+F_DONE+DN_GZ*128}\n s_add_u32 s{sFLG}, s{sFLG}, {WS_FLAGS+F_DONE+DN_Z1*128}')
    wait_flag(a, W, sFLG, 1)
    srd(a, S_A, 72, 8*MB); srd_ws(a, S_B); srd(a, S_C, 80, 4096)
    a(f'''s_lshl_b32 s{sAO}, s{sBLK}, 19
          s_mov_b32 s{sLDA}, 4096
          s_lshl_b32 s{sT}, s{sCT}, 8
          s_add_u32 s{sBO}, s{sT}, {WS_Z2N}
          s_mov_b32 s{sLDB}, 1792
          s_mov_b32 s{sNST}, 32
          s_mul_i32 s{sOUT}, s{sBLK}, {128*1792}
          s_add_u32 s{sOUT}, s{sOUT}, s{sT}
          s_add_u32 s{sAUX}, s{sOUT}, {WS_Z1}
          s_add_u32 s{sOUT}, s{sOUT}, {WS_GZ}
          s_lshl_b32 s{sAUX2}, s{sBLK}, 8
          s_mov_b32 s{sOSTR}, 1792
          s_mov_b32 s{sEPI}, 3
          s_branch L_gs''')
    a('L_ob:')
    a(f'''s_lshl_b32 s{sIDX}, s{sBLK}, 2
          s_add_u32 s{sIDX}, s{sIDX}, s{sCT}
          s_lshl_b32 s{sFLG}, s{sBLK}, 7
          s_add_u32 s{sFLG}, s{sFLG}, {WS_FLAGS+F_DONE+DN_GZ*128}''')
    wait_flag(a, W, sFLG, 1)
    srd_ws(a, S_A); srd(a, S_B, 88, 896*1024)
    a(f'''s_mul_i32 s{sAO}, s{sBLK}, {128*1792}
          s_add_u32 s{sAO}, s{sAO}, {WS_GZ}
          s_mov_b32 s{sLDA}, 1792
          s_lshl_b32 s{sBO}, s{sCT}, 8
          s_mov_b32 s{sLDB}, 1024
          s_mov_b32 s{sNST}, 14
          s_lshl_b32 s{sOUT}, s{sBLK}, 17
          s_add_u32 s{sOUT}, s{sOUT}, s{sBO}
          s_add_u32 s{sOUT}, s{sOUT}, {WS_OB}
          s_mov_b32 s{sOSTR}, 1024
          s_lshl_b32 s{sSPL}, s{sIDX}, 4
          s_add_u32 s{sSPL}, s{sSPL}, {WS_FLAGS+F_OB}
          s_mov_b32 s{sEPI}, 4
          s_branch L_gs''')
    a('L_att:')
    FS = opt.get('fs', 4)
    srd(a, S_B, 40, 4*MB)
    ft_prologue(a)
    a(f'''s_lshl_b32 s{sSPL}, s{sCT}, 5
          s_add_u32 s{sSPL}, s{sSPL}, {WS_FLAGS+F_FTQ}
          s_mov_b32 s{sAUX2}, 0
          s_lshl_b32 s{sFLG}, s{sCT}, 7
          s_add_u32 s{sFLG}, s{sFLG}, {WS_FLAGS+F_DONE+DN_HD*128}''')
    wait_flag(a, W, sFLG, 1, bar=False)
    TKF = FT_A + 8192
    a('L_ftc:')
    atomic_ret(a, vNXT, 0, 1, W, f's{sSPL}')
    a('L_ftl:')
    a('s_waitcnt vmcnt(0)')
    bcast_ticket(a, vNXT, sBLK, TKF)
    a(f's_cmp_ge_u32 s{sBLK}, 64\n s_cbranch_scc1 L_done')
    ft_loads_x(a)
    a(f's_add_u32 s{sT}, s{sBLK}, 6\n s_cmp_gt_u32 s{sAUX2}, s{sT}\n s_cselect_b32 s{sNT}, 1, 0\n s_cbranch_scc0 L_ftnp')
    atomic_ret(a, vNXT, 0, 1, W, f's{sSPL}')
    a('L_ftnp:')
    a(f's_cmp_gt_u32 s{sAUX2}, s{sBLK}\n s_cbranch_scc0 L_ftw')
    ft_km(a); ft_pre(a, 6)
    a('s_branch L_ftgo\n L_ftw:')
    ft_pre(a, 0)
    a(f'''s_lshl_b32 s{sFLG}, s{sCT}, 6
          s_add_u32 s{sFLG}, s{sFLG}, {WS_FLAGS+F_CH}
          s_add_u32 s{sAUX}, s{sBLK}, 1''')
    wait_flag(a, W, sFLG, f's{sAUX}', sleep=1, bar=False)
    a(f'''v_mov_b32 v22, {TKF}
          s_cmp_lg_u32 s{S_WAVE}, 0
          s_cbranch_scc1 L_ftb
          s_mov_b64 exec, 1
          ds_write_b32 v22, v21
          s_mov_b64 exec, -1
          s_waitcnt lgkmcnt(0)
          L_ftb:
          s_barrier''')
    ft_km(a)
    a(f'ds_read_b32 v22, v22\n s_waitcnt lgkmcnt(0)\n v_readfirstlane_b32 s{sAUX2}, v22')
    a('L_ftgo:')
    if opt.get('prof'): a('s_memrealtime s[78:79]')
    ft_segment(a)
    if opt.get('prof'): a('s_memrealtime s[84:85]')
    ft_gemm(a)
    if opt.get('prof'): a('s_memrealtime s[86:87]')
    a(f's_lshl_b32 s{sFLG}, s{sBLK}, 5\n s_add_u32 s{sFLG}, s{sFLG}, {WS_FLAGS+F_FT}\n s_lshl_b32 s{sAUX}, s{sBLK}, 7\n s_add_u32 s{sAUX}, s{sAUX}, {WS_FLAGS+F_DONE+DN_FT*128}')
    signal2(a, W, sFLG, 32, sAUX)
    if opt.get('prof'):
        a(f'''s_memrealtime s[80:81]
              s_waitcnt lgkmcnt(0)
              v_mov_b32 v32, s78
              v_mov_b32 v33, s84
              v_mov_b32 v34, s86
              v_mov_b32 v35, s80
              s_lshr_b32 s{sT}, s{sAO}, 9
              s_add_u32 s{sT}, s{sT}, {241*MB}
              s_mov_b64 exec, 1
              buffer_store_dwordx4 v[32:35], v{vZ}, {W}, s{sT} offen
              s_mov_b64 exec, -1''')
    a(f's_cmp_eq_u32 s{sNT}, 1\n s_cbranch_scc1 L_ftl\n s_branch L_ftc')
    a('L_g3:')
    srd(a, S_C, 0, 2*MB); srd(a, S_D, 96, 2*MB)
    a(f'''s_and_b32 s{sFLG}, s{sBLK}, 0xfc
          s_lshr_b32 s{sT}, s{sCT}, 1
          s_add_u32 s{sFLG}, s{sFLG}, s{sT}
          s_lshl_b32 s{sFLG}, s{sFLG}, 4
          s_add_u32 s{sFLG}, s{sFLG}, {WS_FLAGS+F_OB}''')
    wait_flag(a, W, sFLG, 1)
    red_pre(a)
    a(f's_lshl_b32 s{sFLG}, s{sBLK}, 7\n s_add_u32 s{sFLG}, s{sFLG}, {WS_FLAGS+F_DONE+DN_FT*128}')
    wait_flag(a, W, sFLG, 1, sleep=2)
    if opt.get('prof'): a('s_memrealtime s[78:79]')
    a('L_redl:')
    red_task(a)
    a(f's_sub_u32 s{sNT}, s{sNT}, 1\n s_cmp_eq_u32 s{sNT}, 0\n s_cbranch_scc1 L_done\n s_add_u32 s{sCT}, s{sCT}, 1')
    red_pre(a)
    a('s_branch L_redl')
    a('L_gs:')
    if opt.get('prof'): a('s_memrealtime s[78:79]')
    gemm_task_addr(a)
    gemm_start(a)
    a('L_st:')
    gemm_tile(a, True, 's')
    epi_row(a, False)
    a(f's_cmp_eq_u32 s{sEPI}, 4\n s_cbranch_scc0 L_gate')
    rows_phase(a, 'plain')
    a('L_nt2:')
    next_tile(2, 'L_st')
    a('L_gate:')
    rows_phase(a, 'gate')
    signal2(a, W, sSPL, 7, sWC)
    a('s_branch L_done')
    a('L_drain:')
    a('s_waitcnt vmcnt(0)\n s_barrier')
    pend_signal(a)
    a('s_branch L_done')
    a('L_done:')
    if opt.get('prof'):
        a(f'''s_memrealtime s[80:81]
              s_waitcnt lgkmcnt(0)
              v_mov_b32 v24, s76
              v_mov_b32 v25, s78
              v_mov_b32 v26, s80
              v_mov_b32 v27, s99
              s_lshl_b32 s{sT}, s{sTASK}, 4
              s_add_u32 s{sT}, s{sT}, {240*MB}
              s_mov_b64 exec, 1
              buffer_store_dwordx4 v[24:27], v{vZ}, {W}, s{sT} offen
              s_mov_b64 exec, -1''')
    a('s_branch L_claim\n L_chk:')
    a(f'''s_mov_b32 s{sFIRST}, 0
          buffer_load_dword v21, v{vZ}, {DBG}, 0 offen offset:{D_TEAMF} sc1
          s_waitcnt vmcnt(0)''')
    a(f'v_mov_b32 v24, v21')
    bcast_ticket(a, 24, sT+8)
    a(f's_cmp_eq_u32 s{sT+8}, 0\n s_cbranch_scc1 L_tryrole')
    a(f's_cmp_lt_u32 s{sPH}, {len(PH)}\n s_cbranch_scc1 L_claim\n s_branch L_end')
    a('L_wdone:')
    if opt.get('prof'):
        a(f'''s_waitcnt vmcnt(0)
              s_memrealtime s[80:81]
              s_waitcnt lgkmcnt(0)
              v_mov_b32 v24, s80
              s_lshl_b32 s{sT}, s2, 2
              s_add_u32 s{sT}, s{sT}, {243*MB}
              s_mov_b64 exec, 1
              buffer_store_dword v24, v{vZ}, {W}, s{sT} offen
              s_mov_b64 exec, -1''')
    a('s_branch L_end')

    a('L_chain:')
    copt = dict(opt)
    Wc = W
    def kvwait(a, first):
        if first:
            L = a.label('kw')
            if opt.get('prof'): a('s_memrealtime s[62:63]')
            a(f'''s_lshl_b32 s{C.S_T0}, s{S_HEAD}, 13
                  s_add_u32 s{C.S_T0}, s{C.S_T0}, {WS_KM+6144}
                  s_mov_b32 s{C.S_T0+1}, {D_INIT}
                  s_mov_b32 s{C.S_T0+3}, 0
                  {L}:
                  s_add_u32 s{C.S_T0+3}, s{C.S_T0+3}, 1
                  s_cmp_gt_u32 s{C.S_T0+3}, 0x40000
                  s_cbranch_scc1 L_end
                  buffer_load_dword v16, v{C.PMZ+1}, {DBG}, s{C.S_T0+1} offen sc1
                  s_waitcnt vmcnt(0)
                  buffer_load_dword v17, v{C.PMZ+1}, {Wc}, s{C.S_T0} offen sc1
                  s_waitcnt vmcnt(0)
                  v_lshlrev_b32 v16, 1, v16
                  v_min_u32 v16, v16, v17
                  s_nop 0
                  v_readfirstlane_b32 s{C.S_T0+2}, v16
                  s_nop 3
                  s_cmp_lg_u32 s{C.S_T0+2}, 2
                  s_cbranch_scc1 {L}
                  v_mov_b32 v{C.vT+1}, 2''')
            if opt.get('prof'):
                a(f'''s_memrealtime s[64:65]
                      s_waitcnt lgkmcnt(0)
                      v_mov_b32 v16, s62
                      v_mov_b32 v17, s64
                      s_lshl_b32 s{C.S_T0}, s{S_HEAD}, 3
                      s_add_u32 s{C.S_T0}, s{C.S_T0}, {244*MB}
                      s_mov_b64 exec, 1
                      buffer_store_dwordx2 v[16:17], v{C.PMZ+1}, {Wc}, s{C.S_T0} offen
                      s_mov_b64 exec, -1''')
        else:
            L = a.label('kw'); Lx = a.label('kwx')
            a(f'''v_readlane_b32 s{C.S_T0}, v{C.vT+1}, 32
                  s_cmp_ge_u32 s{C.S_STEP}, 63
                  s_cselect_b32 s{C.S_T0}, 2, s{C.S_T0}
                  s_cmp_lg_u32 s{C.S_T0}, 2
                  s_cbranch_scc1 {L}e
                  {Lx}:''')
            def slow(a):
                a(f'''{L}e:
                  s_sub_u32 s{C.S_T0+1}, s{C.S_KXO}, {32*8192}
                  s_mov_b32 exec_lo, 0
                  {L}:
                  s_add_u32 s{C.S_TO}, s{C.S_TO}, 16
                  s_cmp_gt_u32 s{C.S_TO}, 0x400000
                  s_cbranch_scc1 L_end
                  buffer_load_dword v{C.vT+1}, v{C.vTch}, {Wc}, s{C.S_T0+1} offen sc1
                  s_waitcnt vmcnt(0)
                  v_readlane_b32 s{C.S_T0}, v{C.vT+1}, 32
                  s_sleep 2
                  s_cmp_lg_u32 s{C.S_T0}, 2
                  s_cbranch_scc1 {L}
                  s_mov_b64 exec, -1
                  s_branch {Lx}''')
            copt.setdefault('_ool', []).append(slow)
    def kmflag(a, last):
        if last: a(f's_mov_b32 s{C.S_T0}, 64')
        else: a(f's_max_u32 s{C.S_T0}, s{C.S_STEP}, 1\n s_sub_u32 s{C.S_T0}, s{C.S_T0}, 1')
        a(f'''v_mov_b32 v{C.vT}, s{C.S_T0}
              s_mov_b64 exec, 1
              buffer_store_dword v{C.vT}, v{C.PMZ+1}, {Wc}, s98 offen sc1
              s_mov_b64 exec, -1''')
    copt['kvcnt'] = 3
    copt['kvwait'] = kvwait; copt['kmflag'] = kmflag
    def hook(a, n):
        if n == 4:
            a(f'''s_cmp_eq_u32 s{S_XCC}, {opt.get('team_xcc',0)}
                  s_cselect_b32 s59, 1, 0x10001
                  s_cmp_lg_u32 s{S_WAVE}, 0
                  s_cbranch_scc1 L_h4
                  v_mov_b32 v0, s59
                  v_mov_b32 v{C.vIdx}, {D_TEAM}
                  s_mov_b64 exec, 1
                  buffer_atomic_add v0, v{C.vIdx}, {DBG}, 0 offen sc0
                  s_mov_b64 exec, -1
                  L_h4:''')
        if n == 6:
            a(f'''s_cmp_lg_u32 s{S_WAVE}, 0
                  s_cbranch_scc1 L_h6
                  s_mov_b64 exec, 1
                  v_add_u32 v0, s59, v0
                  v_and_b32 v{C.vIdx}, 0xffff, v0
                  v_cmp_eq_u32 vcc, 32, v{C.vIdx}
                  v_mov_b32 v{C.vIdx}, {D_TEAMF}
                  s_and_b64 exec, exec, vcc
                  s_cbranch_execz L_h6x
                  buffer_store_dword v0, v{C.vIdx}, {DBG}, 0 offen sc1
                  L_h6x:
                  s_mov_b64 exec, -1
                  L_h6:''')
    copt['hook'] = hook
    C.chain_setup(a, copt)
    a(f'''
    v_bfe_u32 v16, v{C.vLANE}, 1, 1
    v_mov_b32 v{C.vIdx}, 0x4444
    v_mov_b32 v17, 0xeeee
    v_cmp_eq_u32 vcc, 1, v16
    v_mov_b32 v18, {D_TEAMF}
    s_mov_b32 s{C.S_T0+3}, 0
    v_cndmask_b32 v{C.vIdx}, v{C.vIdx}, v17, vcc
    L_cspin:
    s_add_u32 s{C.S_T0+3}, s{C.S_T0+3}, 1
    s_cmp_gt_u32 s{C.S_T0+3}, 0x100000
    s_cbranch_scc1 L_end
    buffer_load_dword v16, v18, {DBG}, 0 offen sc1
    s_waitcnt vmcnt(0)
    v_readfirstlane_b32 s{C.S_T0}, v16
    s_nop 3
    s_cmp_eq_u32 s{C.S_T0}, 0
    s_cbranch_scc1 L_cspin
    s_mov_b32 s59, s{C.S_T0}
    ''')
    C.chain_masks(a)
    a(f'''s_lshl_b32 s98, s{S_HEAD}, 6
          s_add_u32 s{C.S_T0}, s98, {WS_FLAGS+F_CH}
          s_lshl_b32 s98, s98, 3
          s_lshl_b32 s{C.S_T0+1}, s{S_WAVE}, 7
          s_add_u32 s98, s98, s{C.S_T0+1}
          s_add_u32 s98, s98, {WS_FLAGS + 131072}
          s_cmp_eq_u32 s{S_WAVE}, 0
          s_cselect_b32 s98, s{C.S_T0}, s98''')
    a(f'''buffer_load_dwordx4 v[16:19], v{C.vOr}, {W}, s{C.S_INL} offen sc1
          buffer_load_dwordx4 v[20:23], v{C.vOr}, {W}, s{C.S_INL} offen offset:1024 sc1''')
    for s in range(1, C.RING):
        a(f'''s_mov_b32 s{C.S_T0}, {WS_MEM + s*8192}
              buffer_load_dwordx4 v[16:19], v{C.vMld}, {W}, s{C.S_T0} offen sc1
              buffer_load_dwordx4 v[20:23], v{C.vMld}, {W}, s{C.S_T0} offen offset:1024 sc1''')
    a(f's_waitcnt vmcnt(0)\n s_cmp_gt_u32 s59, 0xffff\n s_cbranch_scc1 L_slow')
    C.chain_loop(a, copt, '', 'f')
    a('s_branch L_end\n L_slow:')
    C.chain_loop(a, copt, 'sc1', 's')
    a('L_end:\n s_endpgm')
    a('.p2align 4\n.type task_table,@object\ntask_table:')
    for i in range(0, len(words), 8): a('.long ' + ', '.join(hex(x) for x in words[i:i+8]))
    a(f'.size task_table, {4*len(words)}')
    head = HDR + f'''; @launch grid=(256,1,1) block=(256,1,1) lds=163840
;
; One persistent kernel, one workgroup per CU, roles chosen at run time:
;  * 32 workgroups ("chain", one attention head each, taken by workgroups that report die 0; any others fill in and the
;    team then switches to write-through hand-offs) keep Wq/Wk/Wv/Wo of their head in registers + LDS and run the 64-step
;    memory recurrence: sparse-MFMA projections of the 8 memory rows, attention, out-projection partials,
;    reduce-scatter + all-gather through L2 with data-validated polling (short back-off before each first poll).
;  * all other workgroups pull tasks from table-driven queues: layer norms, xn @ [Wk|Wv|Wq|w_in] (A resident),
;    spatial GEMM + gate, w_out GEMM, per (segment, head) token attention fused with its out-projection partial,
;    and the final reduction (+ x + gMLP branch).
; Generated by a script (hand-written instruction templates).
.amdgcn_target "amdgcn-amd-amdhsa--gfx950"
.text
.globl {NAME}
.p2align 8
.type {NAME},@function
{NAME}:
'''
    tail = f'''.section .rodata,"a"
.p2align 6
.amdhsa_kernel {NAME}
  .amdhsa_next_free_vgpr 512
  .amdhsa_next_free_sgpr 102
  .amdhsa_accum_offset 256
  .amdhsa_group_segment_fixed_size 0
  .amdhsa_kernarg_size 120
  .amdhsa_user_sgpr_count 2
  .amdhsa_user_sgpr_kernarg_segment_ptr 1
  .amdhsa_system_sgpr_workgroup_id_x 1
.end_amdhsa_kernel
'''
    return head + a.text() + tail

if __name__ == '__main__':
    out = sys.argv[1] if len(sys.argv) > 1 else 'parallel_sum__memory_aug_recurrent_mem_tr__mixer_gmlp__prompt.s'
    open(out,'w').write(gen({}))
```
